```python
import torch

def _softmax(x, axis=-1):
    return torch.softmax(x, dim=axis)

def _gelu(x):
    return torch.nn.functional.gelu(x, approximate='tanh')

def _silu(x):
    return torch.nn.functional.silu(x)

def _sigmoid(x):
    return torch.sigmoid(x)

def _layernorm(x, axis=-1, eps=1e-05):
    m = x.mean(dim=axis, keepdim=True)
    v = x.var(dim=axis, keepdim=True, unbiased=False)
    return (x - m) / torch.sqrt(v + eps)

def _scatter_add(tgt, idx, src, axis=0):
    return tgt.clone().index_add_(axis, idx, src)

def _segment_sum(src, seg, n):
    out = torch.zeros((n,) + src.shape[1:], dtype=src.dtype)
    return out.index_add_(0, seg, src)

def _pad(x, pw):
    flat = tuple((v for pair in reversed(pw) for v in pair))
    return torch.nn.functional.pad(x, flat)
kernel_name = 'recurrent_scan__memory_aug_recurrent_mem_tr__glu_gated_bilinear__prompt'

def setup_inputs():

    _w = lambda a: (lambda t: t.to(torch.bfloat16) if t.is_floating_point() else t)(torch.as_tensor(a))

    def _A_setup():
        B, S, Dm = (1, 2048, 512)
        H, Dh = (32, 128)
        M, seg = (8, 32)
        seg = min(seg, S)
        S = S // seg * seg
        return {'x': _w((lambda *s: torch.randn(*s, dtype=torch.bfloat16) * 0.1)(B, S, Dm)), 'mem0': _w((lambda *s: torch.randn(*s, dtype=torch.bfloat16) * 1.6)(B, M, Dm)), 'Wq': _w((lambda *s: torch.randn(*s, dtype=torch.bfloat16) * 0.8)(Dm, H, Dh) * Dm ** (-0.5)), 'Wk': _w((lambda *s: torch.randn(*s, dtype=torch.bfloat16) * 0.8)(Dm, H, Dh) * Dm ** (-0.5)), 'Wv': _w((lambda *s: torch.randn(*s, dtype=torch.bfloat16) * 1.6)(Dm, H, Dh) * Dm ** (-0.5)), 'Wo': _w((lambda *s: torch.randn(*s, dtype=torch.bfloat16) * 1.6)(H, Dh, Dm) * (H * Dh) ** (-0.5)), 'seg_len': seg}
    _A_in = _A_setup()

    def _B_setup():
        B, S, D, F = (1, 2048, 512, 1376)
        return {'x': _w((lambda *s: torch.randn(*s, dtype=torch.bfloat16) * 0.1)(B, S, D)), 'w_gate': _w((lambda *s: torch.randn(*s, dtype=torch.bfloat16) * 0.4)(D, F) * D ** (-0.5)), 'w_up': _w((lambda *s: torch.randn(*s, dtype=torch.bfloat16) * 0.4)(D, F) * D ** (-0.5)), 'w_down': _w((lambda *s: torch.randn(*s, dtype=torch.bfloat16) * 0.4)(F, D) * F ** (-0.5))}
    _B_in = _B_setup()
    return {'A_x': _A_in['x'], 'A_mem0': _A_in['mem0'], 'A_Wq': _A_in['Wq'], 'A_Wk': _A_in['Wk'], 'A_Wv': _A_in['Wv'], 'A_Wo': _A_in['Wo'], 'A_seg_len': _A_in['seg_len'], 'B_x': _B_in['x'], 'B_w_gate': _B_in['w_gate'], 'B_w_up': _B_in['w_up'], 'B_w_down': _B_in['w_down']}

def reference(A_x, A_mem0, A_Wq, A_Wk, A_Wv, A_Wo, A_seg_len, B_x, B_w_gate, B_w_up, B_w_down):

    def _A_ref(x, mem0, Wq, Wk, Wv, Wo, seg_len):
        B, S, Dm = x.shape
        H, Dh = (Wq.shape[1], Wq.shape[2])
        M = mem0.shape[1]
        scale = Dh ** (-0.5)
        n_seg = S // seg_len
        L = M + seg_len
        idx = torch.arange(L)
        mask = (idx[:, None] < M) | (idx[:, None] >= idx[None, :])
        mem = mem0
        outs = []
        for s in range(n_seg):
            xs = x[:, s * seg_len:(s + 1) * seg_len, :].clone()
            h = torch.concatenate([mem, xs], axis=1)
            q = torch.einsum('btd,dhe->bhte', h, Wq)
            k = torch.einsum('btd,dhe->bhte', h, Wk)
            v = torch.einsum('btd,dhe->bhte', h, Wv)
            scores = torch.einsum('bhqe,bhke->bhqk', q, k) * scale
            scores = torch.where(mask[None, None], scores, -1000000000.0)
            p = _softmax(scores, axis=-1)
            o = torch.einsum('bhqk,bhke->bhqe', p, v)
            o = torch.einsum('bhte,hed->btd', o, Wo)
            mem = o[:, :M, :].clone()
            outs.append(o[:, M:, :])
        return torch.concatenate(outs, axis=1)

    def _B_ref(x, w_gate, w_up, w_down):
        g = torch.einsum('bsd,df->bsf', x, w_gate)
        u = torch.einsum('bsd,df->bsf', x, w_up)
        h = g * u
        return torch.einsum('bsf,fd->bsd', h, w_down)
    x = A_x
    xn = _layernorm(x, axis=-1)
    s = _A_ref(xn, A_mem0, A_Wq, A_Wk, A_Wv, A_Wo, A_seg_len)
    g = _silu(_B_ref(xn, B_w_gate, B_w_up, B_w_down))
    return x + s * g
```

```python
import re

def R(i, n=1):
    p = 'v' if i < 256 else 'a'
    j = i if i < 256 else i - 256
    assert 0 <= i < 512 and (i + n - 1) // 256 == i // 256, (i, n)
    return f"{p}{j}" if n == 1 else f"{p}[{j}:{j+n-1}]"

def S(i, n=1):
    return f"s{i}" if n == 1 else f"s[{i}:{i+n-1}]"

_reg_re = re.compile(r"^(-|abs\()?\s*([vas])(?:(\d+)|\[(\d+):(\d+)\])\)?$")

def _regs(op):
    op = op.strip()
    if op in ('vcc',): return {('s', 106), ('s', 107)}
    if op == 'vcc_lo': return {('s', 106)}
    if op == 'vcc_hi': return {('s', 107)}
    if op == 'exec': return {('s', 126), ('s', 127)}
    if op == 'm0': return {('s', 124)}
    m = _reg_re.match(op)
    if not m: return set()
    k = m.group(2)
    if m.group(3) is not None: lo = hi = int(m.group(3))
    else: lo, hi = int(m.group(4)), int(m.group(5))
    if k == 's': return {('s', i) for i in range(lo, hi + 1)}
    off = 256 if k == 'a' else 0
    return {('v', i + off) for i in range(lo, hi + 1)}

TRANS = ('v_exp_', 'v_log_', 'v_rcp_', 'v_rsq_', 'v_sqrt_', 'v_sin_', 'v_cos_')

class Ins:
    __slots__ = ('text', 'mn', 'kind', 'w', 'r', 'passes', 'srcc', 'ab', 'dpp', 'ws', 'wide', 'data', 'ldsdma', 'lanesel')
    def __init__(self, text):
        self.text = text
        t = text.split(';')[0].strip()
        parts = t.split(None, 1)
        mn = parts[0]; self.mn = mn
        rest = parts[1] if len(parts) > 1 else ''
        ops = []; mods = ''
        for o in (rest.split(',') if rest else []):
            sp = o.strip().split(None, 1)
            ops.append(sp[0])
            if len(sp) > 1:
                mods = rest[rest.index(sp[1]):]
                break
        self.w = set(); self.r = set(); self.passes = 0; self.srcc = set(); self.ab = set()
        self.dpp = False; self.ws = 1; self.wide = False; self.data = set(); self.ldsdma = False; self.lanesel = set()
        rs = [_regs(o) for o in ops]
        if mn == 's_nop':
            self.kind = 'nop'; self.ws = int(ops[0], 0) + 1
        elif mn.startswith('v_mfma') or mn.startswith('v_smfmac'):
            self.kind = 'mfma'
            self.passes = 8 if '32x32' in mn else 4
            self.w = rs[0]
            if mn.startswith('v_smfmac'):
                self.ab = rs[1] | rs[2] | rs[3]; self.srcc = rs[0]
            else:
                self.ab = rs[1] | rs[2]; self.srcc = rs[3]
            self.r = self.ab | self.srcc
        elif mn.startswith('v_'):
            self.kind = 'valu'
            self.dpp = ('_dpp' in mn) or ('quad_perm' in mods) or ('row_' in mods)
            if 'permlane' in mn and 'swap' in mn:
                self.w = rs[0] | rs[1]; self.r = rs[0] | rs[1]
            elif mn.startswith('v_cmpx'):
                raise ValueError('avoid v_cmpx')
            elif mn.startswith(('v_add_co', 'v_sub_co', 'v_addc_co', 'v_subb_co', 'v_mad_u64', 'v_div_scale')):
                self.w = rs[0] | rs[1]
                for x in rs[2:]: self.r |= x
            else:
                self.w = rs[0]
                for x in rs[1:]: self.r |= x
                if mn.startswith(('v_fmac', 'v_dot2c', 'v_pk_fmac', 'v_writelane')) or self.dpp: self.r |= rs[0]
                if mn.startswith(('v_readlane', 'v_writelane')): self.lanesel = rs[2]
                if mn.startswith('v_div_fmas'): self.r |= _regs('vcc')
        elif mn.startswith('ds_'):
            self.kind = 'ds'
            if mn.startswith(('ds_read', 'ds_bpermute', 'ds_permute', 'ds_swizzle')) or '_rtn' in mn:
                self.w = rs[0]
                for x in rs[1:]: self.r |= x
            else:
                for x in rs: self.r |= x
        elif mn.startswith(('buffer_', 'global_')):
            self.kind = 'vmem'
            allm = (mods + ' ').split()
            if mn in ('buffer_inv', 'buffer_wbl2'):
                pass
            elif 'lds' in allm or '_lds_' in mn:
                self.ldsdma = True
                for x in rs: self.r |= x
                self.r |= _regs('m0')
            elif '_load' in mn:
                self.w = rs[0]
                for x in rs[1:]: self.r |= x
            elif '_store' in mn:
                for x in rs: self.r |= x
                self.data = rs[0] if mn.startswith('buffer_') else rs[1]
                self.wide = mn.endswith(('x3', 'x4'))
            elif '_atomic' in mn:
                for x in rs: self.r |= x
                if 'sc0' in allm: self.w = rs[0]
            else:
                raise ValueError(text)
        elif mn.startswith('s_'):
            self.kind = 'salu'
            if mn.startswith(('s_cmp', 's_cbranch', 's_branch', 's_waitcnt', 's_barrier', 's_endpgm', 's_sleep', 's_setprio', 's_bitcmp', 's_setreg')):
                for x in rs: self.r |= x
            else:
                if rs: self.w = rs[0]
                for x in rs[1:]: self.r |= x
                if 'saveexec' in mn: self.w |= _regs('exec')
        else:
            raise ValueError('unknown instr ' + text)

def need(p, c):
    n = 0
    pv = {x for x in p.w if x[0] == 'v'}
    ps = {x for x in p.w if x[0] == 's'}
    if p.kind == 'valu':
        if c.kind == 'mfma' and pv & c.r: n = max(n, 2)
        if c.kind == 'valu':
            if 'permlane' in c.mn and pv & c.r: n = max(n, 2)
            if c.dpp and pv & c.r: n = max(n, 2)
            if c.mn.startswith(('v_readlane', 'v_readfirstlane')) and pv & c.r: n = max(n, 1)
            if p.mn.startswith(TRANS) and pv & c.r: n = max(n, 1)
            if ps & c.r: n = max(n, 2)
            if ps & c.lanesel: n = max(n, 4)
            if c.mn.startswith('v_div_fmas') and ps & _regs('vcc'): n = max(n, 4)
            if 'op_sel' in p.text and pv & (c.r | c.w): n = max(n, 1)
        if c.kind == 'vmem' and ps & c.r: n = max(n, 5)
        if c.kind == 'salu' and ps & c.r: n = max(n, 1)
    if p.kind == 'mfma':
        big = 12 if p.passes == 8 else 8
        mid = 10 if p.passes == 8 else 6
        if c.kind == 'mfma':
            if pv & c.ab: n = max(n, big)
            if pv & c.srcc:
                if not (c.srcc == pv and c.passes == p.passes): n = max(n, mid)
            elif pv & c.w and c.passes != p.passes: n = max(n, big)
        if c.kind in ('valu', 'vmem', 'ds') and pv & (c.r | c.w): n = max(n, big)
        if c.kind == 'valu' and p.srcc & c.w: n = max(n, 7 if p.passes == 8 else 3)
        if c.kind == 'valu' and p.mn.startswith('v_smfmac') and p.ab & c.w: n = max(n, 1)
    if p.kind == 'vmem' and p.wide and p.data & c.w:
        n = max(n, 2)
    if p.kind == 'salu' and ('s', 124) in p.w and (c.ldsdma or c.mn.startswith('s_movrel') or 'addtid' in c.mn): n = max(n, 1)
    return n

class Asm:
    def __init__(self):
        self.lines = []
        self.uid = 0
    def __call__(self, text):
        for t in text.split('\n'):
            t = t.strip()
            if not t: continue
            if t.endswith(':') or t.startswith(('.', ';')):
                self.lines.append(t)
            else:
                self.lines.append(Ins(t))
    def label(self, name): self.lines.append(name + ':')
    def newlabel(self, base='L'):
        self.uid += 1
        return f"{base}_{self.uid}"
    def finish(self, verbose=False):
        out = []
        hist = []
        inserted = 0
        labels = {}
        def elapsed(seq, c):
            now = 0; mf = 0
            for x in seq:
                t = max(now, mf) if x.kind == 'mfma' else now
                now = t + x.ws
                if x.kind == 'mfma': mf = t + x.passes
            t = max(now, mf) if c.kind == 'mfma' else now
            return now, t
        for ln in self.lines:
            if isinstance(ln, str):
                if ln.endswith(':'): labels[ln[:-1]] = len(out)
                out.append(ln); continue
            req = 0
            for i, p in enumerate(hist):
                k = need(p, ln)
                if k:
                    now, t = elapsed(hist[i:], ln)
                    if t - 1 < k: req = max(req, k + 1 - now)
            if req:
                nop = Ins(f"s_nop {req-1}")
                out.append(nop); hist.append(nop); inserted += 1
                if verbose: print('nop', req, 'before', ln.text)
            out.append(ln); hist.append(ln)
            if len(hist) > 14: hist = hist[-14:]
            if ln.mn in ('s_branch', 's_endpgm'): hist = []
        for i, ln in enumerate(out):
            if isinstance(ln, Ins) and ln.mn.startswith(('s_cbranch', 's_branch')):
                tgt = ln.text.split()[1]
                if tgt not in labels: raise ValueError('no label ' + tgt)
                pre = []; j = i
                while j >= 0 and sum(p.ws for p in pre) < 14:
                    if isinstance(out[j], Ins):
                        if j < i and out[j].mn in ('s_branch', 's_endpgm'): break
                        pre.append(out[j])
                    j -= 1
                post = []; j = labels[tgt]
                while j < len(out) and sum(p.ws for p in post) < 14:
                    if isinstance(out[j], Ins): post.append(out[j])
                    j += 1
                pre.reverse()
                for pi_, p in enumerate(pre):
                    for ci, c in enumerate(post):
                        k = need(p, c)
                        if k and elapsed(pre[pi_:] + post[:ci], c)[1] - 1 < k:
                            raise ValueError(f'hazard across branch {ln.text}: {p.text} -> {c.text}')
                        if c.mn in ('s_branch', 's_endpgm'): break
        self.inserted = inserted
        return '\n'.join(x if isinstance(x, str) else '    ' + x.text for x in out) + '\n'

class Cnt:
    def __init__(self, a, name, maxv):
        self.a = a; self.name = name; self.maxv = maxv; self.q = []
    def issue(self, tag): self.q.append(tag)
    def wait(self, tag):
        idx = max((i for i, t in enumerate(self.q) if t == tag), default=None)
        if idx is None: return
        n = len(self.q) - 1 - idx
        n = min(n, self.maxv)
        self.a(f"s_waitcnt {self.name}({n})")
        self.q = self.q[len(self.q) - n:] if n else []
    def drain(self):
        self.a(f"s_waitcnt {self.name}(0)"); self.q = []
    def reset(self): self.q = []
```

```python
from common import *
import math, struct

KXB = 0
SAREA = 8192
TAREA = SAREA + 65536
MEMST = TAREA + 65536
VXB = MEMST + 8192
QB = VXB + 8192
RS = 288
KBUF = QB + 8 * RS
OB = KBUF + 8 * RS
LDS_END = OB + 8 * RS
RING = TAREA
NSLOT = 5
assert RING + NSLOT * 16384 <= 163840 and LDS_END <= 163840 and MEMST % 8192 == 0

vT, vL16, vIDX, vOWN, vQW, vQR, vKR, vTCH, vH1S, vMS, vWL, vFLAG = range(12)
TQ, PQ, KVQ, ONES = 12, 16, 20, 24
def O(i): return 32 + 8 * i
PERM0 = 128

sStep, sMemRd, sMemWr, sMemRst = 40, 41, 42, 43
sH1S = 44
sH1L, sTag, sKV, sKVM, sCc, sF1 = 48, 49, 50, 51, 52, 53
sPm = 54
RSTR = 8192 + 256 + 1024
sThr, sFast = 56, 57
sM0K, sM0V, sSlot, sR1, sR2 = 58, 59, 60, 61, 62
sSel = 64
sStamp = 72
vSELV = ONES + 1
vDUMMY = ONES + 5

OWN = [(m, t, c) for c in (0, 1) for m in 'qkv' for t in (0, 1)]
TREG = [O(1), O(2), O(3), O(7), O(8), O(9), O(10), O(11)]
WOORD = [(t, kap) for t in range(4) for kap in range(4)]
SREG = [O(7), O(8), O(11), O(0), O(2), O(3), O(9), O(10)]

def block_map():
    reg = {}; tidx = {}; sidx = {}
    nxt = PERM0
    for i, b in enumerate(OWN):
        if i < 8: reg[b] = TREG[i]; tidx[b] = i
        else: reg[b] = nxt; nxt += 8
    for m in 'qkv':
        for c in range(2, 8):
            for t in (0, 1):
                reg[(m, t, c)] = nxt; nxt += 8
    for i, b in enumerate(WOORD):
        key = ('o',) + b
        if i < 8: reg[key] = nxt; nxt += 8
        else: reg[key] = SREG[i - 8]; sidx[key] = i - 8
    assert nxt == 512
    return reg, tidx, sidx

REG, TIDX, SIDX = block_map()
ACC = {'q': O(4), 'k': O(5), 'v': O(6)}
def MCH(c): return O(0) + 4 * c


def chain_setup(a, cfg):
    g, c, t0, t1, t2, t3 = O(0), O(0) + 1, O(0) + 2, O(0) + 3, O(0) + 4, O(0) + 5
    lane = O(0) + 6
    srd_load(a, [(sA, 'Wq'), (sB, 'Wk'), (sC_, 'Wv'), (sD, 'Wo'), (sE, 'mem0')])
    a(f"v_mov_b32 {R(lane)}, v0")
    a(f"v_lshlrev_b32 {R(vL16)}, 4, v0")
    a(f"v_lshrrev_b32 {R(g)}, 4, v0")
    a(f"v_and_b32 {R(c)}, 15, v0")
    a(f"s_mov_b32 {S(sPm)}, 0xcccccccc"); a(f"s_mov_b32 {S(sPm+1)}, 0xcccccccc")
    for r, mk in enumerate((0x05050505, 0x50505050, 0x0a0a0a0a, 0xa0a0a0a0)):
        a(f"s_mov_b32 {S(sSel+2*r)}, {mk:#x}"); a(f"s_mov_b32 {S(sSel+2*r+1)}, {mk:#x}")
    a(f"v_mov_b32 {R(t0)}, 0x44444444"); a(f"v_mov_b32 {R(t1)}, 0xe4e4eeee")
    a(f"v_cndmask_b32 {R(vIDX)}, {R(t0)}, {R(t1)}, {S(sPm,2)}")
    a(f"s_lshl_b32 {S(sT0)}, {S(sW)}, 11"); a(f"s_add_u32 {S(sT1)}, {S(sT0)}, {MEMST}")
    a(f"v_add_u32 {R(vOWN)}, {S(sT1)}, {R(vL16)}")
    a(f"s_add_u32 {S(sM0K)}, {S(sT0)}, {KXB}"); a(f"s_add_u32 {S(sM0V)}, {S(sT0)}, {VXB}")
    a(f"s_lshl_b32 {S(sT1)}, {S(sW)}, 14"); a(f"s_add_u32 {S(sT1)}, {S(sT1)}, {SAREA}")
    a(f"v_add_u32 {R(vWL)}, {S(sT1)}, {R(vL16)}")
    a(f"s_lshl_b32 {S(sT1)}, {S(sW)}, 6"); a(f"s_add_u32 {S(sT1)}, {S(sT1)}, {QB}")
    a(f"v_mul_u32_u24 {R(t0)}, {2*RS}, {R(g)}")
    a(f"v_lshl_add_u32 {R(t0)}, {R(c)}, 2, {R(t0)}")
    a(f"v_add_u32 {R(vQW)}, {S(sT1)}, {R(t0)}")
    a(f"v_lshrrev_b32 {R(t0)}, 2, {R(c)}"); a(f"v_and_b32 {R(t1)}, 1, {R(c)}")
    a(f"v_lshl_add_u32 {R(t1)}, {R(t0)}, 1, {R(t1)}")
    a(f"v_mul_u32_u24 {R(t1)}, {RS}, {R(t1)}")
    a(f"v_lshl_add_u32 {R(t2)}, {R(g)}, 4, {R(t1)}")
    a(f"v_add_u32 {R(vQR)}, {QB}, {R(t2)}")
    a(f"v_and_b32 {R(t1)}, 2, {R(t0)}")
    a(f"v_add_u32 {R(t1)}, {R(t1)}, {R(c)}"); a(f"v_and_b32 {R(t1)}, 3, {R(t1)}")
    a(f"v_and_b32 {R(t2)}, 1, {R(t0)}")
    a(f"v_lshl_add_u32 {R(t1)}, {R(t2)}, 2, {R(t1)}")
    a(f"v_mul_u32_u24 {R(t1)}, {RS}, {R(t1)}")
    a(f"v_lshl_add_u32 {R(t1)}, {R(g)}, 4, {R(t1)}")
    a(f"v_add_u32 {R(vKR)}, {KBUF}, {R(t1)}")
    a(f"v_lshrrev_b32 {R(t0)}, 5, {R(lane)}"); a(f"v_mul_u32_u24 {R(t0)}, {RSTR}, {R(t0)}")
    a(f"v_and_b32 {R(t1)}, 31, {R(lane)}"); a(f"v_lshl_add_u32 {R(vH1S)}, {R(t1)}, 3, {R(t0)}")
    for t in range(4):
        a(f"s_add_u32 {S(sT0)}, {S(sH)}, {t}"); a(f"s_and_b32 {S(sT0)}, {S(sT0)}, 3")
        a(f"s_lshl_b32 {S(sT1)}, {S(sW)}, 2"); a(f"s_add_u32 {S(sT0)}, {S(sT0)}, {S(sT1)}")
        a(f"s_mul_i32 {S(sT0)}, {S(sT0)}, {2*RSTR}")
        a(f"s_lshr_b32 {S(sT1)}, {S(sH)}, 2"); a(f"s_lshl_b32 {S(sT1)}, {S(sT1)}, 8")
        a(f"s_add_u32 {S(sT0)}, {S(sT0)}, {S(sT1)}")
        a(f"s_add_u32 {S(sH1S+t)}, {S(sT0)}, {WS_PART + t*2048}")
    a(f"s_mul_i32 {S(sT0)}, {S(sH)}, {RSTR}"); a(f"s_add_u32 {S(sH1L)}, {S(sT0)}, {WS_PART}")
    a(f"s_lshr_b32 {S(sT0)}, {S(sH)}, 1"); a(f"s_and_b32 {S(sT0)}, {S(sT0)}, 3"); a(f"s_lshl_b32 {S(sT2)}, {S(sT0)}, 11")
    a(f"s_lshr_b32 {S(sT1)}, {S(sH)}, 4"); a(f"s_lshl_b32 {S(sT1)}, {S(sT1)}, 10"); a(f"s_add_u32 {S(sT2)}, {S(sT2)}, {S(sT1)}")
    a(f"s_bfe_u32 {S(sT1)}, {S(sH)}, 0x10003"); a(f"s_lshl_b32 {S(sT1)}, {S(sT1)}, 9"); a(f"s_add_u32 {S(sT2)}, {S(sT2)}, {S(sT1)}")
    a(f"s_and_b32 {S(sT1)}, {S(sH)}, 1"); a(f"s_lshl_b32 {S(sT1)}, {S(sT1)}, 7"); a(f"s_add_u32 {S(sT2)}, {S(sT2)}, {S(sT1)}")
    a(f"v_and_b32 {R(t2)}, 1, {R(g)}"); a(f"v_lshlrev_b32 {R(t0)}, 8, {R(t2)}")
    a(f"v_lshrrev_b32 {R(t1)}, 1, {R(g)}"); a(f"v_lshl_add_u32 {R(t0)}, {R(t1)}, 4, {R(t0)}")
    a(f"v_lshrrev_b32 {R(t3)}, 2, {R(c)}"); a(f"v_lshl_add_u32 {R(t0)}, {R(t3)}, 5, {R(t0)}")
    a(f"v_and_b32 {R(t3)}, 3, {R(c)}"); a(f"v_lshl_add_u32 {R(t0)}, {R(t3)}, 2, {R(t0)}")
    a(f"s_cmp_eq_u32 {S(sW)}, 0"); a(f"s_cselect_b32 {S(sT2)}, {S(sT2)}, {OOB:#x}")
    a(f"v_add_u32 {R(vMS)}, {S(sT2)}, {R(t0)}")
    a(f"s_lshl_b32 {S(sT2)}, {S(sT0)}, 8")
    a(f"s_lshr_b32 {S(sT1)}, {S(sH)}, 3"); a(f"s_lshl_b32 {S(sT1)}, {S(sT1)}, 6"); a(f"s_add_u32 {S(sT2)}, {S(sT2)}, {S(sT1)}")
    a(f"s_and_b32 {S(sT1)}, {S(sH)}, 1"); a(f"s_lshl_b32 {S(sT1)}, {S(sT1)}, 12"); a(f"s_add_u32 {S(sT2)}, {S(sT2)}, {S(sT1)}")
    a(f"v_lshlrev_b32 {R(t0)}, 5, {R(t2)}")
    a(f"v_lshl_add_u32 {R(t0)}, {R(t1)}, 10, {R(t0)}")
    a(f"v_lshrrev_b32 {R(t3)}, 3, {R(c)}"); a(f"v_lshl_add_u32 {R(t0)}, {R(t3)}, 11, {R(t0)}")
    a(f"v_and_b32 {R(t1)}, 7, {R(c)}"); a(f"v_lshl_add_u32 {R(t0)}, {R(t1)}, 2, {R(t0)}")
    for j in (0, 2, 3, 4, 6, 7): a(f"v_mov_b32 {R(ONES+j)}, 0x3f803f80")
    a(f"v_lshlrev_b32 {R(t1)}, 4, {R(t3)}"); a(f"v_mov_b32 {R(t2)}, 0x3f80")
    a(f"v_lshlrev_b32 {R(vSELV)}, {R(t1)}, {R(t2)}")
    a(f"v_mov_b32 {R(vDUMMY)}, 0"); a(f"v_lshlrev_b32 {R(vTCH)}, 7, {R(lane)}")
    a(f"s_lshl_b32 {S(sT1)}, {S(sH)}, 8"); a(f"s_add_u32 {S(sF1)}, {S(sT1)}, {WS_FLAG + F_T1}")
    a(f"buffer_load_dword {R(t3)}, {R(t0)}, {S(sE,4)}, {S(sT2)} offen")
    a(f"s_mov_b32 {S(sCc)}, {f2u(128 ** -0.5 * math.log2(math.e)):#x}")
    a(f"s_mov_b32 {S(sR1)}, 0"); a(f"s_mov_b32 {S(sR2)}, 0")
    a(f"s_lshl_b32 {S(sT0)}, {S(sH)}, 14"); a(f"s_lshl_b32 {S(sT1)}, {S(sW)}, 11")
    a(f"s_add_u32 {S(sT0)}, {S(sT0)}, {S(sT1)}"); a(f"s_add_u32 {S(sKV)}, {S(sT0)}, {WS_KV}")
    a(f"s_lshl_b32 {S(sT0)}, {S(sH)}, 12"); a(f"s_lshl_b32 {S(sT1)}, {S(sW)}, 10")
    a(f"s_add_u32 {S(sT0)}, {S(sT0)}, {S(sT1)}"); a(f"s_add_u32 {S(sKVM)}, {S(sT0)}, {WS_KVM}")
    return t3


def chain_init_buffers(a, cfg, m0reg, sc):
    q = O(4)
    for i in range(4): a(f"v_mov_b32 {R(q+i)}, 0")
    a(f"s_lshl_b32 {S(sT2)}, {S(sW)}, 11"); a(f"s_add_u32 {S(sT2)}, {S(sT2)}, {S(sH1L)}")
    a(f"s_add_u32 {S(sT1)}, {S(sT2)}, {512*KB}")
    for so in (sT2, sT1):
        for t in range(2):
            a(f"buffer_store_dwordx4 {R(q,4)}, {R(vL16)}, {S(sWS,4)}, {S(so)} offen offset:{t*1024}{sc}")
    a(f"v_mov_b32 {R(q+4)}, -1")
    for slot in (1, 2, 3):
        a(f"s_mov_b32 {S(sT0)}, {WS_MEMR + slot*8192}")
        a(f"buffer_store_dword {R(q+4)}, {R(vMS)}, {S(sWS,4)}, {S(sT0)} offen{sc}")
    a("s_waitcnt vmcnt(7)")
    a(f"v_min_u32 {R(m0reg)}, 0xfffffffe, {R(m0reg)}")
    a(f"s_mov_b32 {S(sT0)}, {WS_MEMR}")
    a(f"buffer_store_dword {R(m0reg)}, {R(vMS)}, {S(sWS,4)}, {S(sT0)} offen{sc}")


def chain_load_weights(a, cfg, hook=None):
    lane = O(0) + 6
    vA = [TQ, TQ + 1]; vO = [TQ + 2, TQ + 3]; vTR = [PQ, PQ + 1, PQ + 2, PQ + 3]; vTO = [KVQ, KVQ + 1, KVQ + 2, KVQ + 3]
    t0, t1, t2, t3 = O(5), O(5) + 1, O(5) + 2, O(5) + 3
    a(f"v_lshrrev_b32 {R(t0)}, 4, {R(lane)}")
    a(f"v_lshlrev_b32 {R(t1)}, 1, {R(t0)}")
    a(f"v_and_b32 {R(t2)}, 15, {R(lane)}")
    a(f"v_xor_b32 {R(t1)}, {R(t1)}, {R(t2)}")
    a(f"v_lshlrev_b32 {R(t1)}, 4, {R(t1)}")
    a(f"v_lshrrev_b32 {R(t2)}, 1, {R(t0)}")
    a(f"v_and_b32 {R(t3)}, 1, {R(t0)}")
    a(f"s_lshl_b32 {S(sT0)}, {S(sW)}, 17"); a(f"s_lshl_b32 {S(sT1)}, {S(sH)}, 8"); a(f"s_add_u32 {S(sT0)}, {S(sT0)}, {S(sT1)}")
    a(f"v_lshlrev_b32 {R(t0)}, 16, {R(t2)}"); a(f"v_lshl_add_u32 {R(t0)}, {R(t3)}, 13, {R(t0)}")
    a(f"v_add_u32 {R(t0)}, {S(sT0)}, {R(t0)}")
    a(f"v_add_u32 {R(vA[0])}, {R(t0)}, {R(t1)}"); a(f"v_xor_b32 {R(vA[1])}, 128, {R(vA[0])}")
    a(f"s_lshr_b32 {S(sT0)}, {S(sW)}, 1"); a(f"s_lshl_b32 {S(sT0)}, {S(sT0)}, 15")
    a(f"s_and_b32 {S(sT1)}, {S(sW)}, 1"); a(f"s_lshl_b32 {S(sT1)}, {S(sT1)}, 13"); a(f"s_add_u32 {S(sT0)}, {S(sT0)}, {S(sT1)}")
    a(f"s_lshl_b32 {S(sT1)}, {S(sH)}, 17"); a(f"s_add_u32 {S(sT0)}, {S(sT0)}, {S(sT1)}")
    a(f"v_lshlrev_b32 {R(t0)}, 14, {R(t2)}"); a(f"v_lshl_add_u32 {R(t0)}, {R(t3)}, 10, {R(t0)}")
    a(f"v_add_u32 {R(t0)}, {S(sT0)}, {R(t0)}")
    a(f"v_add_u32 {R(vO[0])}, {R(t0)}, {R(t1)}"); a(f"v_xor_b32 {R(vO[1])}, 128, {R(vO[0])}")
    a(f"v_lshrrev_b32 {R(t0)}, 4, {R(lane)}")
    a(f"v_bfe_u32 {R(t1)}, {R(lane)}, 2, 2")
    a(f"v_lshl_add_u32 {R(t2)}, {R(t0)}, 3, {R(t1)}"); a(f"v_lshlrev_b32 {R(t2)}, 8, {R(t2)}")
    a(f"v_and_b32 {R(t0)}, 1, {R(t0)}"); a(f"v_lshl_add_u32 {R(t0)}, {R(t0)}, 2, {R(t1)}")
    a(f"s_lshl_b32 {S(sT0)}, {S(sW)}, 1")
    a(f"v_xor_b32 {R(t0)}, {S(sT0)}, {R(t0)}")
    a(f"v_lshl_add_u32 {R(t2)}, {R(t0)}, 5, {R(t2)}")
    a(f"v_and_b32 {R(t1)}, 3, {R(lane)}"); a(f"v_lshl_add_u32 {R(t2)}, {R(t1)}, 3, {R(t2)}")
    a(f"v_add_u32 {R(vTR[0])}, {RING}, {R(t2)}"); a(f"v_xor_b32 {R(vTR[1])}, 32, {R(vTR[0])}")
    a(f"v_add_u32 {R(vTR[2])}, {3*16384}, {R(vTR[0])}"); a(f"v_add_u32 {R(vTR[3])}, {3*16384}, {R(vTR[1])}")
    a(f"v_bfe_u32 {R(t0)}, {R(lane)}, 4, 1")
    a(f"v_bfe_u32 {R(t1)}, {R(lane)}, 2, 1")
    a(f"v_lshl_add_u32 {R(t3)}, {R(t0)}, 1, {R(t1)}"); a(f"v_lshlrev_b32 {R(t3)}, 1, {R(t3)}")
    a(f"v_lshlrev_b32 {R(t2)}, 11, {R(t0)}"); a(f"v_lshl_add_u32 {R(t2)}, {R(t1)}, 9, {R(t2)}")
    a(f"v_lshrrev_b32 {R(t0)}, 5, {R(lane)}"); a(f"v_lshl_add_u32 {R(t2)}, {R(t0)}, 10, {R(t2)}")
    a(f"v_bfe_u32 {R(t0)}, {R(lane)}, 3, 1")
    a(f"v_add_u32 {R(t0)}, {S(sT0)}, {R(t0)}"); a(f"v_xor_b32 {R(t0)}, {R(t0)}, {R(t3)}")
    a(f"v_lshl_add_u32 {R(t2)}, {R(t0)}, 5, {R(t2)}")
    a(f"v_and_b32 {R(t1)}, 3, {R(lane)}"); a(f"v_lshl_add_u32 {R(t2)}, {R(t1)}, 3, {R(t2)}")
    a(f"v_add_u32 {R(vTO[0])}, {RING}, {R(t2)}"); a(f"v_xor_b32 {R(vTO[1])}, {32+256}, {R(vTO[0])}")
    a(f"v_add_u32 {R(vTO[2])}, {3*16384}, {R(vTO[0])}"); a(f"v_add_u32 {R(vTO[3])}, {3*16384}, {R(vTO[1])}")
    sAo = sStamp
    for t in range(4):
        a(f"s_add_u32 {S(sT0)}, {S(sH)}, {t}"); a(f"s_and_b32 {S(sT0)}, {S(sT0)}, 3"); a(f"s_lshl_b32 {S(sAo+t)}, {S(sT0)}, 8")
    sMb = sStamp + 4
    a(f"s_lshl_b32 {S(sMb)}, {S(sW)}, 12"); a(f"s_add_u32 {S(sMb)}, {S(sMb)}, {RING}")
    slabs = [(m, k) for m in 'qkv' for k in range(8)] + [('o', t, kc) for t in range(4) for kc in (0, 1)]
    srd = {'q': sA, 'k': sB, 'v': sC_, 'o': sD}

    def dma(n):
        sl = slabs[n]; slot = n % NSLOT
        for i in range(4):
            a(f"s_add_u32 m0, {S(sMb)}, {slot*16384 + i*1024}")
            if sl[0] == 'o':
                a(f"s_add_u32 {S(sT0)}, {S(sAo+sl[1])}, {sl[2]*65536 + (0, 4, 2, 6)[i]*1024}"); vo = vO[i >> 1]
            else:
                a(f"s_mov_b32 {S(sT0)}, {sl[1]*64*8192 + i*2*8192}"); vo = vA[i >> 1]
            a(f"buffer_load_dwordx4 {R(vo)}, {S(srd[sl[0]],4)}, {S(sT0)} offen lds")

    for n in range(NSLOT - 1): dma(n)
    done = a.newlabel('cw_done')
    labs = [a.newlabel(f'cw{w}') for w in range(4)]
    for w in range(1, 4):
        a(f"s_cmp_eq_u32 {S(sW)}, {w}"); a(f"s_cbranch_scc1 {labs[w]}")
    tmp = [O(4), O(5), O(6), O(0)]
    for w in range(4):
        a.label(labs[w])
        pend = []
        for n, sl in enumerate(slabs):
            ahead = min(len(slabs) - 1, n + NSLOT - 2) - n
            a(f"s_waitcnt vmcnt({4*ahead}) lgkmcnt(0)")
            a("s_barrier")
            if n + NSLOT - 1 < len(slabs): dma(n + NSLOT - 1)
            if n == 6 and w == 0 and hook: hook()
            for r, idx in pend:
                a(f"ds_write_b128 {R(vWL)}, {R(r,4)} offset:{idx*2048}")
                a(f"ds_write_b128 {R(vWL)}, {R(r+4,4)} offset:{idx*2048+1024}")
            pend = []
            slot = n % NSLOT
            for tp in (0, 1):
                if sl[0] == 'o': key = ('o', sl[1], 2 * sl[2] + tp)
                else: key = (sl[0], tp, sl[1] ^ (2 * w))
                if key in SIDX:
                    r = tmp[(2 * n + tp) % 4]; pend.append((r, SIDX[key]))
                else: r = REG[key]
                hi = 0 if slot < 3 else 2
                base = (slot if slot < 3 else slot - 3) * 16384
                for j in (0, 2, 4, 6):
                    if sl[0] == 'o':
                        a(f"ds_read_b64_tr_b16 {R(r+j,2)}, {R(vTO[hi + ((j>>1)&1)])} offset:{base + (32*tp + 16*(j>>2))*256}")
                    else:
                        a(f"ds_read_b64_tr_b16 {R(r+j,2)}, {R(vTR[hi + tp])} offset:{base + (32*(j>>2) + 4*((j>>1)&1))*256}")
        a("s_waitcnt lgkmcnt(0)")
        for r, idx in pend:
            a(f"ds_write_b128 {R(vWL)}, {R(r,4)} offset:{idx*2048}")
            a(f"ds_write_b128 {R(vWL)}, {R(r+4,4)} offset:{idx*2048+1024}")
        if w < 3: a(f"s_branch {done}")
    a.label(done)
    a("s_barrier")
    a(f"v_add_u32 {R(vT)}, 65536, {R(vWL)}")
    for i, r in enumerate(TREG):
        a(f"ds_write_b128 {R(vT)}, {R(r,4)} offset:{i*2048}")
        a(f"ds_write_b128 {R(vT)}, {R(r+4,4)} offset:{i*2048+1024}")
    a("s_waitcnt lgkmcnt(0)")


def kv_dma(a, which, sc):
    if which == 'k':
        a(f"s_mov_b32 m0, {S(sM0K)}"); so = S(sKV)
    else:
        a(f"s_mov_b32 m0, {S(sM0V)}"); a(f"s_add_u32 {S(sT0)}, {S(sKV)}, 8192"); so = S(sT0)
    a(f"buffer_load_dwordx4 {R(vL16)}, {S(sWS,4)}, {so} offen sc1 lds")
    a(f"buffer_load_dwordx4 {R(vL16)}, {S(sWS,4)}, {so} offen offset:1024 sc1 lds")


def chain_loop(a, cfg, sc, exit_label):
    diag = cfg.get('diag')
    def stamp(k):
        if diag: a(f"{'s_memrealtime' if cfg.get('rt') else 's_memtime'} {S(sStamp + 2*k, 2)}")
    NST = 10
    ds = Cnt(a, 'lgkmcnt', 15)
    def SM(acc, A, blk, mod=''): a(f"v_smfmac_f32_16x16x64_bf16 {R(acc,4)}, {R(A,4)}, {R(blk,8)}, {R(vIDX)}{mod}")
    def QKV(m, t, c): SM(ACC[m] + 4 * t, MCH(c), REG[(m, t, c)])
    def DM(d, A, B, c=None): a(f"v_mfma_f32_16x16x32_bf16 {R(d,4)}, {R(A,4)}, {R(B,4)}, {R(d,4) if c is None else c}")
    def rd128(dst, ad, off, tag): a(f"ds_read_b128 {R(dst,4)}, {R(ad)} offset:{off}"); ds.issue(tag)
    def stream(i):
        rd128(SREG[i], vWL, i * 2048, f'S{i}'); rd128(SREG[i] + 4, vWL, i * 2048 + 1024, f'S{i}')
    def z2(r): a(f"v_mov_b64 {R(r,2)}, 0")
    def zero(r, n):
        for i in range(0, n, 2): z2(r + i)
    def add(d, x, y): a(f"v_add_f32 {R(d)}, {R(x)}, {R(y)}")
    def mul(d, x, y): a(f"v_mul_f32 {R(d)}, {R(x)}, {R(y)}")
    def cvt(d, x, y): a(f"v_cvt_pk_bf16_f32 {R(d)}, {R(x)}, {R(y)}")
    def wr32(src, off, tag): a(f"ds_write_b32 {R(vQW)}, {R(src)} offset:{off}"); ds.issue(tag)
    def nops(n):
        for i in range(n): a("s_nop 3")
    L_top = a.newlabel('c_top'); L_p2 = a.newlabel('c_p2'); L_go2 = a.newlabel('c_go2')
    L_dump = a.newlabel('c_dump'); L_oth = a.newlabel('c_oth')

    def h2load():
        a(f"buffer_load_dwordx4 {R(MCH(0),4)}, {R(vL16)}, {S(sWS,4)}, {S(sMemRd)} offen sc1")
        a(f"buffer_load_dwordx4 {R(MCH(1),4)}, {R(vL16)}, {S(sWS,4)}, {S(sMemRd)} offen offset:1024 sc1")
    D2 = cfg.get('d2', 2)
    def ring_regs():
        a(f"s_add_u32 {S(sKV)}, {S(sKV)}, {32*16384}")
        a(f"s_add_u32 {S(sT0)}, {S(sSlot)}, 8192"); a(f"s_and_b32 {S(sT0)}, {S(sT0)}, 0x7fff"); a(f"s_add_u32 {S(sMemWr)}, {S(sT0)}, {WS_MEMR}")
        a(f"s_add_u32 {S(sT2)}, {S(sSlot)}, {3*8192}"); a(f"s_and_b32 {S(sT2)}, {S(sT2)}, 0x7fff"); a(f"s_add_u32 {S(sMemRst)}, {S(sT2)}, {WS_MEMR}")
        a(f"s_mov_b32 {S(sSlot)}, {S(sT0)}")
    def step_regs():
        for t in range(4): a(f"s_xor_b32 {S(sH1S+t)}, {S(sH1S+t)}, {512*KB}")
        a(f"s_xor_b32 {S(sH1L)}, {S(sH1L)}, {512*KB}")
        a(f"s_and_b32 {S(sT0)}, {S(sStep)}, 1"); a(f"s_xor_b32 {S(sTag)}, {S(sTag)}, {S(sT0)}")
        a(f"s_add_u32 {S(sStep)}, {S(sStep)}, 1")
        ring_regs()
    def kvq_fix():
        for i in range(4): a(f"v_min_u32 {R(KVQ+i)}, 0xfffffffe, {R(KVQ+i)}")
    def xors():
        a(f"v_xor_b32 {R(TQ+1)}, 2048, {R(vOWN)}"); a(f"v_xor_b32 {R(TQ+2)}, 4096, {R(vOWN)}"); a(f"v_xor_b32 {R(TQ+3)}, 6144, {R(vOWN)}")

    a(f"s_mov_b32 {S(sStep)}, 0"); a(f"s_mov_b32 {S(sSlot)}, 0"); a(f"s_mov_b32 {S(sTag)}, 1")
    a(f"s_lshl_b32 {S(sT0)}, {S(sW)}, 11"); a(f"s_add_u32 {S(sMemRd)}, {S(sT0)}, {WS_MEMR}")
    kv_dma(a, 'k', sc); kv_dma(a, 'v', sc)
    zero(O(4), 24); xors(); ring_regs()
    a(f"v_mov_b32 {R(vFLAG)}, {OOB:#x}"); a(f"s_sub_u32 {S(sKVM)}, {S(sKVM)}, {32*4096}")
    for k in range(D2): h2load()
    a.label(L_top)
    m = MCH(0)
    L_r2 = a.newlabel('c_r2')
    a(f"s_waitcnt vmcnt({2*(D2-1)}) lgkmcnt(0)")
    a.label(L_p2)
    a(f"v_max3_u32 {R(TQ)}, {R(m)}, {R(m+1)}, {R(m+2)}")
    a(f"v_max3_u32 {R(vT)}, {R(m+3)}, {R(m+4)}, {R(m+5)}")
    a(f"ds_write_b128 {R(vOWN)}, {R(MCH(0),4)}")
    a(f"v_max3_u32 {R(TQ)}, {R(TQ)}, {R(m+6)}, {R(m+7)}")
    a(f"ds_write_b128 {R(vOWN)}, {R(MCH(1),4)} offset:1024")
    a(f"v_max_u32 {R(TQ)}, {R(TQ)}, {R(vT)}")
    a(f"v_cmp_eq_u32 vcc, -1, {R(TQ)}")
    a(f"s_cbranch_vccnz {L_r2}")
    a.label(L_go2)
    QKV(*OWN[0]); stamp(0)
    a(f"v_mov_b32 {R(TQ)}, -1")
    QKV(*OWN[1])
    a(f"v_mov_b32 {R(PQ+2)}, 0")
    nb1 = cfg.get('nb1', 5)
    for b in OWN[2:nb1]: QKV(*b)
    a("s_waitcnt lgkmcnt(0)"); a("s_barrier")
    order = [(tau, kap) for kap in range(4) for tau in (0, 1)]
    kxreg = {tk: O(7) + 4 * i for i, tk in enumerate(order)}
    rds = [lambda c=c: rd128(MCH(c), TQ + (c >> 1), (c & 1) * 1024, f'M{c}') for c in range(2, 8)]
    rds += [lambda tk=tk: rd128(kxreg[tk], vL16, KXB + (tk[0] * 4 + tk[1]) * 1024, 'KX') for tk in order]
    rds.pop(0)(); rds.pop(0)()
    for i, b in enumerate(OWN[nb1:12]):
        QKV(*b)
        if i < 2: rds.pop(0)(); rds.pop(0)()
        elif nb1 + i >= 10: rds.pop(0)()
    seq = [(t, c) for c in range(2, 6) for t in (0, 1)] + [(0, 6), (0, 7), (1, 6), (1, 7)]
    qa = ACC['q']; ka = ACC['k']; va = ACC['v']
    seen = set()
    for i, (t, c) in enumerate(seq):
        if c not in seen: ds.wait(f'M{c}'); seen.add(c)
        QKV('q', t, c)
        if rds: rds.pop(0)()
        if i == 6:
            a("s_waitcnt vmcnt(0)")
            a(f"buffer_store_dword {R(TQ)}, {R(vMS)}, {S(sWS,4)}, {S(sMemRst)} offen{sc}")
        if i == 7 and not cfg.get('nokvq'):
            a(f"buffer_store_dwordx4 {R(KVQ,4)}, {R(vFLAG)}, {S(sWS,4)}, {S(sKVM)} offen sc1")
            a(f"s_add_u32 {S(sKVM)}, {S(sKVM)}, {32*4096}")
        if i == 8:
            a(f"s_mul_i32 {S(sT0)}, {S(sW)}, 6144"); a(f"s_add_u32 {S(sT0)}, {S(sT0)}, {S(sKV)}")
        if i == 9:
            a(f"s_add_u32 {S(sT0)}, {S(sT0)}, {32*16384 - 16384}"); a(f"s_cmp_lt_u32 {S(sW)}, 2")
        if i == 10 and not cfg.get('nodma'):
            Ls = a.newlabel('c_nt')
            a(f"s_cbranch_scc1 {Ls}")
            a(f"buffer_load_dword {R(vDUMMY)}, {R(vTCH)}, {S(sWS,4)}, {S(sT0)} offen sc1")
            a(f"buffer_load_dword {R(vFLAG)}, {R(vL16)}, {S(sWS,4)}, {S(sF1)} offen sc1")
            a.label(Ls)
    stamp(1)
    add(qa, qa, qa + 2)
    qf = [O(11), O(11) + 4, O(0), O(0) + 4]
    def bq():
        ds.drain(); a("s_barrier")
    side = [lambda: add(qa + 1, qa + 1, qa + 3), lambda: add(qa + 4, qa + 4, qa + 6), lambda: cvt(qa + 2, qa, qa + 4),
            lambda: (wr32(qa + 2, 0, 'QW'), add(qa + 5, qa + 5, qa + 7)), lambda: cvt(qa + 3, qa + 1, qa + 5),
            lambda: wr32(qa + 3, RS, 'QW'), None, None, None, None, bq,
            lambda: (rd128(qf[0], vQR, 0, 'QF0'), rd128(qf[1], vQR, 64, 'QF1'), add(ka, ka, ka + 2))]
    for i, (t, c) in enumerate(seq):
        QKV('k', t, c)
        if side[i]: side[i]()
    stamp(2)
    vl = [('v', t, c) for t, c in seq]
    sx = O(4); X = O(5) + 4; sm = O(5); mx, tt, mc, mc1 = TQ, TQ + 1, TQ + 2, TQ + 3
    lacc = O(1); oa = O(2)
    kf = [O(7), O(7) + 4, O(8), O(8) + 4]
    pvb = [O(9), O(10)]
    QKV(*vl[0]); rd128(qf[2], vQR, 128, 'QF2'); rd128(qf[3], vQR, 192, 'QF3'); add(ka + 1, ka + 1, ka + 3)
    QKV(*vl[1]); add(ka + 4, ka + 4, ka + 6); cvt(KVQ, ka, ka + 4); wr32(KVQ, KBUF - QB, 'KW')
    add(ka + 5, ka + 5, ka + 7); cvt(KVQ + 1, ka + 1, ka + 5); wr32(KVQ + 1, KBUF - QB + RS, 'KW')
    def SX(i):
        tau, kap = order[i]
        if tau == 0: ds.wait(f'QF{kap}')
        DM(sx + 4 * tau, kxreg[(tau, kap)], qf[kap], '0' if kap == 0 else None)
    for i in range(4): SX(i)
    ds.drain(); a("s_barrier")
    SX(4); rd128(kf[0], vKR, 0, 'KF0'); rd128(kf[1], vKR, 64, 'KF1')
    SX(5); rd128(kf[2], vKR, 128, 'KF2'); rd128(kf[3], vKR, 192, 'KF3')
    SX(6); SX(7)
    def vx(t, hh): a(f"ds_read_b64 {R(pvb[t]+2+4*hh,2)}, {R(vOWN)} offset:{8192 + t*1024 + hh*8}"); ds.issue('VX')
    nv = cfg.get('nv', 4)
    sel = [f"v_cndmask_b32 {R(X+i)}, {R(sx+i)}, {R(sx+4+i)}, {S(sPm,2)}" for i in range(4)]
    pre = [f"v_max3_f32 {R(mx)}, {R(sx)}, {R(sx+1)}, {R(sx+2)}", f"v_max3_f32 {R(tt)}, {R(sx+4)}, {R(sx+5)}, {R(sx+6)}",
           f"v_max3_f32 {R(mx)}, {R(mx)}, {R(sx+3)}, {R(sx+7)}", f"v_max_f32 {R(mx)}, {R(mx)}, {R(tt)}",
           f"v_mov_b32 {R(tt)}, {R(mx)}", sel[0], sel[1], f"v_permlane32_swap_b32 {R(mx)}, {R(tt)}", sel[2], sel[3],
           f"v_mov_b64 {R(lacc,2)}, 0", f"v_mov_b64 {R(lacc+2,2)}, 0"]
    nonv = [lambda: (vx(0, 0), vx(0, 1)), lambda: (vx(1, 0), vx(1, 1))]
    if not cfg.get('nodma'): nonv.append(lambda: kv_dma(a, 'k', sc))
    for i in range(2, nv):
        QKV(*vl[i])
        if nonv: nonv.pop(0)()
        a(pre.pop(0))
    stamp(3)
    for kap in range(4):
        ds.wait(f'KF{kap}')
        DM(sm, kf[kap], qf[kap], '0' if kap == 0 else None)
        for k in range(2):
            if pre: a(pre.pop(0))
    rest = vl[nv:]
    nonv += [lambda: stream(0), lambda: stream(1), lambda: stream(2), lambda: stream(3)]
    if not cfg.get('nodma'): nonv.append(lambda: (ds.wait('VX'), kv_dma(a, 'v', sc)))
    def V():
        if rest: QKV(*rest.pop(0))
        if nonv: nonv.pop(0)()
    V()
    if pre: a(pre.pop(0))
    V()
    for x in pre: a(x)
    a(f"v_max3_f32 {R(mx)}, {R(mx)}, {R(tt)}, {R(sm+3)}")
    a(f"v_max3_f32 {R(tt)}, {R(sm)}, {R(sm+1)}, {R(sm+2)}")
    a(f"v_max_f32 {R(mx)}, {R(mx)}, {R(tt)}")
    a(f"v_mov_b32 {R(tt)}, {R(mx)}")
    V()
    a(f"v_permlane16_swap_b32 {R(mx)}, {R(tt)}")
    V()
    a(f"v_max_f32 {R(mx)}, {R(mx)}, {R(tt)}")
    V()
    a(f"v_mul_f32 {R(mc)}, {S(sCc)}, {R(mx)}")
    V()
    a(f"v_fma_f32 {R(mc1)}, {R(mx)}, {S(sCc)}, 1.0")
    V()
    a(f"v_fma_f32 {R(X)}, {R(X)}, {S(sCc)}, -{R(mc)}")
    V()
    assert not rest
    while nonv: nonv.pop(0)()
    for r in (X + 1, X + 2, X + 3): a(f"v_fma_f32 {R(r)}, {R(r)}, {S(sCc)}, -{R(mc)}")
    for r in (sm, sm + 1): a(f"v_fma_f32 {R(r)}, {R(r)}, {S(sCc)}, -{R(mc1)}")
    for r in (X, X + 1, X + 2, X + 3, sm, sm + 1): a(f"v_exp_f32 {R(r)}, {R(r)}")
    add(va, va, va + 2)
    cvt(PQ + 1, X, X + 1); cvt(PQ + 3, X + 2, X + 3); cvt(PQ, sm, sm + 1)
    add(va + 1, va + 1, va + 3); cvt(pvb[0], va, va + 1)
    SM(lacc, PQ, ONES, ' abid:1')
    stamp(4); ds.wait('VX')
    oa = O(4)
    a(f"v_permlane16_swap_b32 {R(pvb[0])}, {R(pvb[0]+4)}")
    z2(oa); z2(oa + 2)
    add(va + 4, va + 4, va + 6); add(va + 5, va + 5, va + 7)
    SM(oa, PQ, pvb[0], ' abid:1')
    stream(4)
    cvt(pvb[1], va + 4, va + 5)
    z2(oa + 4); z2(oa + 6)
    a(f"v_permlane16_swap_b32 {R(pvb[1])}, {R(pvb[1]+4)}")
    add(lacc, lacc, lacc + 2); add(lacc + 1, lacc + 1, lacc + 3)
    SM(oa + 4, PQ, pvb[1], ' abid:1')
    a(f"v_rcp_f32 {R(lacc)}, {R(lacc)}"); a(f"v_rcp_f32 {R(lacc+1)}, {R(lacc+1)}")
    add(oa, oa, oa + 2); add(oa + 1, oa + 1, oa + 3)
    mul(oa, oa, lacc); mul(oa + 1, oa + 1, lacc + 1)
    add(oa + 4, oa + 4, oa + 6); mul(oa + 4, oa + 4, lacc)
    cvt(oa + 2, oa, oa + 4); wr32(oa + 2, OB - QB, 'OW')
    add(oa + 5, oa + 5, oa + 7); mul(oa + 5, oa + 5, lacc + 1)
    cvt(oa + 3, oa + 1, oa + 5); wr32(oa + 3, OB - QB + RS, 'OW')
    cvt(KVQ + 2, va, va + 1); cvt(KVQ + 3, va + 4, va + 5)
    oacc = [O(5), O(5) + 4, O(1), O(1) + 4]
    zero(O(5), 8)
    L_last = a.newlabel('c_last')
    a(f"s_cmp_eq_u32 {S(sStep)}, {cfg.get('nsteps', 64) - 1}"); a(f"s_cbranch_scc1 {L_last}")
    of = [PQ, TQ, O(6), O(6) + 4]
    tre = []
    for i, r in enumerate(TREG):
        tre += [f"ds_read_b128 {R(r,4)}, {R(vT)} offset:{i*2048}", f"ds_read_b128 {R(r+4,4)}, {R(vT)} offset:{i*2048+1024}"]
    LR = [O(4), O(7), O(8)]; L3 = [O(0), O(11), O(10)]
    def h1load(t, r):
        so = S(sH1L) if t < 2 else S(sT1)
        for u in range(2):
            a(f"buffer_load_dwordx4 {R(r+4*u,4)}, {R(vL16)}, {S(sWS,4)}, {so} offen offset:{(t&1)*2048 + u*1024} sc1")

    def wo_phase(red):
        ds.drain(); a("s_barrier")
        for kap in range(4): rd128(of[kap], vQR, OB - QB + 64 * kap, f'OF{kap}')
        stream(5); stream(6); stream(7)
        zero(O(1), 8)
        a(f"s_lshl_b32 {S(sT0)}, {S(sW)}, 11"); a(f"s_add_u32 {S(sMemRd)}, {S(sT0)}, {S(sMemWr)}")
        a(f"s_add_u32 {S(sT1)}, {S(sH1L)}, 4096")
        stamp(5)
        def outpost(t):
            d = oacc[t]
            return [f"v_cvt_pk_bf16_f32 {R(d)}, {R(d)}, {R(d+1)}", f"v_cvt_pk_bf16_f32 {R(d+1)}, {R(d+2)}, {R(d+3)}",
                    f"v_and_or_b32 {R(d)}, {R(d)}, -2, {S(sTag)}",
                    f"buffer_store_dwordx2 {R(d,2)}, {R(vH1S)}, {S(sWS,4)}, {S(sH1S+t)} offen{sc}"]
        pend = []; st = None
        for i, (t, kap) in enumerate(WOORD):
            key = ('o', t, kap)
            if t == 0: ds.wait(f'OF{kap}')
            if key in SIDX: ds.wait(f'S{SIDX[key]}')
            SM(oacc[t], of[kap], REG[key])
            if st: a(st); st = None
            if pend and kap >= 1: a(pend[kap - 1])
            if kap == 3:
                if pend: st = pend[3]
                pend = outpost(t)
        a(st)
        a(f"v_add_u32 {R(vT)}, 65536, {R(vWL)}")
        a(f"s_cmp_lg_u32 {S(sW)}, 0")
        for x in pend: a(x)
        stamp(6)
    wo_phase(True)
    a(f"s_cbranch_scc1 {L_oth}")
    SEL = PQ; y = TQ; y2 = O(5); ck = O(6)
    D1 = cfg.get('d1', 2)
    for r in range(4): a(f"v_cndmask_b32 {R(SEL+r)}, 0, {R(vSELV)}, {S(sSel+2*r,2)}")
    kvq_fix(); a(f"v_mov_b32 {R(vFLAG)}, {R(vL16)}")
    nops(cfg.get('h1a', 2))
    for t in range(3): h1load(t, LR[t])
    nops(cfg.get('h1d', 4))
    for k in range(D1):
        h1load(3, L3[k])
        if k < D1 - 1: nops(cfg.get('h1p', 4))
    def half(r, d, c, n, ckr):
        a(f"s_waitcnt vmcnt({n})")
        DM(d, SEL, r, c)
        a(f"v_bitop3_b32 {R(ckr)}, {R(r)}, {R(r+2)}, {S(sTag)} bitop3:0x7e")
    L_f0 = a.newlabel('c_f0'); L_pub = a.newlabel('c_pub'); L_slow = a.newlabel('c_slow')
    L_k = [a.newlabel(f'c_k{k}') for k in range(D1)]; L_kf = [a.newlabel(f'c_kf{k}') for k in range(D1)]
    def early(w):
        half(LR[0], y, '0', w[0], ck); half(LR[0] + 4, y, None, w[1], ck + 1)
        half(LR[1], y, None, w[2], ck + 2); a(f"v_or3_b32 {R(ck)}, {R(ck)}, {R(ck+1)}, {R(ck+2)}")
        half(LR[1] + 4, y, None, w[3], ck + 1)
        half(LR[2], y, None, w[4], ck + 2); a(f"v_or3_b32 {R(ck)}, {R(ck)}, {R(ck+1)}, {R(ck+2)}")
        half(LR[2] + 4, y, None, w[5], ck + 1); a(f"v_or_b32 {R(ck)}, {R(ck)}, {R(ck+1)}")
    def publish():
        cvt(y2, y2, y2 + 1)
        a(f"v_min_u32 {R(ck+4)}, 0xfffffffe, {R(y2)}")
        a(f"buffer_store_dword {R(ck+4)}, {R(vMS)}, {S(sWS,4)}, {S(sMemWr)} offen{sc}")
    def attempt(k):
        a.label(L_k[k])
        half(L3[k], y2, R(y, 4), 2 * D1 - 1, ck + 1); a(f"v_or_b32 {R(ck+1)}, {R(ck)}, {R(ck+1)}")
        half(L3[k] + 4, y2, None, 2 * D1 - 2, ck + 2)
        a(f"v_bitop3_b32 {R(ck+1)}, {R(ck+1)}, {R(ck+2)}, 1 bitop3:0xa8")
        a(f"v_cmp_ne_u32 vcc, 0, {R(ck+1)}")
        a(f"s_cbranch_vccnz {L_kf[k]}")
        publish()
    n = 2 * D1
    early([n + 5, n + 4, n + 3, n + 2, n + 1, n])
    stamp(7)
    attempt(0)
    a.label(L_pub)
    stamp(8)
    a("s_barrier")
    tA = [x for i, x in enumerate(tre) if TREG[i // 2] not in L3]; tB = [x for i, x in enumerate(tre) if TREG[i // 2] in L3]
    for x in tA[:cfg.get('h2t', 12)]: a(x)
    zero(O(4), 24); xors()
    nops(cfg.get('h2a', 0))
    h2load()
    for x in tA[cfg.get('h2t', 12):]: a(x)
    a(f"s_waitcnt vmcnt(3)")
    for x in tB: a(x)
    step_regs()
    nops(cfg.get('h2c', 0))
    if D2 > 1: h2load()
    if diag:
        a(f"s_cmp_eq_u32 {S(sStep)}, {diag+1}"); a(f"s_cbranch_scc1 {L_dump}")
    a(f"s_branch {L_top}")
    a.label(L_last)
    kvq_fix()
    a(f"buffer_store_dwordx4 {R(KVQ,4)}, {R(vL16)}, {S(sWS,4)}, {S(sKVM)} offen sc1")
    a(f"s_branch {exit_label}")
    for k in range(D1):
        a.label(L_kf[k])
        a(f"v_and_b32 {R(ck+1)}, 1, {R(ck)}"); a(f"v_cmp_ne_u32 vcc, 0, {R(ck+1)}"); a(f"s_cbranch_vccnz {L_f0}")
        h1load(3, L3[k])
        if diag: a(f"s_add_u32 {S(sR1)}, {S(sR1)}, 1")
        if k < D1 - 1:
            attempt(k + 1)
            a(f"s_branch {L_pub}")
        else:
            a(f"s_add_u32 {S(sCnt)}, {S(sCnt)}, 1"); a(f"s_cmp_lt_u32 {S(sCnt)}, {LIM}")
            a(f"s_cbranch_scc1 {L_k[0]}")
            a.label(L_slow)
            publish()
            a(f"s_branch {L_pub}")
    a.label(L_f0)
    for t in range(3): h1load(t, LR[t])
    for k in range(D1): h1load(3, L3[k])
    if diag: a(f"s_add_u32 {S(sR1)}, {S(sR1)}, 65536")
    a(f"s_add_u32 {S(sCnt)}, {S(sCnt)}, 1"); a(f"s_cmp_ge_u32 {S(sCnt)}, {LIM}")
    a(f"s_cbranch_scc1 {L_slow}")
    early([n + 5, n + 4, n + 3, n + 2, n + 1, n])
    a(f"s_branch {L_k[0]}")
    a.label(L_oth)
    for x in tre: a(x)
    zero(O(4), 24); xors(); step_regs(); kvq_fix()
    if not cfg.get('nodma') and not cfg.get('noflag'):
        Lc = a.newlabel('c_fc'); Lo = a.newlabel('c_fo')
        a(f"s_cmp_lt_u32 {S(sW)}, 2"); a(f"s_cbranch_scc1 {Lo}")
        a(f"s_lshr_b32 {S(sThr)}, {S(sStep)}, 1"); a(f"s_add_u32 {S(sThr)}, {S(sThr)}, 2"); a(f"s_min_u32 {S(sThr)}, {S(sThr)}, 32")
        a(f"s_bitcmp1_b32 {S(sStep)}, 0"); a(f"s_cselect_b32 {S(sT2)}, 0xf00, 0xf"); a(f"s_mov_b32 {S(sT3)}, 0")
        a("s_waitcnt vmcnt(4)")
        a.label(Lc)
        a(f"v_cmp_gt_u32 vcc, {S(sThr)}, {R(vFLAG)}"); a(f"s_and_b64 vcc, vcc, {S(sT2,2)}")
        a(f"s_cbranch_scc0 {Lo}")
        a(f"buffer_load_dword {R(vFLAG)}, {R(vL16)}, {S(sWS,4)}, {S(sF1)} offen sc1")
        a(f"s_add_u32 {S(sCnt)}, {S(sCnt)}, 1"); a(f"s_cmp_lt_u32 {S(sCnt)}, {LIM}")
        a("s_waitcnt vmcnt(0)")
        a(f"s_cbranch_scc1 {Lc}")
        a.label(Lo)
    a(f"v_mov_b32 {R(vFLAG)}, {R(vL16)}")
    a("s_barrier")
    nops(cfg.get('h2b', 7))
    for k in range(D2):
        h2load()
        if k < D2 - 1: nops(cfg.get('h2p', 7))
    a(f"s_branch {L_top}")
    a.label(L_r2)
    a("s_mov_b64 exec, vcc")
    h2load()
    a("s_mov_b64 exec, -1")
    if diag: a(f"s_add_u32 {S(sR2)}, {S(sR2)}, 1")
    a(f"s_add_u32 {S(sCnt)}, {S(sCnt)}, 1"); a(f"s_cmp_lt_u32 {S(sCnt)}, {LIM}")
    a(f"s_waitcnt vmcnt({cfg.get('d2r', 6)})")
    a(f"s_cbranch_scc1 {L_p2}")
    a(f"s_branch {L_go2}")
    if diag:
        a.label(L_dump)
        a("s_waitcnt lgkmcnt(0)")
        a(f"s_lshl_b32 {S(sT0)}, {S(sH)}, 2"); a(f"s_add_u32 {S(sT0)}, {S(sT0)}, {S(sW)}"); a(f"s_lshl_b32 {S(sT0)}, {S(sT0)}, 8")
        a(f"s_add_u32 {S(sT0)}, {S(sT0)}, {WS_DBG}")
        a(f"v_mov_b32 {R(PQ+1)}, 0")
        for k in range(9):
            a(f"v_mov_b32 {R(PQ)}, {S(sStamp+2*k)}")
            a(f"buffer_store_dword {R(PQ)}, {R(PQ+1)}, {S(sWS,4)}, {S(sT0)} offen offset:{4*k}")
        a("s_waitcnt vmcnt(0)")
        a(f"s_branch {L_top}")
```

```python
from asmlib import *
import math, struct

MB = 1 << 20
KB = 1 << 10
WS_XN = 0
WS_GATE = 2 * MB
WS_H = 4 * MB
HBLK = 86 * 1024
WS_PART = 10 * MB
WS_MEMR = 11 * MB
WS_FLAG = 11 * MB + 64 * KB
WS_DBG = 11 * MB + 512 * KB
WS_KVM = 12 * MB
WS_Q = 32 * MB
WS_KV = 48 * MB
WS_P3 = 96 * MB
WS_SIZE = 256 * MB
F_LN = 0
F_RDY = 2048
F_T2 = 4096
F_T3 = 4608
F_T1 = 8192

OOB = 0x80000000
LIM = 1 << 19

sWS = 4
sDBG = 8
sA = 12
sB = 16
sC_ = 20
sD = 24
sE = 28
sW = 32
sH = 33
sG = 34
sCnt = 35
sT0 = 36
sT1 = 37
sT2 = 38
sT3 = 39

ARG = dict(x=0, mem0=8, Wq=16, Wk=24, Wv=32, Wo=40, seg=48, bx=56, wg=64, wu=72, wd=80, out=88, dbg=96, ws=104)
NBYTES = dict(x=2048 * 512 * 2, mem0=8 * 512 * 2, Wq=4 * MB, Wk=4 * MB, Wv=4 * MB, Wo=4 * MB,
              wg=512 * 1376 * 2, wu=512 * 1376 * 2, wd=512 * 1376 * 2, out=2048 * 512 * 2, dbg=256, ws=WS_SIZE)

def f2u(x): return struct.unpack('<I', struct.pack('<f', x))[0]

def srd_load(a, pairs):
    for s, n in pairs:
        a(f"s_load_dwordx2 {S(s,2)}, s[0:1], {ARG[n]}")
    a("s_waitcnt lgkmcnt(0)")
    for s, n in pairs:
        a(f"s_mov_b32 {S(s+2)}, {NBYTES[n]:#x}")
        a(f"s_mov_b32 {S(s+3)}, 0x20000")

def wait_all_tickets(a, v0, v1):
    L = a.newlabel('wt'); Ld = a.newlabel('wtd')
    a(f"v_mbcnt_lo_u32_b32 {R(v1)}, -1, 0"); a(f"v_mbcnt_hi_u32_b32 {R(v1)}, -1, {R(v1)}")
    a(f"v_lshlrev_b32 {R(v1)}, 5, {R(v1)}")
    a.label(L)
    a(f"buffer_load_dword {R(v0)}, {R(v1)}, {S(sDBG,4)}, 0 offen sc1")
    a("s_waitcnt vmcnt(0)")
    a(f"v_readlane_b32 {S(sT0)}, {R(v0)}, 0")
    for i in range(1, 8):
        a(f"v_readlane_b32 {S(sT1)}, {R(v0)}, {i}"); a(f"s_add_u32 {S(sT0)}, {S(sT0)}, {S(sT1)}")
    a(f"s_cmp_ge_u32 {S(sT0)}, 256"); a(f"s_cbranch_scc1 {Ld}")
    a("s_sleep 2")
    a(f"s_add_u32 {S(sCnt)}, {S(sCnt)}, 1"); a(f"s_cmp_lt_u32 {S(sCnt)}, {LIM}"); a(f"s_cbranch_scc1 {L}")
    a.label(Ld)

def wait_flags(a, vdst, voff, soff, thr, width=1, nload=1, sleep=2):
    L = a.newlabel('wf'); Ld = a.newlabel('wfd')
    a.label(L)
    sfx = {1: 'dword', 2: 'dwordx2', 4: 'dwordx4'}[width]
    for i in range(nload):
        a(f"buffer_load_{sfx} {R(vdst+i*width,width)}, {R(voff)}, {S(sWS,4)}, {soff} offen offset:{i*64*4*width} sc1")
    a("s_waitcnt vmcnt(0)")
    n = width * nload
    for i in range(1, n): a(f"v_min_u32 {R(vdst)}, {R(vdst)}, {R(vdst+i)}")
    a(f"v_cmp_gt_u32 vcc, {thr}, {R(vdst)}")
    a(f"s_cbranch_vccz {Ld}")
    if sleep: a(f"s_sleep {sleep}")
    a(f"s_add_u32 {S(sCnt)}, {S(sCnt)}, 1"); a(f"s_cmp_lt_u32 {S(sCnt)}, {LIM}"); a(f"s_cbranch_scc1 {L}")
    a.label(Ld)

def post_flag(a, vtmp, vone, soff, val):
    a(f"v_mov_b32 {R(vtmp)}, {val}")
    a(f"buffer_store_dword {R(vtmp)}, {R(vone)}, {S(sWS,4)}, {soff} offen sc1")

def make_vone(a, v, lane):
    a(f"v_cmp_eq_u32 vcc, 0, {R(lane)}"); a(f"v_mov_b32 {R(v)}, {OOB:#x}")
    a(f"v_cndmask_b32 {R(v)}, {R(v)}, 0, vcc")

def slab_loader(a, nslab, nslot, ring, sMb, dma_src, reads, first_hook=None):
    a(f"s_lshl_b32 {S(sMb)}, {S(sW)}, 12"); a(f"s_add_u32 {S(sMb)}, {S(sMb)}, {ring}")
    def dma(n):
        for i in range(4):
            vo, srd, ins = dma_src(n, i)
            a(f"s_add_u32 m0, {S(sMb)}, {(n % nslot)*16384 + i*1024}")
            a(ins)
            a(f"buffer_load_dwordx4 {R(vo)}, {S(srd,4)}, {S(sT0)} offen lds")
    for n in range(min(nslot - 1, nslab)): dma(n)
    for n in range(nslab):
        ahead = min(nslab - 1, n + nslot - 2) - n
        a(f"s_waitcnt vmcnt({4*ahead}) lgkmcnt(0)")
        a("s_barrier")
        if n + nslot - 1 < nslab: dma(n + nslot - 1)
        reads(n, (n % nslot) * 16384)
    a("s_waitcnt lgkmcnt(0)")
    a("s_barrier")
```

```python
from common import *
from workers import *

GS = 8448
JS = 4 * GS
RSX = 288
L_Q, L_K, L_V, L_KM, L_VM = 0, 8192, 16384, 24576, 28672

def p3_setup(a, cfg):
    srd_load(a, [(sA, 'x'), (sB, 'Wo'), (sC_, 'out')])
    base_setup(a)
    layernorm(a, cfg)
    a(f"v_readlane_b32 {S(sX7)}, {R(vC3)}, {S(sG)}")
    sKvm, sRd = sX1, sX2
    a(f"s_sub_u32 {S(sT2)}, {S(sG)}, 4")
    a(f"s_lshl_b32 {S(sT0)}, {S(sT2)}, 5"); a(f"s_add_u32 {S(sT0)}, {S(sT0)}, {S(sH)}"); a(f"s_lshl_b32 {S(sT0)}, {S(sT0)}, 12")
    a(f"s_lshl_b32 {S(sT1)}, {S(sW)}, 10"); a(f"s_add_u32 {S(sT0)}, {S(sT0)}, {S(sT1)}"); a(f"s_add_u32 {S(sKvm)}, {S(sT0)}, {WS_KVM}")
    a(f"s_lshl_b32 {S(sT0)}, {S(sH)}, 2"); a(f"s_add_u32 {S(sT0)}, {S(sT0)}, {S(sW)}"); a(f"s_mul_i32 {S(sT0)}, {S(sT0)}, {GS}")
    a(f"s_lshl_b32 {S(sT1)}, {S(sT2)}, 22"); a(f"s_add_u32 {S(sT0)}, {S(sT0)}, {S(sT1)}"); a(f"s_add_u32 {S(sRd)}, {S(sT0)}, {WS_P3}")
    for i in range(4): a(f"v_mov_b32 {R(32+i)}, -1"); a(f"v_mov_b32 {R(36+i)}, 0")
    for i in range(16):
        a(f"s_add_u32 {S(sT0)}, {S(sKvm)}, {i*4*32*4096}")
        a(f"buffer_store_dwordx4 {R(32,4)}, {R(vL16)}, {S(sWS,4)}, {S(sT0)} offen sc1")
    for sg in (0, 1):
        for hf in (0, 1):
            a(f"s_add_u32 {S(sT0)}, {S(sRd)}, {sg*2*MB + hf*4096}")
            for q in range(4): a(f"buffer_store_dwordx4 {R(36,4)}, {R(vL16)}, {S(sWS,4)}, {S(sT0)} offen offset:{q*1024} sc1")
    a("s_waitcnt vmcnt(0)"); a("s_barrier")
    a(f"s_lshl_b32 {S(sT0)}, {S(sG)}, 5"); a(f"s_add_u32 {S(sT0)}, {S(sT0)}, {S(sH)}"); a(f"s_lshl_b32 {S(sT0)}, {S(sT0)}, 2")
    a(f"s_add_u32 {S(sT0)}, {S(sT0)}, {WS_FLAG + F_RDY}")
    post_flag(a, vC0, vOne, S(sT0), 1)
    t0, t1, t2 = vC0, vC1, vC2
    a(f"v_lshrrev_b32 {R(t0)}, 4, {R(vLane)}")
    a(f"v_lshlrev_b32 {R(t1)}, 1, {R(t0)}"); a(f"v_and_b32 {R(t2)}, 15, {R(vLane)}"); a(f"v_xor_b32 {R(t1)}, {R(t1)}, {R(t2)}")
    a(f"s_lshl_b32 {S(sT0)}, {S(sW)}, 14"); a(f"s_lshl_b32 {S(sT1)}, {S(sH)}, 17"); a(f"s_add_u32 {S(sT0)}, {S(sT0)}, {S(sT1)}")
    a(f"v_lshlrev_b32 {R(t0)}, 10, {R(t0)}"); a(f"v_lshl_add_u32 {R(t0)}, {R(t1)}, 4, {R(t0)}")
    a(f"v_add_u32 {R(vA0)}, {S(sT0)}, {R(t0)}"); a(f"v_xor_b32 {R(vA1)}, 128, {R(vA0)}")
    a(f"v_lshrrev_b32 {R(t0)}, 2, {R(vLane)}")
    a(f"v_and_b32 {R(t1)}, 7, {R(t0)}")
    a(f"v_bfe_u32 {R(t2)}, {R(vLane)}, 1, 1")
    a(f"s_and_b32 {S(sT0)}, {S(sW)}, 2"); a(f"s_lshl_b32 {S(sT0)}, {S(sT0)}, 1")
    a(f"v_add_u32 {R(t2)}, {S(sT0)}, {R(t2)}"); a(f"v_xor_b32 {R(t1)}, {R(t1)}, {R(t2)}")
    a(f"v_lshlrev_b32 {R(t0)}, 8, {R(t0)}"); a(f"v_lshl_add_u32 {R(t0)}, {R(t1)}, 5, {R(t0)}")
    a(f"v_and_b32 {R(t1)}, 1, {R(vLane)}"); a(f"v_lshl_add_u32 {R(vB0)}, {R(t1)}, 4, {R(t0)}")
    a(f"v_xor_b32 {R(vB1)}, 64, {R(vB0)}")
    a(f"v_add_u32 {R(vB2)}, 65536, {R(vB0)}"); a(f"v_add_u32 {R(vB3)}, 65536, {R(vB1)}")
    slabs = [(kc, aa) for aa in range(4) for kc in (0, 1)]
    def src(n, i):
        kc, aa = slabs[n]
        return (vA0 if (i & 1) == 0 else vA1), sB, f"s_mov_b32 {S(sT0)}, {(64*kc + 4*i)*1024 + aa*256}"
    def reads(n, base):
        kc, aa = slabs[n]
        for nup in range(4):
            ad = [vB0, vB1, vB2, vB3][(nup >> 1) + (2 if base >= 65536 else 0)]
            for kb in (0, 1):
                d = 256 + 16 * (4 * aa + nup) + 4 * (2 * kc + kb)
                for u in (0, 1):
                    a(f"ds_read_b64_tr_b16 {R(d+2*u,2)}, {R(ad)} offset:{(base & 65535) + (32*kb + 16*u)*256 + 8*(nup & 1)}")
    slab_loader(a, 8, 8, 0, sMb, src, reads)


vQa, vKa, vKW, vKM, vVMw, vPS, vXO, vF1, vVMr = vA0, vA1, vA2, vA3, vB0, vB1, vB2, vB3, vC4
SEL, CM, QF, KF, VF, SX, SMr, PX, PM, KMF, VM, OD, OF, AC, LD, XG = 16, 20, 28, 44, 76, 108, 116, 120, 124, 128, 144, 152, 184, 200, 216, 248

def p3_consts(a, cfg):
    g, c, t0, t1 = 32, 33, 34, 35
    a(f"v_lshrrev_b32 {R(g)}, 4, {R(vLane)}"); a(f"v_and_b32 {R(c)}, 15, {R(vLane)}")
    a(f"s_and_b32 {S(sT2)}, {S(sW)}, 1")
    a(f"s_lshl_b32 {S(sT0)}, {S(sT2)}, 12"); a(f"v_add_u32 {R(vQa)}, {S(sT0)}, {R(vL16)}")
    a(f"v_lshrrev_b32 {R(t0)}, 2, {R(c)}"); a(f"v_and_b32 {R(t1)}, 1, {R(c)}"); a(f"v_lshl_add_u32 {R(t0)}, {R(t0)}, 1, {R(t1)}")
    a(f"v_bfe_u32 {R(t1)}, {R(c)}, 1, 1"); a(f"v_lshlrev_b32 {R(t1)}, 12, {R(t1)}")
    a(f"v_lshl_add_u32 {R(t1)}, {R(g)}, 8, {R(t1)}"); a(f"v_lshl_add_u32 {R(vKa)}, {R(t0)}, 4, {R(t1)}")
    a(f"v_mul_u32_u24 {R(t0)}, {RSX}, {R(t0)}"); a(f"v_lshl_add_u32 {R(vKM)}, {R(g)}, 4, {R(t0)}")
    a(f"s_lshl_b32 {S(sT0)}, {S(sW)}, 6")
    a(f"v_mul_u32_u24 {R(t0)}, {2*RSX}, {R(g)}"); a(f"v_lshl_add_u32 {R(t0)}, {R(c)}, 2, {R(t0)}"); a(f"v_add_u32 {R(vKW)}, {S(sT0)}, {R(t0)}")
    a(f"v_lshlrev_b32 {R(vVMr)}, 3, {R(vLane)}")
    a(f"s_lshl_b32 {S(sT0)}, {S(sW)}, 9"); a(f"v_add_u32 {R(vVMw)}, {S(sT0)}, {R(vVMr)}")
    a(f"v_mul_u32_u24 {R(t0)}, {GS}, {R(g)}"); a(f"v_lshl_add_u32 {R(vPS)}, {R(c)}, 4, {R(t0)}")
    a(f"v_and_b32 {R(vF1)}, 3, {R(vLane)}"); a(f"v_lshlrev_b32 {R(vF1)}, 4, {R(vF1)}")
    a(f"s_lshl_b32 {S(sT0)}, {S(sT2)}, 4"); a(f"v_add_u32 {R(t0)}, {S(sT0)}, {R(c)}")
    a(f"v_lshlrev_b32 {R(t1)}, 1, {R(g)}"); a(f"v_sub_u32 {R(t0)}, {R(t0)}, {R(t1)}")
    a(f"v_mov_b32 {R(t1)}, {f2u(-1e30):#x}")
    for tp in (0, 1):
        for i in range(4):
            a(f"v_cmp_gt_i32 vcc, {8*tp + (i&1) + 16*(i>>1)}, {R(t0)}")
            a(f"v_cndmask_b32 {R(CM+4*tp+i)}, 0, {R(t1)}, vcc")
    a(f"v_and_b32 {R(t0)}, 1, {R(c)}"); a(f"v_lshlrev_b32 {R(t0)}, 4, {R(t0)}"); a(f"v_mov_b32 {R(t1)}, 0x3f80"); a(f"v_lshlrev_b32 {R(t1)}, {R(t0)}, {R(t1)}")
    a(f"v_bfe_u32 {R(t0)}, {R(c)}, 1, 2")
    for r in range(4):
        a(f"v_cmp_eq_u32 vcc, {r}, {R(t0)}"); a(f"v_cndmask_b32 {R(SEL+r)}, 0, {R(t1)}, vcc")
    a(f"v_mov_b32 {R(PM+1)}, 0"); a(f"v_mov_b32 {R(PM+2)}, 0")
    a(f"s_bfe_u32 {S(sT0)}, {S(sH)}, 0x10003"); a(f"s_lshl_b32 {S(sT0)}, {S(sT0)}, 14")
    a(f"s_bfe_u32 {S(sT1)}, {S(sH)}, 0x20001"); a(f"s_lshl_b32 {S(sT1)}, {S(sT1)}, 8"); a(f"s_add_u32 {S(sT0)}, {S(sT0)}, {S(sT1)}")
    a(f"s_lshr_b32 {S(sT1)}, {S(sH)}, 4"); a(f"s_lshl_b32 {S(sT1)}, {S(sT1)}, 7"); a(f"s_add_u32 {S(sT0)}, {S(sT0)}, {S(sT1)}")
    a(f"s_and_b32 {S(sT1)}, {S(sH)}, 1"); a(f"s_lshl_b32 {S(sT1)}, {S(sT1)}, 6"); a(f"s_add_u32 {S(sT0)}, {S(sT0)}, {S(sT1)}")
    a(f"s_lshl_b32 {S(sT1)}, {S(sW)}, 4"); a(f"s_add_u32 {S(sT0)}, {S(sT0)}, {S(sT1)}")
    a(f"v_lshlrev_b32 {R(t0)}, 10, {R(c)}"); a(f"v_lshl_add_u32 {R(t0)}, {R(g)}, 3, {R(t0)}"); a(f"v_add_u32 {R(t0)}, {S(sT0)}, {R(t0)}")
    a(f"v_mov_b32 {R(t1)}, {OOB:#x}"); a(f"v_cmp_gt_u32 vcc, 2, {R(g)}"); a(f"v_cndmask_b32 {R(vXO)}, {R(t1)}, {R(t0)}, vcc")
    sKvm, sRd, sWr, sF1, sF3, sRow = sX1, sX2, sX3, sX4, sX5, sX6
    a(f"s_sub_u32 {S(sT2)}, {S(sG)}, 4")
    a(f"s_mul_i32 {S(sT0)}, {S(sW)}, {8*JS}"); a(f"s_lshl_b32 {S(sT1)}, {S(sH)}, 8"); a(f"s_add_u32 {S(sT0)}, {S(sT0)}, {S(sT1)}")
    a(f"s_lshl_b32 {S(sT1)}, {S(sT2)}, 22"); a(f"s_add_u32 {S(sT0)}, {S(sT0)}, {S(sT1)}"); a(f"s_add_u32 {S(sWr)}, {S(sT0)}, {WS_P3}")
    a(f"s_and_b32 {S(sPar)}, {S(sT2)}, 1")
    a(f"s_lshl_b32 {S(sT0)}, {S(sH)}, 1"); a(f"s_add_u32 {S(sT0)}, {S(sT0)}, {S(sPar)}"); a(f"s_lshl_b32 {S(sT0)}, {S(sT0)}, 7")
    a(f"s_add_u32 {S(sF1)}, {S(sT0)}, {WS_FLAG + F_T1}")
    a(f"s_bfe_u32 {S(sT0)}, {S(sH)}, 0x20001"); a(f"s_lshl_b32 {S(sT0)}, {S(sT0)}, 2")
    a(f"s_lshr_b32 {S(sT1)}, {S(sH)}, 4"); a(f"s_lshl_b32 {S(sT1)}, {S(sT1)}, 1"); a(f"s_add_u32 {S(sT0)}, {S(sT0)}, {S(sT1)}")
    a(f"s_and_b32 {S(sT1)}, {S(sH)}, 1"); a(f"s_add_u32 {S(sT0)}, {S(sT0)}, {S(sT1)}"); a(f"s_lshl_b32 {S(sT0)}, {S(sT0)}, 2")
    a(f"s_lshl_b32 {S(sT1)}, {S(sPar)}, 6"); a(f"s_add_u32 {S(sT0)}, {S(sT0)}, {S(sT1)}"); a(f"s_add_u32 {S(sF3)}, {S(sT0)}, {WS_FLAG + F_T3}")
    a(f"s_lshl_b32 {S(sRow)}, {S(sT2)}, 15")
    a(f"s_lshr_b32 {S(sThr)}, {S(sT2)}, 1"); a(f"s_add_u32 {S(sThr)}, {S(sThr)}, 1")
    a(f"s_lshl_b32 {S(sT0)}, {S(sT2)}, 5"); a(f"s_add_u32 {S(sT0)}, {S(sT0)}, {S(sH)}"); a(f"s_lshl_b32 {S(sT0)}, {S(sT0)}, 13")
    a(f"s_lshl_b32 {S(sT1)}, {S(sW)}, 11"); a(f"s_add_u32 {S(sSrc)}, {S(sT0)}, {S(sT1)}")
    a(f"s_mov_b32 {S(sI)}, 0"); a(f"s_mov_b32 {S(sFlag)}, 1")
    a(f"s_mov_b32 {S(sDst)}, {f2u(128 ** -0.5 * math.log2(math.e)):#x}")
    a(f"v_and_b32 {R(t0)}, 31, {R(vLane)}"); a(f"v_lshlrev_b32 {R(t0)}, 2, {R(t0)}")
    a(f"s_lshl_b32 {S(sT2)}, {S(sG)}, 7"); a(f"s_add_u32 {S(sT2)}, {S(sT2)}, {WS_FLAG + F_RDY}")
    wait_flags(a, t1, t0, S(sT2), 1)


def p3_loop(a, cfg, sc, exit_label):
    sKvm, sRd, sWr, sF1, sF3, sRow = sX1, sX2, sX3, sX4, sX5, sX6
    sTag, sCc = sFlag, sDst
    def DM(d, A, B, c=None): a(f"v_mfma_f32_16x16x32_bf16 {R(d,4)}, {R(A,4)}, {R(B,4)}, {R(d,4) if c is None else c}")
    def xl(r, t, op):
        for sw in ('v_permlane16_swap_b32', 'v_permlane32_swap_b32'):
            a(f"v_mov_b32 {R(t)}, {R(r)}"); a(f"{sw} {R(r)}, {R(t)}"); a(f"{op} {R(r)}, {R(r)}, {R(t)}")
    L = a.newlabel('p3')
    a.label(L)
    wait_flags(a, vC0, vF1, S(sF1), S(sThr))
    a("s_barrier")
    a(f"s_lshl_b32 {S(sT1)}, {S(sW)}, 11"); a(f"s_add_u32 m0, {S(sT1)}, {L_Q}"); a(f"s_add_u32 {S(sT0)}, {S(sSrc)}, {WS_Q}")
    for q in range(2): a(f"buffer_load_dwordx4 {R(vL16)}, {S(sWS,4)}, {S(sT0)} offen offset:{q*1024} sc1 lds")
    a(f"s_lshl_b32 {S(sT1)}, {S(sW)}, 12"); a(f"s_add_u32 m0, {S(sT1)}, {L_K}")
    a(f"s_lshl_b32 {S(sT0)}, {S(sSrc)}, 1"); a(f"s_add_u32 {S(sT0)}, {S(sT0)}, {WS_KV}")
    for q in range(4): a(f"buffer_load_dwordx4 {R(vL16)}, {S(sWS,4)}, {S(sT0)} offen offset:{q*1024} sc1 lds")
    a(f"buffer_load_dwordx2 {R(XG,2)}, {R(vXO)}, {S(sA,4)}, {S(sRow)} offen")
    a(f"v_mov_b32 {R(vC1)}, 0")
    wait_flags(a, vC0, vC1, S(sF3), S(sThr))
    a(f"s_add_u32 {S(sT0)}, {S(sRow)}, {WS_GATE}")
    a(f"buffer_load_dwordx2 {R(XG+2,2)}, {R(vXO)}, {S(sWS,4)}, {S(sT0)} offen sc1")
    a("s_barrier")
    for k in range(4): a(f"ds_read_b128 {R(QF+4*k,4)}, {R(vQa)} offset:{L_Q + k*1024}")
    for k in range(4):
        for tp in (0, 1): a(f"ds_read_b128 {R(KF+8*k+4*tp,4)}, {R(vKa)} offset:{L_K + k*1024 + tp*128}")
    a("s_waitcnt lgkmcnt(0)")
    for k in range(4):
        for tp in (0, 1):
            DM(SX + 4 * tp, KF + 8 * k + 4 * tp, QF + 4 * k, R(CM + 4 * tp, 4) if k == 0 else None)
            a(f"ds_read_b128 {R(VF+8*k+4*tp,4)}, {R(vL16)} offset:{L_V + (2*k+tp)*1024}")
    mx, tt, mc, ls = vC0, vC1, vC2, vC3
    a(f"v_max3_f32 {R(mx)}, {R(SX)}, {R(SX+1)}, {R(SX+2)}"); a(f"v_max3_f32 {R(tt)}, {R(SX+4)}, {R(SX+5)}, {R(SX+6)}")
    a(f"v_max3_f32 {R(mx)}, {R(mx)}, {R(SX+3)}, {R(SX+7)}"); a(f"v_max_f32 {R(mx)}, {R(mx)}, {R(tt)}")
    Lp = a.newlabel('p3k'); Lg = a.newlabel('p3g')
    a.label(Lp)
    a(f"buffer_load_dwordx4 {R(LD,4)}, {R(vL16)}, {S(sWS,4)}, {S(sKvm)} offen sc1")
    a(f"s_add_u32 {S(sCnt)}, {S(sCnt)}, 1"); a(f"s_cmp_ge_u32 {S(sCnt)}, {LIM}")
    a("s_waitcnt vmcnt(0)")
    a(f"s_cbranch_scc1 {Lg}")
    a(f"v_max3_u32 {R(tt)}, {R(LD)}, {R(LD+1)}, {R(LD+2)}"); a(f"v_max_u32 {R(tt)}, {R(tt)}, {R(LD+3)}")
    a(f"v_cmp_eq_u32 vcc, -1, {R(tt)}"); a(f"s_cbranch_vccnz {Lp}")
    a.label(Lg)
    a(f"ds_write_b32 {R(vKW)}, {R(LD)} offset:{L_KM}"); a(f"ds_write_b32 {R(vKW)}, {R(LD+1)} offset:{L_KM + RSX}")
    a(f"ds_write_b64 {R(vVMw)}, {R(LD+2,2)} offset:{L_VM}")
    a("s_waitcnt lgkmcnt(0)"); a("s_barrier")
    for k in range(4): a(f"ds_read_b128 {R(KMF+4*k,4)}, {R(vKM)} offset:{L_KM + 64*k}")
    for k in range(4): a(f"ds_read_b64 {R(VM+2*k,2)}, {R(vVMr)} offset:{L_VM + 512*k}")
    for k in range(4):
        a(f"s_waitcnt lgkmcnt({7-k})"); DM(SMr, KMF + 4 * k, QF + 4 * k, '0' if k == 0 else None)
    a(f"v_max3_f32 {R(mx)}, {R(mx)}, {R(SMr)}, {R(SMr+1)}")
    xl(mx, tt, 'v_max_f32')
    a(f"v_mul_f32 {R(mc)}, {S(sCc)}, {R(mx)}")
    ev = [SX + i for i in range(8)] + [SMr, SMr + 1]
    for r in ev: a(f"v_fma_f32 {R(r)}, {R(r)}, {S(sCc)}, -{R(mc)}")
    for r in ev: a(f"v_exp_f32 {R(r)}, {R(r)}")
    a(f"v_add_f32 {R(ls)}, {R(ev[0])}, {R(ev[1])}"); a(f"v_add_f32 {R(tt)}, {R(ev[2])}, {R(ev[3])}")
    for i in range(4, 10, 2):
        a(f"v_add_f32 {R(ls)}, {R(ls)}, {R(ev[i])}"); a(f"v_add_f32 {R(tt)}, {R(tt)}, {R(ev[i+1])}")
    a(f"v_add_f32 {R(ls)}, {R(ls)}, {R(tt)}")
    xl(ls, tt, 'v_add_f32')
    a(f"v_rcp_f32 {R(ls)}, {R(ls)}")
    for r in ev: a(f"v_mul_f32 {R(r)}, {R(r)}, {R(ls)}")
    for d in range(4): cvt(a, PX + d, SX + 2 * d, SX + 2 * d + 1)
    cvt(a, PM, SMr, SMr + 1); cvt(a, PM + 3, SMr, SMr + 1)
    a("s_waitcnt lgkmcnt(0)")
    for T in range(8): DM(OD + 4 * T, VF + 4 * T, PX, '0')
    for T in range(8):
        a(f"v_mfma_f32_16x16x16_bf16 {R(OD+4*T,4)}, {R(VM+2*(T>>1),2)}, {R(PM+2*(T&1),2)}, {R(OD+4*T,4)}")
        if T >= 3:
            q = T - 3
            cvt(a, OF + 2 * q, OD + 4 * q, OD + 4 * q + 1); cvt(a, OF + 2 * q + 1, OD + 4 * q + 2, OD + 4 * q + 3)
    for q in range(5, 8):
        cvt(a, OF + 2 * q, OD + 4 * q, OD + 4 * q + 1); cvt(a, OF + 2 * q + 1, OD + 4 * q + 2, OD + 4 * q + 3)
    a(f"s_mov_b32 {S(sT0)}, {S(sWr)}")
    pend = []
    for pi in range(8):
        ac = AC + 8 * (pi & 1)
        for k in range(4):
            for od in (0, 1):
                DM(ac + 4 * od, 256 + 16 * (2 * pi + od) + 4 * k, OF + 4 * k, '0' if k == 0 else None)
                if pend and 2 * k + od >= 2:
                    a(pend.pop(0))
                    if pend and not pend[0].startswith('buffer'): a(pend.pop(0))
        assert not pend
        o = OD + 4 * pi
        pend = [f"v_cvt_pk_bf16_f32 {R(o+d)}, {R(ac+2*d)}, {R(ac+2*d+1)}" for d in range(4)]
        pend += [f"v_and_or_b32 {R(o)}, {R(o)}, -2, {S(sTag)}", f"v_and_or_b32 {R(o+2)}, {R(o+2)}, -2, {S(sTag)}",
                 f"buffer_store_dwordx4 {R(o,4)}, {R(vPS)}, {S(sWS,4)}, {S(sT0)} offen{sc}", f"s_add_u32 {S(sT0)}, {S(sT0)}, {JS}"]
    for x in pend: a(x)
    Lr = a.newlabel('p3r'); Lf = a.newlabel('p3f')
    a(f"s_add_u32 {S(sT1)}, {S(sRd)}, 4096")
    y = SX; ck = KF
    a.label(Lr)
    for u in range(8):
        a(f"buffer_load_dwordx4 {R(LD+4*u,4)}, {R(vL16)}, {S(sWS,4)}, {S(sRd if u < 4 else sT1)} offen offset:{(u&3)*1024} sc1")
    a(f"s_add_u32 {S(sCnt)}, {S(sCnt)}, 1"); a(f"s_cmp_ge_u32 {S(sCnt)}, {LIM}")
    for u in range(8):
        a(f"s_waitcnt vmcnt({7-u})")
        DM(y, SEL, LD + 4 * u, '0' if u == 0 else None)
        a(f"v_bitop3_b32 {R(ck+1 if u else ck)}, {R(LD+4*u)}, {R(LD+4*u+2)}, {S(sTag)} bitop3:0x7e")
        if u: a(f"v_or_b32 {R(ck)}, {R(ck)}, {R(ck+1)}")
    a(f"s_cbranch_scc1 {Lf}")
    a(f"v_and_b32 {R(ck)}, 1, {R(ck)}"); a(f"v_cmp_ne_u32 vcc, 0, {R(ck)}"); a(f"s_cbranch_vccnz {Lr}")
    a.label(Lf)
    a("s_nop 4")
    t = KF + 4
    for d in (0, 1):
        cvt(a, t + 1, y + 2 * d, y + 2 * d + 1)
        a(f"v_lshlrev_b32 {R(t)}, 16, {R(t+1)}"); a(f"v_and_b32 {R(t+1)}, 0xffff0000, {R(t+1)}")
        a(f"v_lshlrev_b32 {R(t+2)}, 16, {R(XG+2+d)}"); a(f"v_and_b32 {R(t+3)}, 0xffff0000, {R(XG+2+d)}")
        a(f"v_mul_f32 {R(t)}, {R(t)}, {R(t+2)}"); a(f"v_mul_f32 {R(t+1)}, {R(t+1)}, {R(t+3)}")
        cvt(a, t + 1, t, t + 1)
        a(f"v_lshlrev_b32 {R(t)}, 16, {R(t+1)}"); a(f"v_and_b32 {R(t+1)}, 0xffff0000, {R(t+1)}")
        a(f"v_lshlrev_b32 {R(t+2)}, 16, {R(XG+d)}"); a(f"v_and_b32 {R(t+3)}, 0xffff0000, {R(XG+d)}")
        a(f"v_add_f32 {R(t)}, {R(t)}, {R(t+2)}"); a(f"v_add_f32 {R(t+1)}, {R(t+1)}, {R(t+3)}")
        cvt(a, XG + 4 + d, t, t + 1)
    a(f"buffer_store_dwordx2 {R(XG+4,2)}, {R(vXO)}, {S(sC_,4)}, {S(sRow)} offen")
    a(f"s_xor_b32 {S(sWr)}, {S(sWr)}, {2*MB}"); a(f"s_xor_b32 {S(sRd)}, {S(sRd)}, {2*MB}")
    a(f"s_and_b32 {S(sT0)}, {S(sI)}, 1"); a(f"s_xor_b32 {S(sTag)}, {S(sTag)}, {S(sT0)}")
    a(f"s_add_u32 {S(sKvm)}, {S(sKvm)}, {4*32*4096}"); a(f"s_add_u32 {S(sSrc)}, {S(sSrc)}, {4*32*8192}")
    a(f"s_add_u32 {S(sRow)}, {S(sRow)}, {4*32768}"); a(f"s_add_u32 {S(sThr)}, {S(sThr)}, 2")
    a(f"s_add_u32 {S(sI)}, {S(sI)}, 1"); a(f"s_cmp_lt_u32 {S(sI)}, 16"); a(f"s_cbranch_scc1 {L}")
    a(f"s_branch {exit_label}")
```

```python
from common import *

vLane, vL16, vOne, vA0, vA1, vA2, vA3, vB0, vB1, vB2, vB3, vC0, vC1, vC2, vC3, vC4 = range(16)
sI, sSrc, sBuf, sFlag, sDst, sPar, sMb, sThr, sX0, sX1, sX2, sX3, sX4, sX5, sX6, sX7 = range(40, 56)

def mf32(a, d, A, B, first): a(f"v_mfma_f32_32x32x16_bf16 {R(d,16)}, {R(A,4)}, {R(B,4)}, {'0' if first else R(d,16)}")
def cvt(a, d, x, y): a(f"v_cvt_pk_bf16_f32 {R(d)}, {R(x)}, {R(y)}")

def base_setup(a):
    a(f"v_lshlrev_b32 {R(vL16)}, 4, {R(vLane)}")
    make_vone(a, vOne, vLane)

def dense32_loader(a, slabs, rowstride, colbase_s, rowmap, colmap16=False):
    t0, t1, t2 = vC0, vC1, vC2
    a(f"v_lshrrev_b32 {R(t0)}, 4, {R(vLane)}")
    a(f"v_lshlrev_b32 {R(t1)}, 2, {R(t0)}"); a(f"v_and_b32 {R(t2)}, 15, {R(vLane)}"); a(f"v_xor_b32 {R(t1)}, {R(t1)}, {R(t2)}")
    a(f"s_lshl_b32 {S(sT0)}, {S(sW)}, 4"); a(f"v_add_u32 {R(t0)}, {S(sT0)}, {R(t0)}")
    a(f"v_mul_u32_u24 {R(t0)}, {rowstride}, {R(t0)}")
    a(f"v_lshl_add_u32 {R(t0)}, {R(t1)}, 4, {R(t0)}")
    a(f"v_add_u32 {R(vA0)}, {colbase_s}, {R(t0)}")
    a(f"v_bfe_u32 {R(t0)}, {R(vLane)}, 2, 2")
    a(f"v_lshrrev_b32 {R(t1)}, 5, {R(vLane)}")
    a(f"v_lshl_add_u32 {R(t1)}, {R(t1)}, {3 if rowmap == 'nat' else 2}, {R(t0)}")
    a(f"v_lshlrev_b32 {R(t1)}, 8, {R(t1)}")
    a(f"s_lshl_b32 {S(sT0)}, {S(sW)}, 1")
    if not colmap16:
        a(f"v_bfe_u32 {R(t2)}, {R(vLane)}, 4, 1")
        a(f"v_and_b32 {R(vA3)}, 3, {R(vLane)}"); a(f"v_lshlrev_b32 {R(vA3)}, 3, {R(vA3)}")
    else:
        a(f"v_and_b32 {R(t2)}, 1, {R(vLane)}")
        a(f"v_bfe_u32 {R(vA3)}, {R(vLane)}, 4, 1"); a(f"v_bfe_u32 {R(vA2)}, {R(vLane)}, 1, 1")
        a(f"v_lshl_add_u32 {R(vA3)}, {R(vA3)}, 1, {R(vA2)}"); a(f"v_lshlrev_b32 {R(vA3)}, 3, {R(vA3)}")
    a(f"v_add_u32 {R(t2)}, {S(sT0)}, {R(t2)}")
    a(f"v_lshlrev_b32 {R(t0)}, 1, {R(t0)}"); a(f"v_xor_b32 {R(t2)}, {R(t2)}, {R(t0)}")
    a(f"v_lshl_add_u32 {R(t1)}, {R(t2)}, 5, {R(t1)}")
    a(f"v_add_u32 {R(vA1)}, {R(t1)}, {R(vA3)}")
    a(f"v_add_u32 {R(vA2)}, 65536, {R(vA1)}")
    ustep = 4 if rowmap == 'nat' else 8
    def src(n, i):
        srd, row0, _ = slabs[n]
        return vA0, srd, f"s_mov_b32 {S(sT0)}, {(row0 + 4*i) * rowstride}"
    def reads(n, base):
        ad = vA1 if base < 65536 else vA2
        for ks, d in enumerate(slabs[n][2]):
            if d is None: continue
            for u in (0, 1):
                a(f"ds_read_b64_tr_b16 {R(d+2*u,2)}, {R(ad)} offset:{(base & 65535) + (16*ks + ustep*u)*256}")
    slab_loader(a, len(slabs), 8, 0, sMb, src, reads)


def xn_gemm(a, wreg, acc, swap, epilogue, nst, flag_at, exit_label):
    FR = 16
    nm = len(acc)
    wait_all_tickets(a, vC0, vC1)
    a(f"s_mov_b32 {S(sT2)}, {WS_FLAG + F_LN}")
    wait_flags(a, FR, vL16, S(sT2), 1, width=4, nload=2)
    a(f"s_lshl_b32 {S(sT0)}, {S(sW)}, 13"); a(f"s_mov_b32 {S(sBuf)}, {S(sT0)}")
    a(f"s_lshl_b32 {S(sSrc)}, {S(sPar)}, 15"); a(f"s_add_u32 {S(sSrc)}, {S(sSrc)}, {S(sT0)}")
    if WS_XN: a(f"s_add_u32 {S(sSrc)}, {S(sSrc)}, {WS_XN}")
    def dma():
        out = []
        for hf in (0, 1):
            out.append(f"s_add_u32 m0, {S(sBuf)}, {hf*4096}")
            out.append(f"s_add_u32 {S(sT0)}, {S(sSrc)}, {hf*4096}")
            for q in range(4): out.append(f"buffer_load_dwordx4 {R(vL16)}, {S(sWS,4)}, {S(sT0)} offen offset:{q*1024} sc1 lds")
        out.append(f"s_add_u32 {S(sSrc)}, {S(sSrc)}, 65536"); out.append(f"s_xor_b32 {S(sBuf)}, {S(sBuf)}, 32768")
        return out
    for x in dma(): a(x)
    a(f"v_mov_b32 {R(vB0)}, {R(vL16)}")
    a(f"s_mov_b32 {S(sI)}, 0")
    a("s_waitcnt vmcnt(0)")
    L = a.newlabel('xg')
    a.label(L)
    a(f"s_waitcnt vmcnt({nst+1})"); a("s_barrier")
    for k in range(3): a(f"ds_read_b128 {R(FR+4*k,4)}, {R(vB0)} offset:{k*1024}")
    side = dma()
    for k in range(32):
        a(f"s_waitcnt lgkmcnt({min(2, 31-k)})")
        f = FR + 4 * (k & 3)
        for m in range(nm):
            if swap[m]: mf32(a, acc[m], f, wreg[m](k), k == 0)
            else: mf32(a, acc[m], wreg[m](k), f, k == 0)
            if m == 0 and k + 3 < 32: a(f"ds_read_b128 {R(FR+4*((k+3)&3),4)}, {R(vB0)} offset:{(k+3)*1024}")
            elif side: a(side.pop(0));
            if m and side and side[0].startswith('s_'): a(side.pop(0))
        if k == flag_at:
            assert not side
            a("s_waitcnt vmcnt(8)"); post_flag(a, vC0, vOne, S(sFlag), S(sI))
    a(f"v_xor_b32 {R(vB0)}, 32768, {R(vB0)}")
    epilogue()
    a(f"s_add_u32 {S(sI)}, {S(sI)}, 1"); a(f"s_cmp_lt_u32 {S(sI)}, 32"); a(f"s_cbranch_scc1 {L}")
    a("s_waitcnt vmcnt(0)"); post_flag(a, vC0, vOne, S(sFlag), 32)
    a(f"s_branch {exit_label}")


def role_t1(a, cfg, exit_label):
    srd_load(a, [(sA, 'Wk'), (sB, 'Wv'), (sC_, 'Wq')])
    base_setup(a)
    sHead = sX0
    a(f"s_sub_u32 {S(sT0)}, {S(sG)}, 1"); a(f"s_lshl_b32 {S(sT0)}, {S(sT0)}, 4"); a(f"s_lshr_b32 {S(sT1)}, {S(sH)}, 1")
    a(f"s_add_u32 {S(sHead)}, {S(sT0)}, {S(sT1)}"); a(f"s_and_b32 {S(sPar)}, {S(sH)}, 1")
    a(f"s_lshl_b32 {S(sX1)}, {S(sHead)}, 8")
    wb = [128, 256, 384]
    slabs = [(srd, 64 * c, [wb[m] + 4 * (4 * c + ks) for ks in range(4)]) for m, srd in enumerate((sA, sB, sC_)) for c in range(8)]
    dense32_loader(a, slabs, 8192, S(sX1), 'nat')
    vK, vV = vB1, vB2
    a(f"v_bfe_u32 {R(vC0)}, {R(vLane)}, 4, 1"); a(f"v_lshrrev_b32 {R(vC1)}, 5, {R(vLane)}"); a(f"v_and_b32 {R(vC2)}, 15, {R(vLane)}")
    a(f"v_lshlrev_b32 {R(vC2)}, 4, {R(vC2)}")
    a(f"v_lshl_add_u32 {R(vK)}, {R(vC0)}, 12, {R(vC2)}"); a(f"v_lshl_add_u32 {R(vK)}, {R(vC1)}, 8, {R(vK)}")
    a(f"v_lshl_add_u32 {R(vV)}, {R(vC0)}, 10, {R(vC2)}"); a(f"v_lshl_add_u32 {R(vV)}, {R(vC1)}, 9, {R(vV)}")
    sK, sV, sQ = sX2, sX3, sX4
    a(f"s_lshl_b32 {S(sT0)}, {S(sPar)}, 5"); a(f"s_add_u32 {S(sT0)}, {S(sT0)}, {S(sHead)}")
    a(f"s_lshl_b32 {S(sT1)}, {S(sW)}, 10")
    a(f"s_lshl_b32 {S(sK)}, {S(sT0)}, 14"); a(f"s_add_u32 {S(sK)}, {S(sK)}, {S(sT1)}"); a(f"s_add_u32 {S(sK)}, {S(sK)}, {WS_KV}")
    a(f"s_add_u32 {S(sV)}, {S(sK)}, {S(sT1)}"); a(f"s_add_u32 {S(sV)}, {S(sV)}, 8192")
    a(f"s_lshl_b32 {S(sQ)}, {S(sT0)}, 13"); a(f"s_add_u32 {S(sQ)}, {S(sQ)}, {S(sT1)}"); a(f"s_add_u32 {S(sQ)}, {S(sQ)}, {WS_Q}")
    a(f"s_lshl_b32 {S(sT0)}, {S(sHead)}, 1"); a(f"s_add_u32 {S(sT0)}, {S(sT0)}, {S(sPar)}"); a(f"s_lshl_b32 {S(sT0)}, {S(sT0)}, 7")
    a(f"s_lshl_b32 {S(sT1)}, {S(sW)}, 4"); a(f"s_add_u32 {S(sT0)}, {S(sT0)}, {S(sT1)}"); a(f"s_add_u32 {S(sFlag)}, {S(sT0)}, {WS_FLAG + F_T1}")
    acc = [32, 48, 64]; E = 80
    def epi():
        for idx, (ac, so) in enumerate(((acc[0], sK), (acc[2], sQ))):
            for ap in (0, 1):
                q = E + 8 * idx + 4 * ap
                for b in range(4): cvt(a, q + b, ac + 4 * ap + b, ac + 4 * (ap + 2) + b)
                a(f"buffer_store_dwordx4 {R(q,4)}, {R(vK)}, {S(sWS,4)}, {S(so)} offen offset:{ap*512} sc1")
            if idx == 0:
                for be in (0, 1):
                    q = E + 16 + 4 * be
                    for d, aa in enumerate((0, 2, 1, 3)): cvt(a, q + d, acc[1] + 4 * aa + 2 * be, acc[1] + 4 * aa + 2 * be + 1)
                    a(f"buffer_store_dwordx4 {R(q,4)}, {R(vV)}, {S(sWS,4)}, {S(sV)} offen offset:{be*256} sc1")
        a(f"s_add_u32 {S(sK)}, {S(sK)}, {64*16384}"); a(f"s_add_u32 {S(sV)}, {S(sV)}, {64*16384}"); a(f"s_add_u32 {S(sQ)}, {S(sQ)}, {64*8192}")
    xn_gemm(a, [lambda k, m=m: wb[m] + 4 * k for m in range(3)], acc, [False, True, False], epi, 6, 12, exit_label)


def role_t2(a, cfg, exit_label):
    srd_load(a, [(sA, 'wg'), (sB, 'wu')])
    base_setup(a)
    sCb = sX0
    a(f"s_lshr_b32 {S(sCb)}, {S(sH)}, 1"); a(f"s_and_b32 {S(sPar)}, {S(sH)}, 1")
    a(f"s_lshl_b32 {S(sX1)}, {S(sCb)}, 8")
    wb = [256, 384]
    slabs = [(srd, 64 * c, [wb[m] + 4 * (4 * c + ks) for ks in range(4)]) for m, srd in enumerate((sA, sB)) for c in range(8)]
    dense32_loader(a, slabs, 2752, S(sX1), 'nat')
    a(f"s_lshl_b32 {S(sT0)}, {S(sCb)}, 2"); a(f"s_add_u32 {S(sT0)}, {S(sT0)}, {S(sW)}")
    a(f"s_cmp_lt_u32 {S(sT0)}, 43"); a(f"s_cselect_b32 {S(sT1)}, 0, {OOB:#x}")
    a(f"v_add_u32 {R(vB1)}, {S(sT1)}, {R(vL16)}")
    a(f"s_lshl_b32 {S(sDst)}, {S(sT0)}, 11"); a(f"s_mul_i32 {S(sT1)}, {S(sPar)}, {HBLK}")
    a(f"s_add_u32 {S(sDst)}, {S(sDst)}, {S(sT1)}"); a(f"s_add_u32 {S(sDst)}, {S(sDst)}, {WS_H}")
    a(f"s_lshl_b32 {S(sT0)}, {S(sT0)}, 2"); a(f"s_lshl_b32 {S(sT1)}, {S(sPar)}, 8"); a(f"s_add_u32 {S(sT0)}, {S(sT0)}, {S(sT1)}")
    a(f"s_add_u32 {S(sFlag)}, {S(sT0)}, {WS_FLAG + F_T2}")
    acc = [32, 48]; E = 80
    def epi():
        for ap in (0, 1):
            for j in range(8): a(f"v_mul_f32 {R(E+16+j)}, {R(acc[0]+8*ap+j)}, {R(acc[1]+8*ap+j)}")
            for d in range(4): cvt(a, E + 4 * ap + d, E + 16 + 2 * d, E + 17 + 2 * d)
            a(f"buffer_store_dwordx4 {R(E+4*ap,4)}, {R(vB1)}, {S(sWS,4)}, {S(sDst)} offen offset:{ap*1024} sc1")
        a(f"s_add_u32 {S(sDst)}, {S(sDst)}, {2*HBLK}")
    xn_gemm(a, [lambda k, m=m: wb[m] + 4 * k for m in range(2)], acc, [False, False], epi, 2, 18, exit_label)


def role_t3(a, cfg, exit_label):
    srd_load(a, [(sA, 'wd')])
    base_setup(a)
    sNb = sX0
    a(f"s_sub_u32 {S(sNb)}, {S(sH)}, 22"); a(f"s_lshr_b32 {S(sNb)}, {S(sNb)}, 1"); a(f"s_and_b32 {S(sPar)}, {S(sH)}, 1")
    a(f"s_lshl_b32 {S(sX1)}, {S(sNb)}, 8")
    W0 = 512 - 344
    slabs = [(sA, 64 * c, [(W0 + 4 * (4 * c + ks)) if 4 * c + ks < 86 else None for ks in range(4)]) for c in range(22)]
    dense32_loader(a, slabs, 1024, S(sX1), 'h', colmap16=True)
    SLOT = 45056; FR = 16; acc = 32; E = 48
    vFl, vSt = vB1, vB2
    a(f"v_min_u32 {R(vFl)}, 42, {R(vLane)}"); a(f"v_lshlrev_b32 {R(vFl)}, 2, {R(vFl)}")
    a(f"v_and_b32 {R(vC0)}, 31, {R(vLane)}"); a(f"v_lshrrev_b32 {R(vC1)}, 5, {R(vLane)}")
    a(f"v_lshlrev_b32 {R(vC0)}, 10, {R(vC0)}"); a(f"v_lshl_add_u32 {R(vSt)}, {R(vC1)}, 5, {R(vC0)}")
    sF2, sRd, sWoff = sX2, sX3, sX4
    a(f"s_lshl_b32 {S(sF2)}, {S(sPar)}, 8"); a(f"s_add_u32 {S(sF2)}, {S(sF2)}, {WS_FLAG + F_T2}")
    a(f"s_lshl_b32 {S(sT0)}, {S(sNb)}, 2"); a(f"s_add_u32 {S(sT0)}, {S(sT0)}, {S(sW)}")
    a(f"s_lshl_b32 {S(sDst)}, {S(sT0)}, 6"); a(f"s_lshl_b32 {S(sT1)}, {S(sPar)}, 15"); a(f"s_add_u32 {S(sDst)}, {S(sDst)}, {S(sT1)}")
    a(f"s_add_u32 {S(sDst)}, {S(sDst)}, {WS_GATE}")
    a(f"s_lshl_b32 {S(sT0)}, {S(sT0)}, 2"); a(f"s_lshl_b32 {S(sT1)}, {S(sPar)}, 6"); a(f"s_add_u32 {S(sT0)}, {S(sT0)}, {S(sT1)}")
    a(f"s_add_u32 {S(sFlag)}, {S(sT0)}, {WS_FLAG + F_T3}")
    a(f"s_mul_i32 {S(sWoff)}, {S(sW)}, 11264")
    a(f"s_mul_i32 {S(sSrc)}, {S(sPar)}, {HBLK}"); a(f"s_add_u32 {S(sSrc)}, {S(sSrc)}, {S(sWoff)}"); a(f"s_add_u32 {S(sSrc)}, {S(sSrc)}, {WS_H}")
    a(f"s_mov_b32 {S(sBuf)}, 0"); a(f"s_mov_b32 {S(sRd)}, 0")
    def nxt(s):
        a(f"s_add_u32 {S(s)}, {S(s)}, {SLOT}"); a(f"s_cmp_ge_u32 {S(s)}, {3*SLOT}"); a(f"s_cselect_b32 {S(s)}, 0, {S(s)}")
    def dma(half):
        a(f"s_add_u32 {S(sT1)}, {S(sBuf)}, {S(sWoff)}")
        for gq in range(3):
            a(f"s_add_u32 m0, {S(sT1)}, {gq*4096}"); a(f"s_add_u32 {S(sT0)}, {S(sSrc)}, {gq*4096}")
            for q in range(4 if gq < 2 else 3): a(f"buffer_load_dwordx4 {R(vL16)}, {S(sWS,4)}, {S(sT0)} offen offset:{q*1024} sc1 lds")
        a(f"s_add_u32 {S(sSrc)}, {S(sSrc)}, {43*1024 if half == 0 else 43*1024 + HBLK}")
        nxt(sBuf)
    wait_all_tickets(a, vC0, vC1)
    wait_flags(a, vC0, vFl, S(sF2), 1)
    dma(0); dma(1)
    a(f"s_mov_b32 {S(sI)}, 0")
    L = a.newlabel('t3')
    a.label(L)
    for half in (0, 1):
        if half == 0:
            a(f"s_add_u32 {S(sThr)}, {S(sI)}, 2"); a(f"s_min_u32 {S(sThr)}, {S(sThr)}, 32")
            wait_flags(a, vC0, vFl, S(sF2), S(sThr))
            post_flag(a, vC1, vOne, S(sFlag), S(sI))
        a("s_barrier")
        a(f"v_add_u32 {R(vB0)}, {S(sRd)}, {R(vL16)}")
        for k in range(3): a(f"ds_read_b128 {R(FR+4*k,4)}, {R(vB0)} offset:{k*1024}")
        dma(half)
        nxt(sRd)
        for k in range(43):
            a(f"s_waitcnt lgkmcnt({min(2, 42-k)})")
            mf32(a, acc, W0 + 4 * (43 * half + k), FR + 4 * (k & 3), half == 0 and k == 0)
            if k + 3 < 43: a(f"ds_read_b128 {R(FR+4*((k+3)&3),4)}, {R(vB0)} offset:{(k+3)*1024}")
    a(f"s_mov_b32 {S(sT0)}, {f2u(-math.log2(math.e)):#x}")
    for p in range(8):
        x0, x1, e0, e1 = E + 16, E + 17, E + 18, E + 19
        cvt(a, x1, acc + 2 * p, acc + 2 * p + 1)
        a(f"v_lshlrev_b32 {R(x0)}, 16, {R(x1)}"); a(f"v_and_b32 {R(x1)}, 0xffff0000, {R(x1)}")
        a(f"v_mul_f32 {R(e0)}, {S(sT0)}, {R(x0)}"); a(f"v_mul_f32 {R(e1)}, {S(sT0)}, {R(x1)}")
        a(f"v_exp_f32 {R(e0)}, {R(e0)}"); a(f"v_exp_f32 {R(e1)}, {R(e1)}")
        a(f"v_add_f32 {R(e0)}, 1.0, {R(e0)}"); a(f"v_add_f32 {R(e1)}, 1.0, {R(e1)}")
        a(f"v_rcp_f32 {R(e0)}, {R(e0)}"); a(f"v_rcp_f32 {R(e1)}, {R(e1)}")
        a(f"v_mul_f32 {R(x0)}, {R(x0)}, {R(e0)}"); a(f"v_mul_f32 {R(x1)}, {R(x1)}, {R(e1)}")
        cvt(a, E + p, x0, x1)
    a(f"buffer_store_dwordx4 {R(E,4)}, {R(vSt)}, {S(sWS,4)}, {S(sDst)} offen sc1")
    a(f"buffer_store_dwordx4 {R(E+4,4)}, {R(vSt)}, {S(sWS,4)}, {S(sDst)} offen offset:16 sc1")
    a(f"s_add_u32 {S(sDst)}, {S(sDst)}, 65536")
    a(f"s_add_u32 {S(sI)}, {S(sI)}, 1"); a(f"s_cmp_lt_u32 {S(sI)}, 32"); a(f"s_cbranch_scc1 {L}")
    a("s_waitcnt vmcnt(0)"); post_flag(a, vC1, vOne, S(sFlag), 32)
    a(f"s_branch {exit_label}")


def allred(a, regs, tmps, op):
    for ctl in ('row_ror:8', 'row_ror:4', 'row_ror:2', 'row_ror:1'):
        for r in regs: a(f"{op}_dpp {R(r)}, {R(r)}, {R(r)} {ctl} row_mask:0xf bank_mask:0xf")
    for sw in ('v_permlane16_swap_b32', 'v_permlane32_swap_b32'):
        for r, t in zip(regs, tmps): a(f"v_mov_b32 {R(t)}, {R(r)}")
        for r, t in zip(regs, tmps): a(f"{sw} {R(r)}, {R(t)}")
        for r, t in zip(regs, tmps): a(f"{op} {R(r)}, {R(r)}, {R(t)}")


def layernorm(a, cfg):
    X = 32; F = 64; sm = [16, 17, 18, 19]; tm = [20, 21, 22, 23]; mb = [24, 25, 26, 27]
    sU = sX0
    a(f"s_sub_u32 {S(sU)}, {S(sG)}, 4"); a(f"s_lshl_b32 {S(sU)}, {S(sU)}, 5"); a(f"s_add_u32 {S(sU)}, {S(sU)}, {S(sH)}")
    a(f"s_lshl_b32 {S(sT0)}, {S(sU)}, 14"); a(f"s_lshl_b32 {S(sT1)}, {S(sW)}, 12"); a(f"s_add_u32 {S(sT0)}, {S(sT0)}, {S(sT1)}")
    for r in range(4): a(f"buffer_load_dwordx4 {R(X+4*r,4)}, {R(vL16)}, {S(sA,4)}, {S(sT0)} offen offset:{r*1024}")
    for r in range(4):
        a(f"s_waitcnt vmcnt({3-r})")
        for d in range(4):
            a(f"v_lshlrev_b32 {R(F+8*r+2*d)}, 16, {R(X+4*r+d)}"); a(f"v_and_b32 {R(F+8*r+2*d+1)}, 0xffff0000, {R(X+4*r+d)}")
        a(f"v_add_f32 {R(sm[r])}, {R(F+8*r)}, {R(F+8*r+1)}")
        for j in range(2, 8): a(f"v_add_f32 {R(sm[r])}, {R(sm[r])}, {R(F+8*r+j)}")
    allred(a, sm, tm, 'v_add_f32')
    a(f"s_mov_b32 {S(sT2)}, {f2u(1/512):#x}")
    for r in range(4):
        a(f"v_mul_f32 {R(sm[r])}, {S(sT2)}, {R(sm[r])}")
        cvt(a, mb[r], sm[r], sm[r]); a(f"v_lshlrev_b32 {R(mb[r])}, 16, {R(mb[r])}")
    vs = [28, 29, 30, 31]
    for r in range(4):
        for j in range(8):
            a(f"v_sub_f32 {R(tm[r])}, {R(F+8*r+j)}, {R(sm[r])}")
            if j == 0: a(f"v_mul_f32 {R(vs[r])}, {R(tm[r])}, {R(tm[r])}")
            else: a(f"v_fmac_f32 {R(vs[r])}, {R(tm[r])}, {R(tm[r])}")
    allred(a, vs, tm, 'v_add_f32')
    def rnd(r): cvt(a, r, r, r); a(f"v_lshlrev_b32 {R(r)}, 16, {R(r)}")
    for r in range(4):
        v = vs[r]
        a(f"v_mul_f32 {R(v)}, {S(sT2)}, {R(v)}"); rnd(v)
        a(f"v_add_f32 {R(v)}, {f2u(1e-5):#x}, {R(v)}"); rnd(v)
        a(f"v_sqrt_f32 {R(v)}, {R(v)}"); rnd(v)
        a(f"v_rcp_f32 {R(v)}, {R(v)}")
    a(f"s_lshl_b32 {S(sT1)}, {S(sW)}, 6"); a(f"v_lshlrev_b32 {R(vC0)}, 8, {R(vLane)}"); a(f"v_add_u32 {R(vC0)}, {S(sT1)}, {R(vC0)}")
    for r in range(4):
        for d in range(4):
            f = F + 8 * r + 2 * d
            a(f"v_sub_f32 {R(f)}, {R(f)}, {R(mb[r])}"); a(f"v_sub_f32 {R(f+1)}, {R(f+1)}, {R(mb[r])}")
            cvt(a, f + 1, f, f + 1)
            a(f"v_lshlrev_b32 {R(f)}, 16, {R(f+1)}"); a(f"v_and_b32 {R(f+1)}, 0xffff0000, {R(f+1)}")
            a(f"v_mul_f32 {R(f)}, {R(f)}, {R(vs[r])}"); a(f"v_mul_f32 {R(f+1)}, {R(f+1)}, {R(vs[r])}")
            cvt(a, X + 4 * r + d, f, f + 1)
        a(f"ds_write_b128 {R(vC0)}, {R(X+4*r,4)} offset:{r*16}")
    a("s_waitcnt lgkmcnt(0)"); a("s_barrier")
    a(f"s_lshl_b32 {S(sT1)}, {S(sW)}, 12"); a(f"v_add_u32 {R(vC0)}, {S(sT1)}, {R(vL16)}")
    for r in range(4): a(f"ds_read_b128 {R(X+4*r,4)}, {R(vC0)} offset:{r*1024}")
    a(f"v_lshrrev_b32 {R(vC1)}, 4, {R(vLane)}"); a(f"v_and_b32 {R(vC2)}, 15, {R(vLane)}")
    a(f"v_lshlrev_b32 {R(vC1)}, 9, {R(vC1)}"); a(f"v_lshl_add_u32 {R(vC1)}, {R(vC2)}, 4, {R(vC1)}")
    a(f"s_lshr_b32 {S(sT0)}, {S(sU)}, 1"); a(f"s_lshl_b32 {S(sT0)}, {S(sT0)}, 15")
    a(f"s_and_b32 {S(sT1)}, {S(sU)}, 1"); a(f"s_lshl_b32 {S(sT1)}, {S(sT1)}, 8"); a(f"s_add_u32 {S(sT0)}, {S(sT0)}, {S(sT1)}")
    a(f"s_lshl_b32 {S(sT1)}, {S(sW)}, 13"); a(f"s_add_u32 {S(sT0)}, {S(sT0)}, {S(sT1)}")
    if WS_XN: a(f"s_add_u32 {S(sT0)}, {S(sT0)}, {WS_XN}")
    a(f"s_add_u32 {S(sT1)}, {S(sT0)}, 4096")
    for r in range(4):
        a(f"s_waitcnt lgkmcnt({3-r})")
        a(f"buffer_store_dwordx4 {R(X+4*r,4)}, {R(vC1)}, {S(sWS,4)}, {S(sT0 if r < 2 else sT1)} offen offset:{(r&1)*2048} sc1")
    wait_all_tickets(a, vC3, vC4)
    a(f"s_lshl_b32 {S(sT0)}, {S(sU)}, 2"); a(f"s_add_u32 {S(sT0)}, {S(sT0)}, {S(sW)}"); a(f"s_lshl_b32 {S(sT0)}, {S(sT0)}, 2")
    a(f"s_add_u32 {S(sT0)}, {S(sT0)}, {WS_FLAG + F_LN}")
    post_flag(a, vC0, vOne, S(sT0), 1)
    a("s_barrier")
```

```python
import sys
from common import *
import chain, workers, p3

NAME = 'recurrent_scan__memory_aug_recurrent_mem_tr__glu_gated_bilinear__prompt_kernel'
HEAD = open('recurrent_scan__memory_aug_recurrent_mem_tr__glu_gated_bilinear__prompt.s.ref').read().split('; Override launch')[0]

def build(cfg):
    a = Asm()
    diag = cfg.get('diag')
    a("s_cmp_ge_u32 s2, 256"); a("s_cbranch_scc1 L_exit")
    if diag: a("s_memrealtime s[96:97]")
    srd_load(a, [(sWS, 'ws'), (sDBG, 'dbg')])
    a("v_lshrrev_b32 v1, 6, v0"); a(f"v_readfirstlane_b32 {S(sW)}, v1")
    a("v_and_b32 v0, 63, v0")
    a(f"s_mov_b32 {S(sCnt)}, 0")
    a(f"s_getreg_b32 {S(sG)}, hwreg(HW_REG_XCC_ID)"); a(f"s_and_b32 {S(sG)}, {S(sG)}, 7")
    if cfg.get('fakexcc') == 1: a(f"s_lshr_b32 {S(sG)}, s2, 5")
    if cfg.get('fakexcc') == 2:
        a(f"s_lshr_b32 {S(sG)}, s2, 4"); a(f"s_min_u32 {S(sG)}, {S(sG)}, 7")
    a("v_mov_b32 v2, 0")
    a(f"s_cmp_lg_u32 {S(sW)}, 0"); a("s_cbranch_scc1 L_tk")
    a("v_lshlrev_b32 v1, 2, v0")
    a(f"s_lshl_b32 {S(sT0)}, s2, 8"); a(f"s_add_u32 {S(sT0)}, {S(sT0)}, {WS_FLAG}")
    a(f"buffer_store_dword v2, v1, {S(sWS,4)}, {S(sT0)} offen sc1")
    a("v_mov_b32 v1, 1"); a(f"s_lshl_b32 {S(sT0)}, {S(sG)}, 5"); a(f"v_mov_b32 v3, {S(sT0)}")
    a("s_waitcnt vmcnt(0)")
    a("s_mov_b64 exec, 1")
    a(f"buffer_atomic_add v1, v3, {S(sDBG,4)}, 0 offen sc0 sc1")
    a("s_waitcnt vmcnt(0)")
    a("ds_write_b32 v2, v1")
    a("s_mov_b64 exec, -1")
    a("s_waitcnt lgkmcnt(0)")
    a.label("L_tk")
    a("s_barrier")
    a("ds_read_b32 v1, v2"); a("s_waitcnt lgkmcnt(0)")
    a(f"v_readfirstlane_b32 {S(sH)}, v1")
    a("s_barrier")
    a(f"s_cmp_lt_u32 {S(sH)}, 32"); a("s_cbranch_scc1 L_role")
    wait_all_tickets(a, 1, 2)
    sR, sX, sCn = 40, 41, 42
    a(f"s_sub_u32 {S(sR)}, {S(sH)}, 32")
    for x in range(7):
        a(f"v_readlane_b32 {S(sCn)}, v1, {x}"); a(f"s_max_u32 {S(sCn)}, {S(sCn)}, 32"); a(f"s_sub_u32 {S(sCn)}, {S(sCn)}, 32")
        a(f"s_cmp_gt_u32 {S(sG)}, {x}"); a(f"s_cselect_b32 {S(sCn)}, {S(sCn)}, 0"); a(f"s_add_u32 {S(sR)}, {S(sR)}, {S(sCn)}")
    for x in range(8):
        a(f"v_readlane_b32 {S(sCn)}, v1, {x}"); a(f"s_min_u32 {S(sCn)}, {S(sCn)}, 32")
        a(f"s_mov_b32 {S(sG)}, {x}"); a(f"s_add_u32 {S(sH)}, {S(sCn)}, {S(sR)}")
        a(f"s_cmp_lt_u32 {S(sH)}, 32"); a("s_cbranch_scc1 L_role")
        a(f"s_sub_u32 {S(sR)}, {S(sH)}, 32")
    a("s_branch L_exit")
    a.label("L_role")
    a(f"s_cmp_ge_u32 {S(sG)}, 4"); a("s_cbranch_scc1 L_p3")
    a(f"s_cmp_eq_u32 {S(sG)}, 3"); a("s_cbranch_scc1 L_glu")
    a(f"s_cmp_lg_u32 {S(sG)}, 0"); a("s_cbranch_scc1 L_t1")
    done = "L_done" if diag else "L_exit"
    m0 = chain.chain_setup(a, cfg)
    chain.chain_init_buffers(a, cfg, m0, ' sc1')
    def hook():
        t = chain.O(6)
        wait_all_tickets(a, t, t + 1)
        a(f"v_mov_b32 {R(t+1)}, 0"); a(f"v_mov_b32 {R(t)}, 1")
        a(f"s_lshl_b32 {S(sT0)}, {S(sH)}, 2"); a(f"s_add_u32 {S(sT0)}, {S(sT0)}, {WS_FLAG + F_RDY}")
        a(f"buffer_store_dword {R(t)}, {R(t+1)}, {S(sWS,4)}, {S(sT0)} offen sc1")
    chain.chain_load_weights(a, cfg, hook)
    t = chain.O(4)
    wait_all_tickets(a, t, t + 1)
    a(f"v_readlane_b32 {S(chain.sFast)}, {R(t)}, 0")
    a(f"v_and_b32 {R(t+4)}, 0x70, {R(chain.vL16)}"); a(f"v_cmp_gt_u32 vcc, 512, {R(chain.vL16)}")
    a(f"v_cndmask_b32 {R(t+4)}, {R(chain.vL16)}, {R(t+4)}, vcc")
    a(f"s_mov_b32 {S(sT2)}, {WS_FLAG + F_RDY}")
    if not cfg.get('noflag'):
        wait_flags(a, t, t + 4, S(sT2), 1, width=4)
        a(f"v_and_b32 {R(t+4)}, 0xb0, {R(chain.vL16)}")
        wait_flags(a, t, t + 4, S(chain.sF1), 2)
    if diag: a("s_memrealtime s[98:99]"); a("s_memtime s[94:95]")
    if not cfg.get('slow'):
        a(f"s_cmp_lt_u32 {S(chain.sFast)}, 32"); a("s_cbranch_scc1 L_chain_slow")
        chain.chain_loop(a, cfg, '', done)
    a.label("L_chain_slow")
    chain.chain_loop(a, dict(cfg, diag=None) if not cfg.get('slow') else cfg, ' sc1', done)
    a.label("L_t1")
    workers.role_t1(a, cfg, done)
    a.label("L_glu")
    a(f"s_cmp_ge_u32 {S(sH)}, 30"); a("s_cbranch_scc1 L_exit")
    a(f"s_cmp_ge_u32 {S(sH)}, 22"); a("s_cbranch_scc1 L_t3")
    workers.role_t2(a, cfg, done)
    a.label("L_t3")
    workers.role_t3(a, cfg, done)
    a.label("L_p3")
    p3.p3_setup(a, cfg)
    p3.p3_consts(a, cfg)
    if diag: a("s_memrealtime s[98:99]")
    if not cfg.get('slow'):
        a(f"s_cmp_lt_u32 {S(workers.sX7)}, 32"); a("s_cbranch_scc1 L_p3_slow")
        p3.p3_loop(a, cfg, '', done)
    a.label("L_p3_slow")
    p3.p3_loop(a, cfg, ' sc1', done)
    if diag:
        a.label("L_done")
        a("s_nop 7"); a("s_nop 7")
        a("s_memrealtime s[100:101]"); a("s_memtime s[92:93]"); a("s_waitcnt lgkmcnt(0)"); a("s_sub_u32 s92, s92, s94")
        a(f"s_lshl_b32 {S(sT0)}, {S(sG)}, 5"); a(f"s_add_u32 {S(sT0)}, {S(sT0)}, {S(sH)}")
        a(f"s_lshl_b32 {S(sT0)}, {S(sT0)}, 2"); a(f"s_add_u32 {S(sT0)}, {S(sT0)}, {S(sW)}"); a(f"s_lshl_b32 {S(sT0)}, {S(sT0)}, 8")
        a(f"s_add_u32 {S(sT0)}, {S(sT0)}, {WS_DBG}")
        a("v_mov_b32 v13, 0")
        for k, s in enumerate([96, 98, 100, chain.sR1, chain.sR2, 92, sCnt]):
            a(f"v_mov_b32 v12, s{s}")
            a(f"buffer_store_dword v12, v13, {S(sWS,4)}, {S(sT0)} offen offset:{128+4*k}")
    a.label("L_exit")
    a("s_endpgm")
    body = a.finish(cfg.get('verbose'))
    hdr = HEAD + f"""; @launch grid=(256,1,1) block=(256,1,1) lds=163840
.amdgcn_target "amdgcn-amd-amdhsa--gfx950"
.text
.globl {NAME}
.p2align 8
.type {NAME},@function
{NAME}:
"""
    tail = f""".section .rodata,"a"
.p2align 6
.amdhsa_kernel {NAME}
  .amdhsa_next_free_vgpr 512
  .amdhsa_next_free_sgpr 102
  .amdhsa_accum_offset 256
  .amdhsa_group_segment_fixed_size 0
  .amdhsa_kernarg_size 112
  .amdhsa_user_sgpr_count 2
  .amdhsa_user_sgpr_kernarg_segment_ptr 1
  .amdhsa_system_sgpr_workgroup_id_x 1
.end_amdhsa_kernel
"""
    return hdr + body + tail

DEF = dict(nv=6, h1a=10, h1d=2, h2t=6, h2b=5)
if __name__ == '__main__':
    cfg = dict(DEF); cfg.update(eval(sys.argv[2]) if len(sys.argv) > 2 else {})
    open(sys.argv[1], 'w').write(build(cfg))
```

```python
from common import *
import math, struct

KXB = 0
SAREA = 8192
TAREA = SAREA + 65536
MEMST = TAREA + 65536
VXB = MEMST + 8192
QB = VXB + 8192
RS = 288
KBUF = QB + 8 * RS
OB = KBUF + 8 * RS
LDS_END = OB + 8 * RS
RING = TAREA
NSLOT = 5
assert RING + NSLOT * 16384 <= 163840 and LDS_END <= 163840 and MEMST % 8192 == 0

vT, vL16, vIDX, vOWN, vQW, vQR, vKR, vTCH, vH1S, vMS, vWL, vFLAG = range(12)
TQ, PQ, KVQ, ONES = 12, 16, 20, 24
def O(i): return 32 + 8 * i
PERM0 = 128

sStep, sMemRd, sMemWr, sMemRst = 40, 41, 42, 43
sH1S = 44
sH1L, sTag, sKV, sKVM, sCc, sF1 = 48, 49, 50, 51, 52, 53
sPm = 54
RSTR = 8192 + 256 + 1024
sThr, sFast, sTch, sTinc, sKVMn = 56, 57, 57, 63, 53
sM0K, sM0V, sSlot, sR1, sR2 = 58, 59, 60, 61, 62
sSel = 64
sStamp = 72
vSELV = ONES + 1
vIDX3 = ONES + 5

OWN = [(m, t, c) for c in (0, 1) for m in 'qkv' for t in (0, 1)]
TREG = [O(1), O(2), O(3), O(7), O(8), O(9), O(10), O(11)]
WOORD = [(t, kap) for t in range(4) for kap in range(4)]
SREG = [O(7), O(8), O(11), O(0), O(2), O(3), O(9), O(10)]

def block_map():
    reg = {}; tidx = {}; sidx = {}
    nxt = PERM0
    for i, b in enumerate(OWN):
        if i < 8: reg[b] = TREG[i]; tidx[b] = i
        else: reg[b] = nxt; nxt += 8
    for m in 'qkv':
        for c in range(2, 8):
            for t in (0, 1):
                reg[(m, t, c)] = nxt; nxt += 8
    for i, b in enumerate(WOORD):
        key = ('o',) + b
        if i < 8: reg[key] = nxt; nxt += 8
        else: reg[key] = SREG[i - 8]; sidx[key] = i - 8
    assert nxt == 512
    return reg, tidx, sidx

REG, TIDX, SIDX = block_map()
ACC = {'q': O(4), 'k': O(5), 'v': O(6)}
def MCH(c): return O(0) + 4 * c


def chain_setup(a, cfg):
    g, c, t0, t1, t2, t3 = O(0), O(0) + 1, O(0) + 2, O(0) + 3, O(0) + 4, O(0) + 5
    lane = O(0) + 6
    srd_load(a, [(sA, 'Wq'), (sB, 'Wk'), (sC_, 'Wv'), (sD, 'Wo'), (sE, 'mem0')])
    a(f"v_mov_b32 {R(lane)}, v0")
    a(f"v_lshlrev_b32 {R(vL16)}, 4, v0")
    a(f"v_lshrrev_b32 {R(g)}, 4, v0")
    a(f"v_and_b32 {R(c)}, 15, v0")
    a(f"s_mov_b32 {S(sPm)}, 0xcccccccc"); a(f"s_mov_b32 {S(sPm+1)}, 0xcccccccc")
    a(f"s_mov_b32 {S(sSel)}, 0xaaaaaaaa"); a(f"s_mov_b32 {S(sSel+1)}, 0xaaaaaaaa")
    a(f"s_mov_b32 {S(sSel+2)}, 0xf0f0f0f0"); a(f"s_mov_b32 {S(sSel+3)}, 0xf0f0f0f0")
    a(f"v_mov_b32 {R(t0)}, 0x44444444"); a(f"v_mov_b32 {R(t1)}, 0xe4e4eeee")
    a(f"v_cndmask_b32 {R(vIDX)}, {R(t0)}, {R(t1)}, {S(sPm,2)}")
    a(f"s_lshl_b32 {S(sT0)}, {S(sW)}, 11"); a(f"s_add_u32 {S(sT1)}, {S(sT0)}, {MEMST}")
    a(f"v_add_u32 {R(vOWN)}, {S(sT1)}, {R(vL16)}")
    a(f"s_add_u32 {S(sM0K)}, {S(sT0)}, {KXB}"); a(f"s_add_u32 {S(sM0V)}, {S(sT0)}, {VXB}")
    a(f"s_lshl_b32 {S(sT1)}, {S(sW)}, 14"); a(f"s_add_u32 {S(sT1)}, {S(sT1)}, {SAREA}")
    a(f"v_add_u32 {R(vWL)}, {S(sT1)}, {R(vL16)}")
    a(f"s_lshl_b32 {S(sT1)}, {S(sW)}, 6"); a(f"s_add_u32 {S(sT1)}, {S(sT1)}, {QB}")
    a(f"v_mul_u32_u24 {R(t0)}, {2*RS}, {R(g)}")
    a(f"v_lshl_add_u32 {R(t0)}, {R(c)}, 2, {R(t0)}")
    a(f"v_add_u32 {R(vQW)}, {S(sT1)}, {R(t0)}")
    a(f"v_lshrrev_b32 {R(t0)}, 2, {R(c)}"); a(f"v_and_b32 {R(t1)}, 1, {R(c)}")
    a(f"v_lshl_add_u32 {R(t1)}, {R(t0)}, 1, {R(t1)}")
    a(f"v_mul_u32_u24 {R(t1)}, {RS}, {R(t1)}")
    a(f"v_lshl_add_u32 {R(t2)}, {R(g)}, 4, {R(t1)}")
    a(f"v_add_u32 {R(vQR)}, {QB}, {R(t2)}")
    a(f"v_and_b32 {R(t1)}, 2, {R(t0)}")
    a(f"v_add_u32 {R(t1)}, {R(t1)}, {R(c)}"); a(f"v_and_b32 {R(t1)}, 3, {R(t1)}")
    a(f"v_and_b32 {R(t2)}, 1, {R(t0)}")
    a(f"v_lshl_add_u32 {R(t1)}, {R(t2)}, 2, {R(t1)}")
    a(f"v_mul_u32_u24 {R(t1)}, {RS}, {R(t1)}")
    a(f"v_lshl_add_u32 {R(t1)}, {R(g)}, 4, {R(t1)}")
    a(f"v_add_u32 {R(vKR)}, {KBUF}, {R(t1)}")
    a(f"v_lshrrev_b32 {R(t0)}, 5, {R(lane)}"); a(f"v_mul_u32_u24 {R(t0)}, {RSTR}, {R(t0)}")
    a(f"v_and_b32 {R(t1)}, 31, {R(lane)}"); a(f"v_lshl_add_u32 {R(vH1S)}, {R(t1)}, 3, {R(t0)}")
    for t in range(4):
        a(f"s_add_u32 {S(sT0)}, {S(sH)}, {t}"); a(f"s_and_b32 {S(sT0)}, {S(sT0)}, 3")
        a(f"s_lshl_b32 {S(sT1)}, {S(sW)}, 2"); a(f"s_add_u32 {S(sT0)}, {S(sT0)}, {S(sT1)}")
        a(f"s_mul_i32 {S(sT0)}, {S(sT0)}, {2*RSTR}")
        a(f"s_lshr_b32 {S(sT1)}, {S(sH)}, 2"); a(f"s_lshl_b32 {S(sT1)}, {S(sT1)}, 8")
        a(f"s_add_u32 {S(sT0)}, {S(sT0)}, {S(sT1)}")
        a(f"s_add_u32 {S(sH1S+t)}, {S(sT0)}, {WS_PART + t*2048}")
    a(f"s_mul_i32 {S(sT0)}, {S(sH)}, {RSTR}"); a(f"s_add_u32 {S(sH1L)}, {S(sT0)}, {WS_PART}")
    a(f"s_lshr_b32 {S(sT0)}, {S(sH)}, 1"); a(f"s_and_b32 {S(sT0)}, {S(sT0)}, 3"); a(f"s_lshl_b32 {S(sT2)}, {S(sT0)}, 11")
    a(f"s_lshr_b32 {S(sT1)}, {S(sH)}, 4"); a(f"s_lshl_b32 {S(sT1)}, {S(sT1)}, 10"); a(f"s_add_u32 {S(sT2)}, {S(sT2)}, {S(sT1)}")
    a(f"s_bfe_u32 {S(sT1)}, {S(sH)}, 0x10003"); a(f"s_lshl_b32 {S(sT1)}, {S(sT1)}, 9"); a(f"s_add_u32 {S(sT2)}, {S(sT2)}, {S(sT1)}")
    a(f"s_and_b32 {S(sT1)}, {S(sH)}, 1"); a(f"s_lshl_b32 {S(sT1)}, {S(sT1)}, 7"); a(f"s_add_u32 {S(sT2)}, {S(sT2)}, {S(sT1)}")
    a(f"v_and_b32 {R(t2)}, 1, {R(g)}"); a(f"v_lshlrev_b32 {R(t0)}, 8, {R(t2)}")
    a(f"v_lshrrev_b32 {R(t1)}, 1, {R(g)}"); a(f"v_lshl_add_u32 {R(t0)}, {R(t1)}, 4, {R(t0)}")
    a(f"v_lshrrev_b32 {R(t3)}, 2, {R(c)}"); a(f"v_lshl_add_u32 {R(t0)}, {R(t3)}, 5, {R(t0)}")
    a(f"v_and_b32 {R(t3)}, 3, {R(c)}"); a(f"v_lshl_add_u32 {R(t0)}, {R(t3)}, 2, {R(t0)}")
    a(f"s_cmp_eq_u32 {S(sW)}, 0"); a(f"s_cselect_b32 {S(sT2)}, {S(sT2)}, {OOB:#x}")
    a(f"v_add_u32 {R(vMS)}, {S(sT2)}, {R(t0)}")
    a(f"s_lshl_b32 {S(sT2)}, {S(sT0)}, 8")
    a(f"s_lshr_b32 {S(sT1)}, {S(sH)}, 3"); a(f"s_lshl_b32 {S(sT1)}, {S(sT1)}, 6"); a(f"s_add_u32 {S(sT2)}, {S(sT2)}, {S(sT1)}")
    a(f"s_and_b32 {S(sT1)}, {S(sH)}, 1"); a(f"s_lshl_b32 {S(sT1)}, {S(sT1)}, 12"); a(f"s_add_u32 {S(sT2)}, {S(sT2)}, {S(sT1)}")
    a(f"v_lshlrev_b32 {R(t0)}, 5, {R(t2)}")
    a(f"v_lshl_add_u32 {R(t0)}, {R(t1)}, 10, {R(t0)}")
    a(f"v_lshrrev_b32 {R(t3)}, 3, {R(c)}"); a(f"v_lshl_add_u32 {R(t0)}, {R(t3)}, 11, {R(t0)}")
    a(f"v_and_b32 {R(t1)}, 7, {R(c)}"); a(f"v_lshl_add_u32 {R(t0)}, {R(t1)}, 2, {R(t0)}")
    for j in (0, 2, 3, 4, 6, 7): a(f"v_mov_b32 {R(ONES+j)}, 0x3f803f80")
    a(f"v_lshlrev_b32 {R(t1)}, 4, {R(t3)}"); a(f"v_mov_b32 {R(t2)}, 0x3f80")
    a(f"v_lshlrev_b32 {R(vSELV)}, {R(t1)}, {R(t2)}")
    a(f"v_bfe_u32 {R(t1)}, {R(c)}, 2, 1"); a(f"v_mul_u32_u24 {R(t1)}, 0xaaaa, {R(t1)}"); a(f"v_add_u32 {R(vIDX3)}, 0x4444, {R(t1)}")
    a(f"s_cmp_eq_u32 {S(sW)}, 1"); a(f"s_cselect_b32 {S(sT1)}, 4, 7"); a(f"v_lshlrev_b32 {R(vTCH)}, {S(sT1)}, {R(lane)}")
    a(f"s_cmp_eq_u32 {S(sW)}, 0"); a(f"s_cselect_b32 {S(sT1)}, {OOB:#x}, 0"); a(f"v_or_b32 {R(vTCH)}, {S(sT1)}, {R(vTCH)}")
    a(f"s_lshl_b32 {S(sT1)}, {S(sH)}, 8"); a(f"s_add_u32 {S(sF1)}, {S(sT1)}, {WS_FLAG + F_T1}")
    a(f"buffer_load_dword {R(t3)}, {R(t0)}, {S(sE,4)}, {S(sT2)} offen")
    a(f"s_mov_b32 {S(sCc)}, {f2u(128 ** -0.5 * math.log2(math.e)):#x}")
    a(f"s_mov_b32 {S(sR1)}, 0"); a(f"s_mov_b32 {S(sR2)}, 0")
    a(f"s_lshl_b32 {S(sT0)}, {S(sH)}, 21"); a(f"s_lshl_b32 {S(sT1)}, {S(sW)}, 10")
    a(f"s_add_u32 {S(sT0)}, {S(sT0)}, {S(sT1)}"); a(f"s_add_u32 {S(sKVM)}, {S(sT0)}, {WS_HD + R_M}")
    a(f"s_add_u32 {S(sT0)}, {S(sT0)}, {S(sT1)}"); a(f"s_add_u32 {S(sKV)}, {S(sT0)}, {WS_HD}")
    return t3


def chain_init_buffers(a, cfg, m0reg, sc):
    q = O(4)
    for i in range(4): a(f"v_mov_b32 {R(q+i)}, 0")
    a(f"s_lshl_b32 {S(sT2)}, {S(sW)}, 11"); a(f"s_add_u32 {S(sT2)}, {S(sT2)}, {S(sH1L)}")
    a(f"s_add_u32 {S(sT1)}, {S(sT2)}, {512*KB}")
    for so in (sT2, sT1):
        for t in range(2):
            a(f"buffer_store_dwordx4 {R(q,4)}, {R(vL16)}, {S(sWS,4)}, {S(so)} offen offset:{t*1024}{sc}")
    a(f"v_mov_b32 {R(q+4)}, -1")
    for slot in (1, 2, 3):
        a(f"s_mov_b32 {S(sT0)}, {WS_MEMR + slot*8192}")
        a(f"buffer_store_dword {R(q+4)}, {R(vMS)}, {S(sWS,4)}, {S(sT0)} offen{sc}")
    a("s_waitcnt vmcnt(7)")
    a(f"v_min_u32 {R(m0reg)}, 0xfffffffe, {R(m0reg)}")
    a(f"s_mov_b32 {S(sT0)}, {WS_MEMR}")
    a(f"buffer_store_dword {R(m0reg)}, {R(vMS)}, {S(sWS,4)}, {S(sT0)} offen{sc}")


def chain_load_weights(a, cfg, hook=None):
    lane = O(0) + 6
    vA = [TQ, TQ + 1]; vO = [TQ + 2, TQ + 3]; vTR = [PQ, PQ + 1, PQ + 2, PQ + 3]; vTO = [KVQ, KVQ + 1, KVQ + 2, KVQ + 3]
    t0, t1, t2, t3 = O(5), O(5) + 1, O(5) + 2, O(5) + 3
    a(f"v_lshrrev_b32 {R(t0)}, 4, {R(lane)}")
    a(f"v_lshlrev_b32 {R(t1)}, 1, {R(t0)}")
    a(f"v_and_b32 {R(t2)}, 15, {R(lane)}")
    a(f"v_xor_b32 {R(t1)}, {R(t1)}, {R(t2)}")
    a(f"v_lshlrev_b32 {R(t1)}, 4, {R(t1)}")
    a(f"v_lshrrev_b32 {R(t2)}, 1, {R(t0)}")
    a(f"v_and_b32 {R(t3)}, 1, {R(t0)}")
    a(f"s_lshl_b32 {S(sT0)}, {S(sW)}, 17"); a(f"s_lshl_b32 {S(sT1)}, {S(sH)}, 8"); a(f"s_add_u32 {S(sT0)}, {S(sT0)}, {S(sT1)}")
    a(f"v_lshlrev_b32 {R(t0)}, 16, {R(t2)}"); a(f"v_lshl_add_u32 {R(t0)}, {R(t3)}, 13, {R(t0)}")
    a(f"v_add_u32 {R(t0)}, {S(sT0)}, {R(t0)}")
    a(f"v_add_u32 {R(vA[0])}, {R(t0)}, {R(t1)}"); a(f"v_xor_b32 {R(vA[1])}, 128, {R(vA[0])}")
    a(f"s_lshr_b32 {S(sT0)}, {S(sW)}, 1"); a(f"s_lshl_b32 {S(sT0)}, {S(sT0)}, 15")
    a(f"s_and_b32 {S(sT1)}, {S(sW)}, 1"); a(f"s_lshl_b32 {S(sT1)}, {S(sT1)}, 13"); a(f"s_add_u32 {S(sT0)}, {S(sT0)}, {S(sT1)}")
    a(f"s_lshl_b32 {S(sT1)}, {S(sH)}, 17"); a(f"s_add_u32 {S(sT0)}, {S(sT0)}, {S(sT1)}")
    a(f"v_lshlrev_b32 {R(t0)}, 14, {R(t2)}"); a(f"v_lshl_add_u32 {R(t0)}, {R(t3)}, 10, {R(t0)}")
    a(f"v_add_u32 {R(t0)}, {S(sT0)}, {R(t0)}")
    a(f"v_add_u32 {R(vO[0])}, {R(t0)}, {R(t1)}"); a(f"v_xor_b32 {R(vO[1])}, 128, {R(vO[0])}")
    a(f"v_lshrrev_b32 {R(t0)}, 4, {R(lane)}")
    a(f"v_bfe_u32 {R(t1)}, {R(lane)}, 2, 2")
    a(f"v_lshl_add_u32 {R(t2)}, {R(t0)}, 3, {R(t1)}"); a(f"v_lshlrev_b32 {R(t2)}, 8, {R(t2)}")
    a(f"v_and_b32 {R(t0)}, 1, {R(t0)}"); a(f"v_lshl_add_u32 {R(t0)}, {R(t0)}, 2, {R(t1)}")
    a(f"s_lshl_b32 {S(sT0)}, {S(sW)}, 1")
    a(f"v_xor_b32 {R(t0)}, {S(sT0)}, {R(t0)}")
    a(f"v_lshl_add_u32 {R(t2)}, {R(t0)}, 5, {R(t2)}")
    a(f"v_and_b32 {R(t1)}, 3, {R(lane)}"); a(f"v_lshl_add_u32 {R(t2)}, {R(t1)}, 3, {R(t2)}")
    a(f"v_add_u32 {R(vTR[0])}, {RING}, {R(t2)}"); a(f"v_xor_b32 {R(vTR[1])}, 32, {R(vTR[0])}")
    a(f"v_add_u32 {R(vTR[2])}, {3*16384}, {R(vTR[0])}"); a(f"v_add_u32 {R(vTR[3])}, {3*16384}, {R(vTR[1])}")
    a(f"v_bfe_u32 {R(t0)}, {R(lane)}, 4, 1")
    a(f"v_bfe_u32 {R(t1)}, {R(lane)}, 2, 1")
    a(f"v_lshl_add_u32 {R(t3)}, {R(t0)}, 1, {R(t1)}"); a(f"v_lshlrev_b32 {R(t3)}, 1, {R(t3)}")
    a(f"v_lshlrev_b32 {R(t2)}, 11, {R(t0)}"); a(f"v_lshl_add_u32 {R(t2)}, {R(t1)}, 9, {R(t2)}")
    a(f"v_lshrrev_b32 {R(t0)}, 5, {R(lane)}"); a(f"v_lshl_add_u32 {R(t2)}, {R(t0)}, 10, {R(t2)}")
    a(f"v_bfe_u32 {R(t0)}, {R(lane)}, 3, 1")
    a(f"v_add_u32 {R(t0)}, {S(sT0)}, {R(t0)}"); a(f"v_xor_b32 {R(t0)}, {R(t0)}, {R(t3)}")
    a(f"v_lshl_add_u32 {R(t2)}, {R(t0)}, 5, {R(t2)}")
    a(f"v_and_b32 {R(t1)}, 3, {R(lane)}"); a(f"v_lshl_add_u32 {R(t2)}, {R(t1)}, 3, {R(t2)}")
    a(f"v_add_u32 {R(vTO[0])}, {RING}, {R(t2)}"); a(f"v_xor_b32 {R(vTO[1])}, {32+256}, {R(vTO[0])}")
    a(f"v_add_u32 {R(vTO[2])}, {3*16384}, {R(vTO[0])}"); a(f"v_add_u32 {R(vTO[3])}, {3*16384}, {R(vTO[1])}")
    sAo = sStamp
    for t in range(4):
        a(f"s_add_u32 {S(sT0)}, {S(sH)}, {t}"); a(f"s_and_b32 {S(sT0)}, {S(sT0)}, 3"); a(f"s_lshl_b32 {S(sAo+t)}, {S(sT0)}, 8")
    sMb = sStamp + 4
    a(f"s_lshl_b32 {S(sMb)}, {S(sW)}, 12"); a(f"s_add_u32 {S(sMb)}, {S(sMb)}, {RING}")
    slabs = [(m, k) for m in 'qkv' for k in range(8)] + [('o', t, kc) for t in range(4) for kc in (0, 1)]
    srd = {'q': sA, 'k': sB, 'v': sC_, 'o': sD}

    def dma(n):
        sl = slabs[n]; slot = n % NSLOT
        for i in range(4):
            a(f"s_add_u32 m0, {S(sMb)}, {slot*16384 + i*1024}")
            if sl[0] == 'o':
                a(f"s_add_u32 {S(sT0)}, {S(sAo+sl[1])}, {sl[2]*65536 + (0, 4, 2, 6)[i]*1024}"); vo = vO[i >> 1]
            else:
                a(f"s_mov_b32 {S(sT0)}, {sl[1]*64*8192 + i*2*8192}"); vo = vA[i >> 1]
            a(f"buffer_load_dwordx4 {R(vo)}, {S(srd[sl[0]],4)}, {S(sT0)} offen lds")

    for n in range(NSLOT - 1): dma(n)
    done = a.newlabel('cw_done')
    labs = [a.newlabel(f'cw{w}') for w in range(4)]
    for w in range(1, 4):
        a(f"s_cmp_eq_u32 {S(sW)}, {w}"); a(f"s_cbranch_scc1 {labs[w]}")
    tmp = [O(4), O(5), O(6), O(0)]
    for w in range(4):
        a.label(labs[w])
        pend = []
        for n, sl in enumerate(slabs):
            ahead = min(len(slabs) - 1, n + NSLOT - 2) - n
            a(f"s_waitcnt vmcnt({4*ahead}) lgkmcnt(0)")
            a("s_barrier")
            if n + NSLOT - 1 < len(slabs): dma(n + NSLOT - 1)
            if n == 6 and w == 0 and hook: hook()
            for r, idx in pend:
                a(f"ds_write_b128 {R(vWL)}, {R(r,4)} offset:{idx*2048}")
                a(f"ds_write_b128 {R(vWL)}, {R(r+4,4)} offset:{idx*2048+1024}")
            pend = []
            slot = n % NSLOT
            for tp in (0, 1):
                if sl[0] == 'o': key = ('o', sl[1], 2 * sl[2] + tp)
                else: key = (sl[0], tp, sl[1] ^ (2 * w))
                if key in SIDX:
                    r = tmp[(2 * n + tp) % 4]; pend.append((r, SIDX[key]))
                else: r = REG[key]
                hi = 0 if slot < 3 else 2
                base = (slot if slot < 3 else slot - 3) * 16384
                for j in (0, 2, 4, 6):
                    if sl[0] == 'o':
                        a(f"ds_read_b64_tr_b16 {R(r+j,2)}, {R(vTO[hi + ((j>>1)&1)])} offset:{base + (32*tp + 16*(j>>2))*256}")
                    else:
                        a(f"ds_read_b64_tr_b16 {R(r+j,2)}, {R(vTR[hi + tp])} offset:{base + (32*(j>>2) + 4*((j>>1)&1))*256}")
        a("s_waitcnt lgkmcnt(0)")
        for r, idx in pend:
            a(f"ds_write_b128 {R(vWL)}, {R(r,4)} offset:{idx*2048}")
            a(f"ds_write_b128 {R(vWL)}, {R(r+4,4)} offset:{idx*2048+1024}")
        if w < 3: a(f"s_branch {done}")
    a.label(done)
    a("s_barrier")
    a(f"v_add_u32 {R(vT)}, 65536, {R(vWL)}")
    for i, r in enumerate(TREG):
        a(f"ds_write_b128 {R(vT)}, {R(r,4)} offset:{i*2048}")
        a(f"ds_write_b128 {R(vT)}, {R(r+4,4)} offset:{i*2048+1024}")
    a("s_waitcnt lgkmcnt(0)")


def kv_dma(a, which, sc):
    if which == 'k':
        a(f"s_mov_b32 m0, {S(sM0K)}"); so = S(sKV)
    else:
        a(f"s_mov_b32 m0, {S(sM0V)}"); a(f"s_add_u32 {S(sT0)}, {S(sKV)}, 8192"); so = S(sT0)
    a(f"buffer_load_dwordx4 {R(vL16)}, {S(sWS,4)}, {so} offen sc1 lds")
    a(f"buffer_load_dwordx4 {R(vL16)}, {S(sWS,4)}, {so} offen offset:1024 sc1 lds")


def chain_loop(a, cfg, sc, exit_label):
    diag = cfg.get('diag')
    sp = cfg.get('sp', ['m', 'q', 'k', 'sm', 'rs', 'wo', 'st', 'e', 'pub'])
    def stamp(name):
        if diag and name in sp: a(f"s_memtime {S(sStamp + 2*sp.index(name), 2)}")
    ds = Cnt(a, 'lgkmcnt', 15)
    def SM(acc, A, blk, mod=''): a(f"v_smfmac_f32_16x16x64_bf16 {R(acc,4)}, {R(A,4)}, {R(blk,8)}, {R(vIDX)}{mod}")
    def QKV(m, t, c): SM(ACC[m] + 4 * t, MCH(c), REG[(m, t, c)])
    def DM(d, A, B, c=None): a(f"v_mfma_f32_16x16x32_bf16 {R(d,4)}, {R(A,4)}, {R(B,4)}, {R(d,4) if c is None else c}")
    def rd128(dst, ad, off, tag): a(f"ds_read_b128 {R(dst,4)}, {R(ad)} offset:{off}"); ds.issue(tag)
    def stream(i):
        rd128(SREG[i], vWL, i * 2048, f'S{i}'); rd128(SREG[i] + 4, vWL, i * 2048 + 1024, f'S{i}')
    def z2(r): a(f"v_mov_b64 {R(r,2)}, 0")
    def zero(r, n):
        for i in range(0, n, 2): z2(r + i)
    def add(d, x, y): a(f"v_add_f32 {R(d)}, {R(x)}, {R(y)}")
    def mul(d, x, y): a(f"v_mul_f32 {R(d)}, {R(x)}, {R(y)}")
    def cvt(d, x, y): a(f"v_cvt_pk_bf16_f32 {R(d)}, {R(x)}, {R(y)}")
    def wr32(src, off, tag): a(f"ds_write_b32 {R(vQW)}, {R(src)} offset:{off}"); ds.issue(tag)
    def nops(n):
        for i in range(n): a("s_nop 3")
    def dmai(so, off):
        if not cfg.get('x_nodma'): a(f"buffer_load_dwordx4 {R(vL16)}, {S(sWS,4)}, {so} offen offset:{off} sc1 lds")
    L_top = a.newlabel('c_top'); L_p2 = a.newlabel('c_p2'); L_go2 = a.newlabel('c_go2'); L_r2 = a.newlabel('c_r2')
    L_dump = a.newlabel('c_dump'); L_oth = a.newlabel('c_oth'); L_last = a.newlabel('c_last')
    dma_on = not cfg.get('nodma')

    def h2load():
        a(f"buffer_load_dwordx4 {R(MCH(0),4)}, {R(vL16)}, {S(sWS,4)}, {S(sMemRd)} offen sc1")
        a(f"buffer_load_dwordx4 {R(MCH(1),4)}, {R(vL16)}, {S(sWS,4)}, {S(sMemRd)} offen offset:1024 sc1")
    D2 = cfg.get('d2', 3)
    def ring_regs():
        a(f"s_add_u32 {S(sKV)}, {S(sKV)}, {REC}"); a(f"s_add_u32 {S(sTch)}, {S(sTch)}, {S(sTinc)}")
        a(f"s_add_u32 {S(sT0)}, {S(sSlot)}, 8192"); a(f"s_and_b32 {S(sT0)}, {S(sT0)}, 0x7fff"); a(f"s_add_u32 {S(sMemWr)}, {S(sT0)}, {WS_MEMR}")
        a(f"s_add_u32 {S(sT2)}, {S(sSlot)}, {3*8192}"); a(f"s_and_b32 {S(sT2)}, {S(sT2)}, 0x7fff"); a(f"s_add_u32 {S(sMemRst)}, {S(sT2)}, {WS_MEMR}")
        a(f"s_mov_b32 {S(sSlot)}, {S(sT0)}")
    def step_regs():
        for t in range(4): a(f"s_xor_b32 {S(sH1S+t)}, {S(sH1S+t)}, {512*KB}")
        a(f"s_xor_b32 {S(sH1L)}, {S(sH1L)}, {512*KB}")
        a(f"s_and_b32 {S(sT0)}, {S(sStep)}, 1"); a(f"s_xor_b32 {S(sTag)}, {S(sTag)}, {S(sT0)}")
        a(f"s_add_u32 {S(sStep)}, {S(sStep)}, 1")
        ring_regs()
    def kvq_fix():
        for i in range(4): a(f"v_min_u32 {R(KVQ+i)}, 0xfffffffe, {R(KVQ+i)}")
    def xors():
        a(f"v_xor_b32 {R(TQ+1)}, 2048, {R(vOWN)}"); a(f"v_xor_b32 {R(TQ+2)}, 4096, {R(vOWN)}"); a(f"v_xor_b32 {R(TQ+3)}, 6144, {R(vOWN)}")

    a(f"s_mov_b64 {S(sE,2)}, {S(sWS,2)}")
    a(f"s_mov_b32 {S(sStep)}, 0"); a(f"s_mov_b32 {S(sSlot)}, 0"); a(f"s_mov_b32 {S(sTag)}, 1")
    a(f"s_lshl_b32 {S(sT0)}, {S(sW)}, 11"); a(f"s_add_u32 {S(sMemRd)}, {S(sT0)}, {WS_MEMR}")
    a(f"s_mul_i32 {S(sT0)}, {S(sW)}, 6144"); a(f"s_add_u32 {S(sT0)}, {S(sT0)}, {S(sKV)}"); a(f"s_add_u32 {S(sTch)}, {S(sT0)}, {(REC * (cfg.get('tdist', 1) - 1) - 16384) & 0xffffffff:#x}")
    a(f"s_cmp_eq_u32 {S(sW)}, 1"); a(f"s_cselect_b32 {S(sTch)}, {S(sF1)}, {S(sTch)}"); a(f"s_cselect_b32 {S(sTinc)}, 0, {REC}")
    kv_dma(a, 'k', sc); kv_dma(a, 'v', sc)
    zero(O(4), 24); xors(); ring_regs()
    a(f"s_mov_b32 {S(sKVMn)}, {S(sKVM)}"); a(f"s_add_u32 {S(sKVM)}, {S(sKVM)}, 4096")
    for k in range(D2): h2load()
    a.label(L_top)
    m = MCH(0)
    a(f"s_waitcnt vmcnt({2*(D2-1)}) lgkmcnt(0)")
    stamp('arr')
    def h2chk():
        a(f"v_max3_u32 {R(TQ)}, {R(m)}, {R(m+1)}, {R(m+2)}")
        a(f"v_max3_u32 {R(vT)}, {R(m+3)}, {R(m+4)}, {R(m+5)}")
        a(f"v_max3_u32 {R(TQ)}, {R(TQ)}, {R(m+6)}, {R(m+7)}")
        a(f"v_max_u32 {R(TQ)}, {R(TQ)}, {R(vT)}")
        a(f"v_cmp_eq_u32 vcc, -1, {R(TQ)}")
    h2chk()
    a.label(L_p2)
    QKV(*OWN[0]); stamp('m')
    a(f"ds_write_b128 {R(vOWN)}, {R(MCH(0),4)}")
    QKV(*OWN[1])
    a(f"ds_write_b128 {R(vOWN)}, {R(MCH(1),4)} offset:1024")
    a("s_cmp_lg_u64 vcc, 0")
    QKV(*OWN[2])
    a(f"s_cbranch_scc1 {L_r2}")
    a.label(L_go2)
    a(f"v_mov_b32 {R(TQ)}, -1")
    QKV(*OWN[3])
    a(f"v_mov_b32 {R(PQ+2)}, 0")
    QKV(*OWN[4])
    nb1 = cfg.get('nb1', 6)
    for b in OWN[5:nb1]: QKV(*b)
    a("s_waitcnt lgkmcnt(0)"); a("s_barrier")
    stamp('b1')
    order = [(tau, kap) for kap in range(4) for tau in (0, 1)]
    kxreg = {tk: O(7) + 4 * i for i, tk in enumerate(order)}
    rds = [lambda c=c: rd128(MCH(c), TQ + (c >> 1), (c & 1) * 1024, f'M{c}') for c in range(2, 8)]
    rds += [lambda tk=tk: rd128(kxreg[tk], vL16, KXB + (tk[0] * 4 + tk[1]) * 1024, 'KX') for tk in order]
    rds.pop(0)()
    for i, b in enumerate(OWN[nb1:12]):
        QKV(*b)
        rds.pop(0)()
        if dma_on and i == 1 and not cfg.get('x_notouch'): a(f"buffer_load_dword {R(vFLAG)}, {R(vTCH)}, {S(sWS,4)}, {S(sTch)} offen sc1")
        if dma_on and i == 3: a(f"buffer_store_dwordx4 {R(KVQ,4)}, {R(vL16)}, {S(sWS,4)}, {S(sKVM)} offen sc1")
    seq = [(t, c) for c in range(2, 6) for t in (0, 1)] + [(0, 6), (0, 7), (1, 6), (1, 7)]
    qa = ACC['q']; ka = ACC['k']; va = ACC['v']
    sal = [f"buffer_store_dword {R(TQ)}, {R(vMS)}, {S(sWS,4)}, {S(sMemRst)} offen{sc}",
           f"s_mov_b32 {S(sKVM)}, {S(sKVMn)}\ns_add_u32 {S(sKVMn)}, {S(sKVMn)}, {REC}",
           f"s_lshl_b32 {S(sT0)}, {S(sW)}, 11\ns_add_u32 {S(sMemRd)}, {S(sT0)}, {S(sMemWr)}",
           f"s_add_u32 {S(sT1)}, {S(sH1L)}, 4096\ns_add_u32 {S(sT3)}, {S(sKV)}, 8192", f"s_mov_b32 m0, {S(sM0K)}"]
    for i, (t, c) in enumerate(seq):
        if i == 0: ds.wait('M3')
        if i == 4: ds.wait('M7')
        QKV('q', t, c)
        if rds: rds.pop(0)()
        elif sal: a(sal.pop(0))
    assert not rds and not sal
    stamp('q')
    add(qa, qa, qa + 2)
    qf = [O(11), O(11) + 4, O(0), O(0) + 4]
    def bq():
        a(f"s_waitcnt vmcnt({3 if dma_on else 1}) lgkmcnt(0)"); ds.reset(); a("s_barrier")
    side = [lambda: add(qa + 1, qa + 1, qa + 3), lambda: add(qa + 4, qa + 4, qa + 6), lambda: cvt(qa + 2, qa, qa + 4),
            lambda: (wr32(qa + 2, 0, 'QW'), add(qa + 5, qa + 5, qa + 7)), lambda: cvt(qa + 3, qa + 1, qa + 5),
            lambda: wr32(qa + 3, RS, 'QW'), None, None, None, bq, lambda: rd128(qf[0], vQR, 0, 'QF'),
            lambda: (rd128(qf[1], vQR, 64, 'QF'), add(ka, ka, ka + 2))]
    for i, (t, c) in enumerate(seq):
        QKV('k', t, c)
        if side[i]: side[i]()
    stamp('k')
    vl = [('v', t, c) for t, c in seq]
    sx = O(4); X = O(5) + 4; sm = O(5); mx, tt, mc, mc1 = TQ, TQ + 1, TQ + 2, TQ + 3
    oa = O(1); lacc = O(2)
    kf = [O(7), O(7) + 4, O(8), O(8) + 4]
    pvb = [O(9), O(10)]
    QKV(*vl[0]); rd128(qf[2], vQR, 128, 'QF'); add(ka + 1, ka + 1, ka + 3)
    QKV(*vl[1]); rd128(qf[3], vQR, 192, 'QF')
    add(ka + 4, ka + 4, ka + 6); add(ka + 5, ka + 5, ka + 7)
    cvt(KVQ, ka, ka + 4); cvt(KVQ + 1, ka + 1, ka + 5)
    QKV(*vl[2]); wr32(KVQ, KBUF - QB, 'KW'); wr32(KVQ + 1, KBUF - QB + RS, 'KW')
    stamp('kw')
    QKV(*vl[3]); ds.wait('QF')
    def SX(i):
        tau, kap = order[i]
        DM(sx + 4 * tau, kxreg[(tau, kap)], qf[kap], '0' if kap == 0 else None)
    SX(0)
    z2(oa); z2(oa + 2)
    SX(1)
    z2(oa + 4); z2(oa + 6)
    SX(2); ds.drain(); a("s_barrier")
    stamp('b3')
    rd128(kf[0], vKR, 0, 'KF0')
    SX(3); rd128(kf[1], vKR, 64, 'KF1')
    SX(4); rd128(kf[2], vKR, 128, 'KF2')
    SX(5); rd128(kf[3], vKR, 192, 'KF3')
    SX(6)
    def vx(t, hh): a(f"ds_read_b64 {R(pvb[t]+2+4*hh,2)}, {R(vOWN)} offset:{8192 + t*1024 + hh*8}"); ds.issue('VX')
    vx(0, 0); vx(0, 1)
    SX(7)
    nv = cfg.get('nv', 6)
    sel = [f"v_cndmask_b32 {R(X+i)}, {R(sx+i)}, {R(sx+4+i)}, {S(sPm,2)}" for i in range(4)]
    pre = [f"v_max3_f32 {R(mx)}, {R(sx)}, {R(sx+1)}, {R(sx+2)}", f"v_max3_f32 {R(tt)}, {R(sx+4)}, {R(sx+5)}, {R(sx+6)}",
           f"v_max3_f32 {R(mx)}, {R(mx)}, {R(sx+3)}, {R(sx+7)}", f"v_max_f32 {R(mx)}, {R(mx)}, {R(tt)}",
           f"v_mov_b32 {R(tt)}, {R(mx)}", sel[0], sel[1], f"v_permlane32_swap_b32 {R(mx)}, {R(tt)}", sel[2], sel[3]]
    for i in range(4, nv):
        QKV(*vl[i])
        if i == 4: vx(1, 0); vx(1, 1)
        if i == nv - 1: ds.wait('KF3')
        a(pre.pop(0))
    stamp('sm')
    for kap in range(4):
        DM(sm, kf[kap], qf[kap], '0' if kap == 0 else None)
        for k in range(2):
            if pre: a(pre.pop(0))
    assert not pre
    rest = vl[nv:]
    def sh(i): rd128(SREG[i >> 1] + 4 * (i & 1), vWL, i * 1024, f'S{i>>1}')
    nonv = [lambda: sh(0), lambda: sh(1), lambda: (ds.wait('VX'), sh(2))]
    nonv += [lambda: sh(3), lambda: sh(4)]
    nonv += [lambda: sh(5)]
    def V():
        if rest: QKV(*rest.pop(0))
        if nonv: nonv.pop(0)()
    V(); a(f"v_max_f32 {R(mx)}, {R(mx)}, {R(tt)}")
    V()
    stamp('s0')
    a(f"v_max3_f32 {R(tt)}, {R(sm)}, {R(sm+1)}, {R(sm+2)}")
    a(f"v_max3_f32 {R(mx)}, {R(mx)}, {R(tt)}, {R(sm+3)}")
    a(f"v_mov_b32 {R(tt)}, {R(mx)}")
    V()
    a(f"v_permlane16_swap_b32 {R(mx)}, {R(tt)}")
    V()
    a(f"v_max_f32 {R(mx)}, {R(mx)}, {R(tt)}")
    V()
    a(f"v_mul_f32 {R(mc)}, {S(sCc)}, {R(mx)}")
    V()
    assert not rest and not nonv
    stamp('s1')
    a(f"v_fma_f32 {R(mc1)}, {R(mx)}, {S(sCc)}, 1.0")
    for r in (X, X + 1, X + 2, X + 3): a(f"v_fma_f32 {R(r)}, {R(r)}, {S(sCc)}, -{R(mc)}")
    for r in (sm, sm + 1): a(f"v_fma_f32 {R(r)}, {R(r)}, {S(sCc)}, -{R(mc1)}")
    for r in (X, X + 1, X + 2, X + 3, sm, sm + 1): a(f"v_exp_f32 {R(r)}, {R(r)}")
    add(va, va, va + 2); add(va + 1, va + 1, va + 3); cvt(pvb[0], va, va + 1)
    cvt(PQ + 1, X, X + 1); cvt(PQ + 3, X + 2, X + 3)
    a(f"v_permlane16_swap_b32 {R(pvb[0])}, {R(pvb[0]+4)}")
    cvt(PQ, sm, sm + 1)
    add(va + 4, va + 4, va + 6); add(va + 5, va + 5, va + 7)
    SM(oa, PQ, pvb[0], ' abid:1')
    stamp('rs'); sh(6)
    cvt(pvb[1], va + 4, va + 5)
    z2(lacc); z2(lacc + 2)
    a(f"v_permlane16_swap_b32 {R(pvb[1])}, {R(pvb[1]+4)}")
    a("s_nop 0")
    SM(lacc, PQ, ONES, ' abid:1'); sh(7)
    SM(oa + 4, PQ, pvb[1], ' abid:1')
    stamp('pv')
    if dma_on: dmai(S(sKV), 0); dmai(S(sKV), 1024)
    add(oa, oa, oa + 2); add(oa + 1, oa + 1, oa + 3)
    add(lacc, lacc, lacc + 2); add(lacc + 1, lacc + 1, lacc + 3)
    a(f"v_rcp_f32 {R(lacc)}, {R(lacc)}"); a(f"v_rcp_f32 {R(lacc+1)}, {R(lacc+1)}")
    add(oa + 4, oa + 4, oa + 6); add(oa + 5, oa + 5, oa + 7)
    mul(oa, oa, lacc); mul(oa + 4, oa + 4, lacc)
    cvt(oa + 2, oa, oa + 4); wr32(oa + 2, OB - QB, 'OW')
    mul(oa + 1, oa + 1, lacc + 1); mul(oa + 5, oa + 5, lacc + 1)
    cvt(oa + 3, oa + 1, oa + 5); wr32(oa + 3, OB - QB + RS, 'OW')
    stamp('ow')
    if dma_on: a(f"s_mov_b32 m0, {S(sM0V)}")
    cvt(KVQ + 2, va, va + 1); cvt(KVQ + 3, va + 4, va + 5)
    if dma_on: dmai(S(sT3), 0); dmai(S(sT3), 1024)
    oacc = [O(5), O(5) + 4, O(4), O(4) + 4]
    zero(O(5), 8); zero(O(4), 8)
    a(f"s_cmp_eq_u32 {S(sStep)}, {cfg.get('nsteps', 64) - 1}"); a(f"s_cbranch_scc1 {L_last}")
    of = [PQ, TQ, O(6), O(6) + 4]
    tre = []
    for i, r in enumerate(TREG):
        tre += [f"ds_read_b128 {R(r,4)}, {R(vT)} offset:{i*2048}", f"ds_read_b128 {R(r+4,4)}, {R(vT)} offset:{i*2048+1024}"]
    ds.drain(); a("s_barrier")
    stamp('b4')
    for kap in range(4): rd128(of[kap], vQR, OB - QB + 64 * kap, f'OF{kap}')
    kvq_fix()
    a(f"v_add_u32 {R(vT)}, 65536, {R(vWL)}")
    a(f"s_cmp_lg_u32 {S(sW)}, 0")
    def outpost(t):
        d = oacc[t]
        return [f"v_cvt_pk_bf16_f32 {R(d)}, {R(d)}, {R(d+1)}", f"v_cvt_pk_bf16_f32 {R(d+1)}, {R(d+2)}, {R(d+3)}",
                f"v_and_or_b32 {R(d)}, {R(d)}, -2, {S(sTag)}",
                f"buffer_store_dwordx2 {R(d,2)}, {R(vH1S)}, {S(sWS,4)}, {S(sH1S+t)} offen{sc}"]
    pend = []
    for i, (t, kap) in enumerate(WOORD):
        key = ('o', t, kap)
        if t == 0: ds.wait(f'OF{kap}')
        if i == 12: ds.drain()
        SM(oacc[t], of[kap], REG[key])
        if i == 0: stamp('wo')
        if 1 <= i <= 8 and not cfg.get('x_nosh'): sh(7 + i)
        if i in (3, 7, 11, 15): stamp(f'w{i}')
        if pend:
            if kap == 1: a(pend[0])
            if kap == 2: a(pend[1])
            if kap == 3: a(pend[2]); a(pend[3])
        if kap == 3: pend = outpost(t)
    for x in (pend[0], pend[2], pend[1], pend[3]): a(x)
    stamp('st')
    a(f"s_cbranch_scc1 {L_oth}")
    SEL = PQ; y = TQ; ck = O(6); SELD = O(6) + 4; yb = O(0); y3 = O(0) + 4; pv_ = vFLAG
    RA = [O(1), O(2), O(3), O(7)]; RB = [O(8), O(9), O(10), O(11)]; X3 = [O(5), O(4)]
    NX = cfg.get('nx', 2)
    def h1load(t, r):
        so = S(sH1L) if t < 2 else S(sT1)
        for u in range(2):
            a(f"buffer_load_dwordx4 {R(r+4*u,4)}, {R(vL16)}, {S(sWS,4)}, {so} offen offset:{(t&1)*2048 + u*1024} sc1")
    def h1round(rr):
        for t in range(4): h1load(t, rr[t])
    g = cfg.get('h1', [1, 1, 3, 0, 3, 3, 1])
    nops(g[0]); h1load(0, RA[0])
    a(f"v_cndmask_b32 {R(SEL)}, {R(vSELV)}, 0, {S(sSel,2)}"); a(f"v_cndmask_b32 {R(SEL+1)}, 0, {R(vSELV)}, {S(sSel,2)}")
    a(f"v_mov_b64 {R(SEL+2,2)}, {R(SEL,2)}")
    a(f"v_cndmask_b32 {R(SELD)}, {R(SEL)}, 0, {S(sSel+2,2)}"); a(f"v_cndmask_b32 {R(SELD+1)}, 0, {R(SEL)}, {S(sSel+2,2)}")
    a(f"v_cndmask_b32 {R(SELD+2)}, {R(SEL+1)}, 0, {S(sSel+2,2)}"); a(f"v_cndmask_b32 {R(SELD+3)}, 0, {R(SEL+1)}, {S(sSel+2,2)}")
    z2(y); z2(yb)
    for t in (1, 2, 3):
        nops(g[t]); h1load(t, RA[t])
    for k in range(NX):
        nops(g[4 + k]); h1load(3, X3[k])
    nops(g[6]); h1round(RB)
    def publish(y, srd=sWS):
        cvt(pv_, y, y + 1)
        a(f"v_min_u32 {R(pv_)}, 0xfffffffe, {R(pv_)}")
        a(f"buffer_store_dword {R(pv_)}, {R(vMS)}, {S(srd,4)}, {S(sMemWr)} offen{sc}")
    def early(rr, y, n):
        for t in range(3):
            r = rr[t]
            a(f"s_waitcnt vmcnt({n + 4 - 2*t})")
            a(f"v_smfmac_f32_16x16x64_bf16 {R(y,4)}, {R(SEL,4)}, {R(r,8)}, {R(vIDX3)}")
            a(f"v_bitop3_b32 {R(ck+1)}, {R(r)}, {R(r+2)}, {S(sTag)} bitop3:0x7e")
            a(f"v_bitop3_b32 {R(ck+2)}, {R(r+4)}, {R(r+6)}, {S(sTag)} bitop3:0x7e")
            if t: a(f"v_or3_b32 {R(ck)}, {R(ck)}, {R(ck+1)}, {R(ck+2)}")
            else: a(f"v_or_b32 {R(ck)}, {R(ck+1)}, {R(ck+2)}")
    def last(r, y, n, fail):
        a(f"s_waitcnt vmcnt({n + 1})")
        DM(y3, SELD, r, R(y, 4))
        a(f"v_bitop3_b32 {R(ck+1)}, {R(r)}, {R(r+2)}, {S(sTag)} bitop3:0x7e")
        a(f"v_or_b32 {R(ck+1)}, {R(ck)}, {R(ck+1)}")
        a(f"s_waitcnt vmcnt({n})")
        DM(y3, SELD, r + 4)
        a(f"v_bitop3_b32 {R(ck+2)}, {R(r+4)}, {R(r+6)}, {S(sTag)} bitop3:0x7e")
        a(f"v_bitop3_b32 {R(ck+1)}, {R(ck+1)}, {R(ck+2)}, 1 bitop3:0xa8")
        a(f"v_cmp_ne_u32 vcc, 0, {R(ck+1)}")
        a("s_cmp_eq_u64 vcc, 0"); a(f"s_cselect_b32 {S(sE+2)}, {WS_SIZE:#x}, 0")
        publish(y3, sE)
        a(f"s_cbranch_scc0 {fail}")
    def attempt(rr, y, n, fail):
        early(rr, y, n + 2); last(rr[3], y, n, fail)
    L_fa = a.newlabel('c_fa'); L_fb = a.newlabel('c_fb'); L_fc = a.newlabel('c_fc'); L_late = a.newlabel('c_late'); L_pub = a.newlabel('c_pub')
    L_x = [a.newlabel(f'c_x{k}') for k in range(NX)] + [L_fa]; L_ok = a.newlabel('c_ok')
    early(RA, y, 10 + 2 * NX); stamp('e'); last(RA[3], y, 8 + 2 * NX, L_x[0])
    a.label(L_ok)
    stamp('pub')
    for x in tre[:8]: a(x)
    nops(cfg.get('h2a', 4))
    a("s_barrier")
    h2load()
    a.label(L_pub)
    xors(); step_regs()
    if D2 > 2: h2load()
    a(f"s_waitcnt vmcnt({5 if D2 > 2 else 3})")
    for x in tre[8:]: a(x)
    zero(O(4), 24)
    nops(cfg.get('h2c', 0))
    if D2 > 1: h2load()
    if diag:
        a(f"s_cmp_eq_u32 {S(sStep)}, {diag+1}"); a(f"s_cbranch_scc1 {L_dump}")
    a(f"s_branch {L_top}")
    a.label(L_last)
    kvq_fix()
    a(f"buffer_store_dwordx4 {R(KVQ,4)}, {R(vL16)}, {S(sWS,4)}, {S(sKVM)} offen sc1")
    a(f"s_branch {exit_label}")
    for k in range(NX):
        a.label(L_x[k])
        if diag: a(f"s_add_u32 {S(sR1)}, {S(sR1)}, 1")
        last(X3[k], y, 8 + 2 * (NX - 1 - k) + k + 1, L_x[k + 1])
        a(f"s_branch {L_ok if k == 0 else L_late}")
    a.label(L_fa)
    if diag: a(f"s_add_u32 {S(sR1)}, {S(sR1)}, 65536")
    L_fa2 = a.newlabel('c_fa2')
    a.label(L_fa2)
    h1round(RA); z2(y)
    attempt(RB, yb, 8, L_fb)
    a(f"s_branch {L_late}")
    a.label(L_fb)
    h1round(RB); z2(yb)
    if diag: a(f"s_add_u32 {S(sR1)}, {S(sR1)}, 65536")
    L_chk = a.newlabel('c_chk')
    attempt(RA, y, 8, L_chk)
    a(f"s_branch {L_late}")
    a.label(L_chk)
    a(f"s_add_u32 {S(sCnt)}, {S(sCnt)}, 1"); a(f"s_cmp_lt_u32 {S(sCnt)}, {LIM}")
    a(f"s_cbranch_scc1 {L_fa2}")
    publish(y3)
    a.label(L_late)
    stamp('pub')
    nops(cfg.get('h2l', 2))
    a("s_barrier")
    h2load()
    a(f"s_waitcnt vmcnt(3)")
    for x in tre[:8]: a(x)
    a(f"s_branch {L_pub}")
    a.label(L_oth)
    if cfg.get('trace'):
        a("s_waitcnt lgkmcnt(0)")
        a(f"v_writelane_b32 {R(vMS)}, {S(sStamp + 2*sp.index('st'))}, 0") if False else None
        a(f"s_lshl_b32 {S(sT0)}, {S(sH)}, 2"); a(f"s_add_u32 {S(sT0)}, {S(sT0)}, {S(sW)}"); a(f"s_lshl_b32 {S(sT0)}, {S(sT0)}, 6")
        a(f"s_add_u32 {S(sT0)}, {S(sT0)}, {S(sStep)}"); a(f"s_lshl_b32 {S(sT0)}, {S(sT0)}, 2"); a(f"s_add_u32 {S(sT0)}, {S(sT0)}, {WS_DBG + 262144}")
        a(f"v_mov_b32 {R(PQ)}, {S(sStamp + 2*sp.index('st'))}"); a(f"v_mov_b32 {R(PQ+1)}, 0")
        a("s_mov_b64 exec, 1")
        a(f"buffer_store_dword {R(PQ)}, {R(PQ+1)}, {S(sWS,4)}, {S(sT0)} offen")
        a("s_mov_b64 exec, -1")
    for x in tre: a(x)
    zero(O(4), 24); xors(); step_regs()
    if dma_on and not cfg.get('noflag'):
        Lc = a.newlabel('c_fc'); Lo = a.newlabel('c_fo')
        a(f"s_cmp_lg_u32 {S(sW)}, 1"); a(f"s_cbranch_scc1 {Lo}")
        a(f"s_add_u32 {S(sT0)}, {S(sStep)}, {cfg.get('tdist', 1)}")
        a(f"s_lshr_b32 {S(sThr)}, {S(sT0)}, 1"); a(f"s_add_u32 {S(sThr)}, {S(sThr)}, 1"); a(f"s_min_u32 {S(sThr)}, {S(sThr)}, 32")
        a(f"s_bitcmp1_b32 {S(sT0)}, 0"); a(f"s_cselect_b32 {S(sT2)}, 0xf00, 0xf"); a(f"s_mov_b32 {S(sT3)}, 0")
        a("s_waitcnt vmcnt(9)")
        a.label(Lc)
        a(f"v_cmp_gt_u32 vcc, {S(sThr)}, {R(vFLAG)}"); a(f"s_and_b64 vcc, vcc, {S(sT2,2)}")
        a(f"s_cbranch_scc0 {Lo}")
        a(f"buffer_load_dword {R(vFLAG)}, {R(vL16)}, {S(sWS,4)}, {S(sTch)} offen sc1")
        a(f"s_add_u32 {S(sCnt)}, {S(sCnt)}, 1"); a(f"s_cmp_lt_u32 {S(sCnt)}, {LIM}")
        a("s_waitcnt vmcnt(0)")
        a(f"s_cbranch_scc1 {Lc}")
        a.label(Lo)
    a("s_barrier")
    for k in range(D2):
        h2load()
        if k < D2 - 1: nops(cfg.get('h2p', 6))
    if diag:
        a(f"s_cmp_eq_u32 {S(sStep)}, {diag+1}"); a(f"s_cbranch_scc1 {L_dump}")
    a(f"s_branch {L_top}")
    a.label(L_r2)
    L_r2b = a.newlabel('c_r2b')
    a("s_nop 4"); zero(O(4), 12)
    a.label(L_r2b)
    h2chk()
    a(f"s_cbranch_vccz {L_p2}")
    a("s_mov_b64 exec, vcc")
    h2load()
    a("s_mov_b64 exec, -1")
    if diag: a(f"s_add_u32 {S(sR2)}, {S(sR2)}, 1")
    a(f"s_add_u32 {S(sCnt)}, {S(sCnt)}, 1"); a(f"s_cmp_lt_u32 {S(sCnt)}, {LIM}")
    a(f"s_waitcnt vmcnt({cfg.get('d2r', 6)})")
    a(f"s_cbranch_scc1 {L_r2b}")
    a(f"s_branch {L_go2}")
    if diag:
        a.label(L_dump)
        a("s_waitcnt lgkmcnt(0)")
        a(f"s_lshl_b32 {S(sT0)}, {S(sH)}, 2"); a(f"s_add_u32 {S(sT0)}, {S(sT0)}, {S(sW)}"); a(f"s_lshl_b32 {S(sT0)}, {S(sT0)}, 8")
        a(f"s_add_u32 {S(sT0)}, {S(sT0)}, {WS_DBG}")
        a(f"v_mov_b32 {R(PQ+1)}, 0")
        for k in range(9):
            a(f"v_mov_b32 {R(PQ)}, {S(sStamp+2*k)}")
            a(f"buffer_store_dword {R(PQ)}, {R(PQ+1)}, {S(sWS,4)}, {S(sT0)} offen offset:{4*k}")
        a("s_waitcnt vmcnt(0)")
        a(f"s_branch {L_top}")
```

```python
from asmlib import *
import math, struct

MB = 1 << 20
KB = 1 << 10
WS_XN = 0
WS_GATE = 2 * MB
WS_H = 4 * MB
HBLK = 86 * 1024
WS_PART = 10 * MB
WS_MEMR = 11 * MB
WS_FLAG = 11 * MB + 64 * KB
WS_DBG = 11 * MB + 512 * KB
WS_HD = 32 * MB
REC = 32768
R_K, R_V, R_Q, R_M = 0, 8192, 16384, 24576
WS_P3 = 96 * MB
WS_SIZE = 256 * MB
F_RDY = 0
F_LD = 4096
F_T1 = 8192
F_T2 = 16384
F_T3 = 20480
F_LN = 32768

OOB = 0x80000000
LIM = 1 << 19

sWS = 4
sDBG = 8
sA = 12
sB = 16
sC_ = 20
sD = 24
sE = 28
sW = 32
sH = 33
sG = 34
sCnt = 35
sT0 = 36
sT1 = 37
sT2 = 38
sT3 = 39

ARG = dict(x=0, mem0=8, Wq=16, Wk=24, Wv=32, Wo=40, seg=48, bx=56, wg=64, wu=72, wd=80, out=88, dbg=96, ws=104)
NBYTES = dict(x=2048 * 512 * 2, mem0=8 * 512 * 2, Wq=4 * MB, Wk=4 * MB, Wv=4 * MB, Wo=4 * MB,
              wg=512 * 1376 * 2, wu=512 * 1376 * 2, wd=512 * 1376 * 2, out=2048 * 512 * 2, dbg=256, ws=WS_SIZE)

def f2u(x): return struct.unpack('<I', struct.pack('<f', x))[0]

def srd_load(a, pairs):
    for s, n in pairs:
        a(f"s_load_dwordx2 {S(s,2)}, s[0:1], {ARG[n]}")
    a("s_waitcnt lgkmcnt(0)")
    for s, n in pairs:
        a(f"s_mov_b32 {S(s+2)}, {NBYTES[n]:#x}")
        a(f"s_mov_b32 {S(s+3)}, 0x20000")

def wait_all_tickets(a, v0, v1):
    L = a.newlabel('wt'); Ld = a.newlabel('wtd')
    a(f"v_mbcnt_lo_u32_b32 {R(v1)}, -1, 0"); a(f"v_mbcnt_hi_u32_b32 {R(v1)}, -1, {R(v1)}")
    a(f"v_lshlrev_b32 {R(v1)}, 5, {R(v1)}")
    a.label(L)
    a(f"buffer_load_dword {R(v0)}, {R(v1)}, {S(sDBG,4)}, 0 offen sc1")
    a("s_waitcnt vmcnt(0)")
    a(f"v_readlane_b32 {S(sT0)}, {R(v0)}, 0")
    for i in range(1, 8):
        a(f"v_readlane_b32 {S(sT1)}, {R(v0)}, {i}"); a(f"s_add_u32 {S(sT0)}, {S(sT0)}, {S(sT1)}")
    a(f"s_cmp_ge_u32 {S(sT0)}, 256"); a(f"s_cbranch_scc1 {Ld}")
    a("s_sleep 2")
    a(f"s_add_u32 {S(sCnt)}, {S(sCnt)}, 1"); a(f"s_cmp_lt_u32 {S(sCnt)}, {LIM}"); a(f"s_cbranch_scc1 {L}")
    a.label(Ld)

def wait_flags(a, vdst, voff, soff, thr, width=1, nload=1, sleep=2, voff2=None):
    L = a.newlabel('wf'); Ld = a.newlabel('wfd')
    a.label(L)
    sfx = {1: 'dword', 2: 'dwordx2', 4: 'dwordx4'}[width]
    for i in range(nload):
        a(f"buffer_load_{sfx} {R(vdst+i*width,width)}, {R(voff if i == 0 else voff2)}, {S(sWS,4)}, {soff} offen sc1")
    a("s_waitcnt vmcnt(0)")
    n = width * nload
    for i in range(1, n): a(f"v_min_u32 {R(vdst)}, {R(vdst)}, {R(vdst+i)}")
    a(f"v_cmp_gt_u32 vcc, {thr}, {R(vdst)}")
    a(f"s_cbranch_vccz {Ld}")
    if sleep: a(f"s_sleep {sleep}")
    a(f"s_add_u32 {S(sCnt)}, {S(sCnt)}, 1"); a(f"s_cmp_lt_u32 {S(sCnt)}, {LIM}"); a(f"s_cbranch_scc1 {L}")
    a.label(Ld)

def post_flag(a, vtmp, vone, soff, val, sc=' sc1'):
    a(f"v_mov_b32 {R(vtmp)}, {val}")
    a(f"buffer_store_dword {R(vtmp)}, {R(vone)}, {S(sWS,4)}, {soff} offen{sc}")

def make_vone(a, v, lane):
    a(f"v_cmp_eq_u32 vcc, 0, {R(lane)}"); a(f"v_mov_b32 {R(v)}, {OOB:#x}")
    a(f"v_cndmask_b32 {R(v)}, {R(v)}, 0, vcc")

def slab_loader(a, nslab, nslot, ring, sMb, dma_src, reads, cfg={}):
    a(f"s_lshl_b32 {S(sMb)}, {S(sW)}, 12"); a(f"s_add_u32 {S(sMb)}, {S(sMb)}, {ring}")
    def dma(n):
        for i in range(4):
            vo, srd, ins = dma_src(n, i)
            a(f"s_add_u32 m0, {S(sMb)}, {(n % nslot)*16384 + i*1024}")
            a(ins)
            a(f"buffer_load_dwordx4 {R(vo)}, {S(srd,4)}, {S(sT0)} offen lds")
    c2 = dict(tacc=cfg.get('lacc'))
    tacc(a, c2, None)
    for n in range(min(nslot - 1, nslab)): dma(n)
    tacc(a, c2, 4)
    for n in range(nslab):
        ahead = min(nslab - 1, n + nslot - 2) - n
        a(f"s_waitcnt vmcnt({4*ahead}) lgkmcnt(0)")
        tacc(a, c2, 0)
        a("s_barrier")
        tacc(a, c2, 1)
        if n + nslot - 1 < nslab: dma(n + nslot - 1)
        tacc(a, c2, 2)
        reads(n, (n % nslot) * 16384)
        if c2['tacc']: a("s_waitcnt lgkmcnt(0)")
        tacc(a, c2, 3)
    a("s_waitcnt lgkmcnt(0)")
    a("s_barrier")

def rstamp(a, cfg, k):
    if cfg.get('diag'): a(f"s_memrealtime {S(84+2*k,2)}")

def tacc(a, cfg, k):
    if not cfg.get('tacc'): return
    a("s_memtime s[66:67]"); a("s_waitcnt lgkmcnt(0)")
    if k is not None:
        a("s_sub_u32 s69, s66, s68"); a(f"s_add_u32 s{70+k}, s{70+k}, s69")
    a("s_mov_b32 s68, s66")
```

```python
from common import *
from workers import *

GS = 8448
JS = 4 * GS
RSX = 288
L_K, L_V, L_Q, L_KM, L_VM = 0, 8192, 16384, 24576, 28672

def p3_setup(a, cfg):
    srd_load(a, [(sA, 'x'), (sB, 'Wo'), (sC_, 'out'), (sD, 'Wq'), (sE, 'Wv'), (56, 'Wk'), (60, 'wd')])
    base_setup(a)
    layernorm(a, cfg)
    a(f"v_readlane_b32 {S(sX7)}, {R(vC3)}, {S(sG)}")
    sKvm, sRd = sX1, sX2
    a(f"s_sub_u32 {S(sT2)}, {S(sG)}, 4")
    a(f"s_lshl_b32 {S(sT0)}, {S(sH)}, 21"); a(f"s_lshl_b32 {S(sT1)}, {S(sT2)}, 15"); a(f"s_add_u32 {S(sT0)}, {S(sT0)}, {S(sT1)}")
    a(f"s_mul_i32 {S(sT1)}, {S(sW)}, 6144"); a(f"s_add_u32 {S(sSrc)}, {S(sT0)}, {S(sT1)}"); a(f"s_add_u32 {S(sSrc)}, {S(sSrc)}, {WS_HD}")
    a(f"s_lshl_b32 {S(sT1)}, {S(sW)}, 10"); a(f"s_add_u32 {S(sT0)}, {S(sT0)}, {S(sT1)}"); a(f"s_add_u32 {S(sKvm)}, {S(sT0)}, {WS_HD + R_M}")
    a(f"s_lshl_b32 {S(sT0)}, {S(sH)}, 2"); a(f"s_add_u32 {S(sT0)}, {S(sT0)}, {S(sW)}"); a(f"s_mul_i32 {S(sT0)}, {S(sT0)}, {GS}")
    a(f"s_lshl_b32 {S(sT1)}, {S(sT2)}, 22"); a(f"s_add_u32 {S(sT0)}, {S(sT0)}, {S(sT1)}"); a(f"s_add_u32 {S(sRd)}, {S(sT0)}, {WS_P3}")
    def t1wait():
        a(f"s_lshl_b32 {S(sT2)}, {S(sH)}, 7"); a(f"s_add_u32 {S(sT2)}, {S(sT2)}, {WS_FLAG + F_LD}"); a(f"v_mov_b32 {R(vC1)}, 0")
        wait_flags(a, vC0, vC1, S(sT2), 1, sleep=16)
    Lw = a.newlabel('p3w')
    a(f"s_cmp_lt_u32 {S(sG)}, {4 + cfg.get('p3early', 0)}"); a(f"s_cbranch_scc1 {Lw}")
    t1wait()
    a.label(Lw)
    rstamp(a, cfg, 2)
    t0, t1, t2 = vC0, vC1, vC2
    a(f"v_lshrrev_b32 {R(t0)}, 4, {R(vLane)}")
    a(f"v_lshlrev_b32 {R(t1)}, 1, {R(t0)}"); a(f"v_and_b32 {R(t2)}, 15, {R(vLane)}"); a(f"v_xor_b32 {R(t1)}, {R(t1)}, {R(t2)}")
    a(f"s_lshl_b32 {S(sT0)}, {S(sW)}, 14"); a(f"s_lshl_b32 {S(sT1)}, {S(sH)}, 17"); a(f"s_add_u32 {S(sT0)}, {S(sT0)}, {S(sT1)}")
    a(f"v_lshlrev_b32 {R(t0)}, 10, {R(t0)}"); a(f"v_lshl_add_u32 {R(t0)}, {R(t1)}, 4, {R(t0)}")
    a(f"v_add_u32 {R(vA0)}, {S(sT0)}, {R(t0)}"); a(f"v_xor_b32 {R(vA1)}, 128, {R(vA0)}")
    a(f"v_lshrrev_b32 {R(t0)}, 2, {R(vLane)}")
    a(f"v_and_b32 {R(t1)}, 7, {R(t0)}")
    a(f"v_bfe_u32 {R(t2)}, {R(vLane)}, 1, 1")
    a(f"s_and_b32 {S(sT0)}, {S(sW)}, 2"); a(f"s_lshl_b32 {S(sT0)}, {S(sT0)}, 1")
    a(f"v_add_u32 {R(t2)}, {S(sT0)}, {R(t2)}"); a(f"v_xor_b32 {R(t1)}, {R(t1)}, {R(t2)}")
    a(f"v_lshlrev_b32 {R(t0)}, 8, {R(t0)}"); a(f"v_lshl_add_u32 {R(t0)}, {R(t1)}, 5, {R(t0)}")
    a(f"v_and_b32 {R(t1)}, 1, {R(vLane)}"); a(f"v_lshl_add_u32 {R(vB0)}, {R(t1)}, 4, {R(t0)}")
    a(f"v_xor_b32 {R(vB1)}, 64, {R(vB0)}")
    a(f"v_add_u32 {R(vB2)}, 65536, {R(vB0)}"); a(f"v_add_u32 {R(vB3)}, 65536, {R(vB1)}")
    slabs = [(kc, aa) for aa in range(4) for kc in (0, 1)]
    def src(n, i):
        kc, aa = slabs[n]
        return (vA0 if (i & 1) == 0 else vA1), sB, f"s_mov_b32 {S(sT0)}, {(64*kc + 4*i)*1024 + aa*256}"
    def reads(n, base):
        kc, aa = slabs[n]
        for nup in range(4):
            ad = [vB0, vB1, vB2, vB3][(nup >> 1) + (2 if base >= 65536 else 0)]
            for kb in (0, 1):
                d = 256 + 16 * (4 * aa + nup) + 4 * (2 * kc + kb)
                for u in (0, 1):
                    a(f"ds_read_b64_tr_b16 {R(d+2*u,2)}, {R(ad)} offset:{(base & 65535) + (32*kb + 16*u)*256 + 8*(nup & 1)}")
    slab_loader(a, 8, 8, 0, sMb, src, reads)
    t1wait()
    for i in range(4): a(f"v_mov_b32 {R(36+i)}, 0")
    Ls = a.newlabel('p3cs'); Le = a.newlabel('p3ce')
    if not cfg.get('slow'):
        a(f"s_cmp_lt_u32 {S(sX7)}, 32"); a(f"s_cbranch_scc1 {Ls}")
    for sc in (('', ' sc1') if not cfg.get('slow') else (' sc1',)):
        for sg in (0, 1):
            for hf in (0, 1):
                a(f"s_add_u32 {S(sT0)}, {S(sRd)}, {sg*2*MB + hf*4096}")
                for q in range(4): a(f"buffer_store_dwordx4 {R(36,4)}, {R(vL16)}, {S(sWS,4)}, {S(sT0)} offen offset:{q*1024}{sc}")
        if sc == '':
            a(f"s_branch {Le}"); a.label(Ls)
    a.label(Le)
    a("s_waitcnt vmcnt(0)"); a("s_barrier")
    a(f"s_lshl_b32 {S(sT0)}, {S(sG)}, 5"); a(f"s_add_u32 {S(sT0)}, {S(sT0)}, {S(sH)}"); a(f"s_lshl_b32 {S(sT0)}, {S(sT0)}, 2")
    a(f"s_add_u32 {S(sT0)}, {S(sT0)}, {WS_FLAG + F_RDY}")
    Lq = a.newlabel('p3q')
    a(f"s_cmp_lg_u32 {S(sW)}, 0"); a(f"s_cbranch_scc1 {Lq}")
    post_flag(a, vC0, vOne, S(sT0), 1)
    a.label(Lq)


vQa, vKa, vKW, vKM, vVMw, vPS, vXO, vF1, vVMr, vGO = vA0, vA1, vA2, vA3, vB0, vB1, vB2, vB3, vC4, 254
SEL, CM, QF, KF, VF, SX, SMr, PX, PM, KMF, VM, OD, OF, AC, LD, XG = 16, 20, 28, 44, 76, 108, 116, 120, 124, 128, 144, 152, 184, 200, 216, 248

def p3_consts(a, cfg):
    g, c, t0, t1 = 32, 33, 34, 35
    a(f"v_lshrrev_b32 {R(g)}, 4, {R(vLane)}"); a(f"v_and_b32 {R(c)}, 15, {R(vLane)}")
    a(f"s_and_b32 {S(sT2)}, {S(sW)}, 1")
    a(f"s_lshl_b32 {S(sT0)}, {S(sT2)}, 12"); a(f"v_add_u32 {R(vQa)}, {S(sT0)}, {R(vL16)}")
    a(f"v_lshrrev_b32 {R(t0)}, 2, {R(c)}"); a(f"v_and_b32 {R(t1)}, 1, {R(c)}"); a(f"v_lshl_add_u32 {R(t0)}, {R(t0)}, 1, {R(t1)}")
    a(f"v_bfe_u32 {R(t1)}, {R(c)}, 1, 1"); a(f"v_lshlrev_b32 {R(t1)}, 12, {R(t1)}")
    a(f"v_lshl_add_u32 {R(t1)}, {R(g)}, 8, {R(t1)}"); a(f"v_lshl_add_u32 {R(vKa)}, {R(t0)}, 4, {R(t1)}")
    a(f"v_mul_u32_u24 {R(t0)}, {RSX}, {R(t0)}"); a(f"v_lshl_add_u32 {R(vKM)}, {R(g)}, 4, {R(t0)}")
    a(f"s_lshl_b32 {S(sT0)}, {S(sW)}, 6")
    a(f"v_mul_u32_u24 {R(t0)}, {2*RSX}, {R(g)}"); a(f"v_lshl_add_u32 {R(t0)}, {R(c)}, 2, {R(t0)}"); a(f"v_add_u32 {R(vKW)}, {S(sT0)}, {R(t0)}")
    a(f"v_lshlrev_b32 {R(vVMr)}, 3, {R(vLane)}")
    a(f"s_lshl_b32 {S(sT0)}, {S(sW)}, 9"); a(f"v_add_u32 {R(vVMw)}, {S(sT0)}, {R(vVMr)}")
    a(f"v_mul_u32_u24 {R(t0)}, {GS}, {R(g)}"); a(f"v_lshl_add_u32 {R(vPS)}, {R(c)}, 4, {R(t0)}")
    a(f"v_and_b32 {R(vF1)}, 3, {R(vLane)}"); a(f"v_lshlrev_b32 {R(vF1)}, 4, {R(vF1)}")
    a(f"s_lshl_b32 {S(sT0)}, {S(sT2)}, 4"); a(f"v_add_u32 {R(t0)}, {S(sT0)}, {R(c)}")
    a(f"v_lshlrev_b32 {R(t1)}, 1, {R(g)}"); a(f"v_sub_u32 {R(t0)}, {R(t0)}, {R(t1)}")
    a(f"v_mov_b32 {R(t1)}, {f2u(-1e30):#x}")
    for tp in (0, 1):
        for i in range(4):
            a(f"v_cmp_gt_i32 vcc, {8*tp + (i&1) + 16*(i>>1)}, {R(t0)}")
            a(f"v_cndmask_b32 {R(CM+4*tp+i)}, 0, {R(t1)}, vcc")
    a(f"v_and_b32 {R(t0)}, 1, {R(c)}"); a(f"v_lshlrev_b32 {R(t0)}, 4, {R(t0)}"); a(f"v_mov_b32 {R(t1)}, 0x3f80"); a(f"v_lshlrev_b32 {R(t1)}, {R(t0)}, {R(t1)}")
    a(f"v_bfe_u32 {R(t0)}, {R(c)}, 1, 2")
    for r in range(4):
        a(f"v_cmp_eq_u32 vcc, {r}, {R(t0)}"); a(f"v_cndmask_b32 {R(SEL+r)}, 0, {R(t1)}, vcc")
    a(f"v_mov_b32 {R(PM+1)}, 0"); a(f"v_mov_b32 {R(PM+2)}, 0")
    a(f"s_bfe_u32 {S(sT0)}, {S(sH)}, 0x10003"); a(f"s_lshl_b32 {S(sT0)}, {S(sT0)}, 14")
    a(f"s_bfe_u32 {S(sT1)}, {S(sH)}, 0x20001"); a(f"s_lshl_b32 {S(sT1)}, {S(sT1)}, 8"); a(f"s_add_u32 {S(sT0)}, {S(sT0)}, {S(sT1)}")
    a(f"s_lshr_b32 {S(sT1)}, {S(sH)}, 4"); a(f"s_lshl_b32 {S(sT1)}, {S(sT1)}, 7"); a(f"s_add_u32 {S(sT0)}, {S(sT0)}, {S(sT1)}")
    a(f"s_and_b32 {S(sT1)}, {S(sH)}, 1"); a(f"s_lshl_b32 {S(sT1)}, {S(sT1)}, 6"); a(f"s_add_u32 {S(sT0)}, {S(sT0)}, {S(sT1)}")
    a(f"s_lshl_b32 {S(sT1)}, {S(sW)}, 4"); a(f"s_add_u32 {S(sT0)}, {S(sT0)}, {S(sT1)}")
    a(f"v_lshlrev_b32 {R(t0)}, 10, {R(c)}"); a(f"v_lshl_add_u32 {R(t0)}, {R(g)}, 3, {R(t0)}"); a(f"v_add_u32 {R(t0)}, {S(sT0)}, {R(t0)}")
    a(f"v_mov_b32 {R(t1)}, {OOB:#x}"); a(f"v_cmp_gt_u32 vcc, 2, {R(g)}"); a(f"v_cndmask_b32 {R(vXO)}, {R(t1)}, {R(t0)}, vcc")
    a(f"s_bfe_u32 {S(sT0)}, {S(sH)}, 0x20001"); a(f"s_lshl_b32 {S(sT0)}, {S(sT0)}, 13")
    a(f"s_lshr_b32 {S(sT1)}, {S(sH)}, 4"); a(f"s_lshl_b32 {S(sT1)}, {S(sT1)}, 12"); a(f"s_add_u32 {S(sT0)}, {S(sT0)}, {S(sT1)}")
    a(f"s_and_b32 {S(sT1)}, {S(sH)}, 1"); a(f"s_lshl_b32 {S(sT1)}, {S(sT1)}, 11"); a(f"s_add_u32 {S(sT0)}, {S(sT0)}, {S(sT1)}")
    a(f"s_and_b32 {S(sT1)}, {S(sW)}, 1"); a(f"s_lshl_b32 {S(sT1)}, {S(sT1)}, 10"); a(f"s_add_u32 {S(sT0)}, {S(sT0)}, {S(sT1)}")
    a(f"s_lshr_b32 {S(sT1)}, {S(sW)}, 1"); a(f"s_lshl_b32 {S(sT1)}, {S(sT1)}, 9"); a(f"s_add_u32 {S(sT0)}, {S(sT0)}, {S(sT1)}")
    a(f"s_bfe_u32 {S(sT1)}, {S(sH)}, 0x10003"); a(f"s_lshl_b32 {S(sT1)}, {S(sT1)}, 8"); a(f"s_add_u32 {S(sT0)}, {S(sT0)}, {S(sT1)}")
    a(f"v_and_b32 {R(t0)}, 1, {R(g)}"); a(f"v_lshlrev_b32 {R(t0)}, 3, {R(t0)}"); a(f"v_lshl_add_u32 {R(t0)}, {R(c)}, 4, {R(t0)}")
    a(f"v_add_u32 {R(vGO)}, {S(sT0)}, {R(t0)}")
    sKvm, sRd, sWr, sF1, sF3, sRow = sX1, sX2, sX3, sX4, sX5, sX6
    a(f"s_sub_u32 {S(sT2)}, {S(sG)}, 4")
    a(f"s_mul_i32 {S(sT0)}, {S(sW)}, {8*JS}"); a(f"s_lshl_b32 {S(sT1)}, {S(sH)}, 8"); a(f"s_add_u32 {S(sT0)}, {S(sT0)}, {S(sT1)}")
    a(f"s_lshl_b32 {S(sT1)}, {S(sT2)}, 22"); a(f"s_add_u32 {S(sT0)}, {S(sT0)}, {S(sT1)}"); a(f"s_add_u32 {S(sWr)}, {S(sT0)}, {WS_P3}")
    a(f"s_and_b32 {S(sPar)}, {S(sT2)}, 1")
    a(f"s_lshl_b32 {S(sT0)}, {S(sH)}, 1"); a(f"s_add_u32 {S(sT0)}, {S(sT0)}, {S(sPar)}"); a(f"s_lshl_b32 {S(sT0)}, {S(sT0)}, 7")
    a(f"s_add_u32 {S(sF1)}, {S(sT0)}, {WS_FLAG + F_T1}")
    a(f"s_bfe_u32 {S(sT0)}, {S(sH)}, 0x20001"); a(f"s_lshl_b32 {S(sT0)}, {S(sT0)}, 5")
    a(f"s_lshr_b32 {S(sT1)}, {S(sH)}, 4"); a(f"s_lshl_b32 {S(sT1)}, {S(sT1)}, 1"); a(f"s_add_u32 {S(sT0)}, {S(sT0)}, {S(sT1)}")
    a(f"s_and_b32 {S(sT1)}, {S(sH)}, 1"); a(f"s_add_u32 {S(sT0)}, {S(sT0)}, {S(sT1)}"); a(f"s_lshl_b32 {S(sT0)}, {S(sT0)}, 2")
    a(f"s_lshl_b32 {S(sT1)}, {S(sPar)}, 9"); a(f"s_add_u32 {S(sT0)}, {S(sT0)}, {S(sT1)}"); a(f"s_add_u32 {S(sF3)}, {S(sT0)}, {WS_FLAG + F_T3}")
    a(f"s_lshl_b32 {S(sRow)}, {S(sT2)}, 15")
    a(f"s_lshr_b32 {S(sThr)}, {S(sT2)}, 1"); a(f"s_add_u32 {S(sThr)}, {S(sThr)}, 1")
    a(f"s_mov_b32 {S(sI)}, 0"); a(f"s_mov_b32 {S(sFlag)}, 1")
    a(f"s_mov_b32 {S(sDst)}, {f2u(128 ** -0.5 * math.log2(math.e)):#x}")
    a(f"v_and_b32 {R(t0)}, 31, {R(vLane)}"); a(f"v_lshlrev_b32 {R(t0)}, 2, {R(t0)}")
    a(f"s_lshl_b32 {S(sT2)}, {S(sG)}, 7"); a(f"s_add_u32 {S(sT2)}, {S(sT2)}, {WS_FLAG + F_RDY}")
    wait_flags(a, t1, t0, S(sT2), 1, sleep=8)


def p3_loop(a, cfg, sc, exit_label):
    sKvm, sRd, sWr, sF1, sF3, sRow = sX1, sX2, sX3, sX4, sX5, sX6
    sTag, sCc = sFlag, sDst
    def DM(d, A, B, c=None): a(f"v_mfma_f32_16x16x32_bf16 {R(d,4)}, {R(A,4)}, {R(B,4)}, {R(d,4) if c is None else c}")
    def xl(r, t, op):
        for sw in ('v_permlane16_swap_b32', 'v_permlane32_swap_b32'):
            a(f"v_mov_b32 {R(t)}, {R(r)}"); a(f"{sw} {R(r)}, {R(t)}"); a(f"{op} {R(r)}, {R(r)}, {R(t)}")
    tacc(a, cfg, None)
    L = a.newlabel('p3')
    a.label(L)
    wait_flags(a, vC0, vF1, S(sF1), S(sThr))
    a("s_barrier")
    a(f"s_mul_i32 {S(sT1)}, {S(sW)}, 6144"); a(f"s_mov_b32 m0, {S(sT1)}")
    for q in range(3): a(f"buffer_load_dwordx4 {R(vL16)}, {S(sWS,4)}, {S(sSrc)} offen offset:{q*1024} sc1 lds")
    a(f"s_add_u32 m0, {S(sT1)}, 3072"); a(f"s_add_u32 {S(sT0)}, {S(sSrc)}, 3072")
    for q in range(3): a(f"buffer_load_dwordx4 {R(vL16)}, {S(sWS,4)}, {S(sT0)} offen offset:{q*1024} sc1 lds")
    a(f"buffer_load_dwordx2 {R(XG,2)}, {R(vXO)}, {S(sA,4)}, {S(sRow)} offen")
    a(f"v_mov_b32 {R(vC1)}, 0")
    wait_flags(a, vC0, vC1, S(sF3), S(sThr))
    a(f"s_add_u32 {S(sT0)}, {S(sRow)}, {WS_GATE}")
    a(f"buffer_load_dwordx2 {R(XG+2,2)}, {R(vGO)}, {S(sWS,4)}, {S(sT0)} offen sc1")
    a("s_barrier")
    for k in range(4): a(f"ds_read_b128 {R(QF+4*k,4)}, {R(vQa)} offset:{L_Q + k*1024}")
    for k in range(4):
        for tp in (0, 1): a(f"ds_read_b128 {R(KF+8*k+4*tp,4)}, {R(vKa)} offset:{L_K + k*1024 + tp*128}")
    a("s_waitcnt lgkmcnt(0)")
    for k in range(4):
        for tp in (0, 1):
            DM(SX + 4 * tp, KF + 8 * k + 4 * tp, QF + 4 * k, R(CM + 4 * tp, 4) if k == 0 else None)
            a(f"ds_read_b128 {R(VF+8*k+4*tp,4)}, {R(vL16)} offset:{L_V + (2*k+tp)*1024}")
    mx, tt, mc, ls = vC0, vC1, vC2, vC3
    a(f"v_max3_f32 {R(mx)}, {R(SX)}, {R(SX+1)}, {R(SX+2)}"); a(f"v_max3_f32 {R(tt)}, {R(SX+4)}, {R(SX+5)}, {R(SX+6)}")
    a(f"v_max3_f32 {R(mx)}, {R(mx)}, {R(SX+3)}, {R(SX+7)}"); a(f"v_max_f32 {R(mx)}, {R(mx)}, {R(tt)}")
    tacc(a, cfg, 0)
    Lp = a.newlabel('p3k'); Lg = a.newlabel('p3g')
    a.label(Lp)
    a(f"buffer_load_dwordx4 {R(LD,4)}, {R(vL16)}, {S(sWS,4)}, {S(sKvm)} offen sc1")
    a(f"s_add_u32 {S(sCnt)}, {S(sCnt)}, 1"); a(f"s_cmp_ge_u32 {S(sCnt)}, {LIM}")
    a("s_waitcnt vmcnt(0)")
    a(f"s_cbranch_scc1 {Lg}")
    a(f"v_max3_u32 {R(tt)}, {R(LD)}, {R(LD+1)}, {R(LD+2)}"); a(f"v_max_u32 {R(tt)}, {R(tt)}, {R(LD+3)}")
    a(f"v_cmp_eq_u32 vcc, -1, {R(tt)}"); a(f"s_cbranch_vccz {Lg}")
    a("s_sleep 2"); a(f"s_branch {Lp}")
    a.label(Lg)
    tacc(a, cfg, 1)
    a(f"ds_write_b32 {R(vKW)}, {R(LD)} offset:{L_KM}"); a(f"ds_write_b32 {R(vKW)}, {R(LD+1)} offset:{L_KM + RSX}")
    a(f"ds_write_b64 {R(vVMw)}, {R(LD+2,2)} offset:{L_VM}")
    a("s_waitcnt lgkmcnt(0)"); a("s_barrier")
    for k in range(4): a(f"ds_read_b128 {R(KMF+4*k,4)}, {R(vKM)} offset:{L_KM + 64*k}")
    for k in range(4): a(f"ds_read_b64 {R(VM+2*k,2)}, {R(vVMr)} offset:{L_VM + 512*k}")
    for k in range(4):
        a(f"s_waitcnt lgkmcnt({7-k})"); DM(SMr, KMF + 4 * k, QF + 4 * k, '0' if k == 0 else None)
    a(f"v_max3_f32 {R(mx)}, {R(mx)}, {R(SMr)}, {R(SMr+1)}")
    xl(mx, tt, 'v_max_f32')
    a(f"v_mul_f32 {R(mc)}, {S(sCc)}, {R(mx)}")
    ev = [SX + i for i in range(8)] + [SMr, SMr + 1]
    for r in ev: a(f"v_fma_f32 {R(r)}, {R(r)}, {S(sCc)}, -{R(mc)}")
    for r in ev: a(f"v_exp_f32 {R(r)}, {R(r)}")
    a(f"v_add_f32 {R(ls)}, {R(ev[0])}, {R(ev[1])}"); a(f"v_add_f32 {R(tt)}, {R(ev[2])}, {R(ev[3])}")
    for i in range(4, 10, 2):
        a(f"v_add_f32 {R(ls)}, {R(ls)}, {R(ev[i])}"); a(f"v_add_f32 {R(tt)}, {R(tt)}, {R(ev[i+1])}")
    a(f"v_add_f32 {R(ls)}, {R(ls)}, {R(tt)}")
    xl(ls, tt, 'v_add_f32')
    a(f"v_rcp_f32 {R(ls)}, {R(ls)}")
    for r in ev: a(f"v_mul_f32 {R(r)}, {R(r)}, {R(ls)}")
    for d in range(4): cvt(a, PX + d, SX + 2 * d, SX + 2 * d + 1)
    cvt(a, PM, SMr, SMr + 1); cvt(a, PM + 3, SMr, SMr + 1)
    a("s_waitcnt lgkmcnt(0)")
    for T in range(8): DM(OD + 4 * T, VF + 4 * T, PX, '0')
    for T in range(8):
        a(f"v_mfma_f32_16x16x16_bf16 {R(OD+4*T,4)}, {R(VM+2*(T>>1),2)}, {R(PM+2*(T&1),2)}, {R(OD+4*T,4)}")
        if T >= 3:
            q = T - 3
            cvt(a, OF + 2 * q, OD + 4 * q, OD + 4 * q + 1); cvt(a, OF + 2 * q + 1, OD + 4 * q + 2, OD + 4 * q + 3)
    for q in range(5, 8):
        cvt(a, OF + 2 * q, OD + 4 * q, OD + 4 * q + 1); cvt(a, OF + 2 * q + 1, OD + 4 * q + 2, OD + 4 * q + 3)
    tacc(a, cfg, 2)
    a(f"s_mov_b32 {S(sT0)}, {S(sWr)}")
    pend = []
    for pi in range(8):
        ac = AC + 8 * (pi & 1)
        for k in range(4):
            for od in (0, 1):
                DM(ac + 4 * od, 256 + 16 * (2 * pi + od) + 4 * k, OF + 4 * k, '0' if k == 0 else None)
                if pend and 2 * k + od >= 2:
                    a(pend.pop(0))
                    if pend and not pend[0].startswith('buffer'): a(pend.pop(0))
        assert not pend
        o = OD + 4 * pi
        pend = [f"v_cvt_pk_bf16_f32 {R(o+d)}, {R(ac+2*d)}, {R(ac+2*d+1)}" for d in range(4)]
        pend += [f"v_and_or_b32 {R(o)}, {R(o)}, -2, {S(sTag)}", f"v_and_or_b32 {R(o+2)}, {R(o+2)}, -2, {S(sTag)}",
                 f"buffer_store_dwordx4 {R(o,4)}, {R(vPS)}, {S(sWS,4)}, {S(sT0)} offen{sc}", f"s_add_u32 {S(sT0)}, {S(sT0)}, {JS}"]
    for x in pend: a(x)
    tacc(a, cfg, 3)
    Lr = a.newlabel('p3r'); Lf = a.newlabel('p3f')
    a(f"s_add_u32 {S(sT1)}, {S(sRd)}, 4096")
    y = SX; ck = KF
    a.label(Lr)
    for u in range(8):
        a(f"buffer_load_dwordx4 {R(LD+4*u,4)}, {R(vL16)}, {S(sWS,4)}, {S(sRd if u < 4 else sT1)} offen offset:{(u&3)*1024} sc1")
    a(f"s_add_u32 {S(sCnt)}, {S(sCnt)}, 1"); a(f"s_cmp_ge_u32 {S(sCnt)}, {LIM}")
    for u in range(8):
        a(f"s_waitcnt vmcnt({7-u})")
        DM(y, SEL, LD + 4 * u, '0' if u == 0 else None)
        a(f"v_bitop3_b32 {R(ck+1 if u else ck)}, {R(LD+4*u)}, {R(LD+4*u+2)}, {S(sTag)} bitop3:0x7e")
        if u: a(f"v_or_b32 {R(ck)}, {R(ck)}, {R(ck+1)}")
    a(f"s_cbranch_scc1 {Lf}")
    a(f"v_and_b32 {R(ck)}, 1, {R(ck)}"); a(f"v_cmp_ne_u32 vcc, 0, {R(ck)}"); a(f"s_cbranch_vccnz {Lr}")
    a.label(Lf)
    tacc(a, cfg, 4)
    a("s_nop 4")
    t = KF + 4
    for d in (0, 1):
        cvt(a, t + 1, y + 2 * d, y + 2 * d + 1)
        a(f"v_lshlrev_b32 {R(t)}, 16, {R(t+1)}"); a(f"v_and_b32 {R(t+1)}, 0xffff0000, {R(t+1)}")
        a(f"v_lshlrev_b32 {R(t+2)}, 16, {R(XG+2+d)}"); a(f"v_and_b32 {R(t+3)}, 0xffff0000, {R(XG+2+d)}")
        a(f"v_mul_f32 {R(t)}, {R(t)}, {R(t+2)}"); a(f"v_mul_f32 {R(t+1)}, {R(t+1)}, {R(t+3)}")
        cvt(a, t + 1, t, t + 1)
        a(f"v_lshlrev_b32 {R(t)}, 16, {R(t+1)}"); a(f"v_and_b32 {R(t+1)}, 0xffff0000, {R(t+1)}")
        a(f"v_lshlrev_b32 {R(t+2)}, 16, {R(XG+d)}"); a(f"v_and_b32 {R(t+3)}, 0xffff0000, {R(XG+d)}")
        a(f"v_add_f32 {R(t)}, {R(t)}, {R(t+2)}"); a(f"v_add_f32 {R(t+1)}, {R(t+1)}, {R(t+3)}")
        cvt(a, XG + 4 + d, t, t + 1)
    a(f"buffer_store_dwordx2 {R(XG+4,2)}, {R(vXO)}, {S(sC_,4)}, {S(sRow)} offen")
    tacc(a, cfg, 5)
    a(f"s_xor_b32 {S(sWr)}, {S(sWr)}, {2*MB}"); a(f"s_xor_b32 {S(sRd)}, {S(sRd)}, {2*MB}")
    a(f"s_and_b32 {S(sT0)}, {S(sI)}, 1"); a(f"s_xor_b32 {S(sTag)}, {S(sTag)}, {S(sT0)}")
    a(f"s_add_u32 {S(sKvm)}, {S(sKvm)}, {4*REC}"); a(f"s_add_u32 {S(sSrc)}, {S(sSrc)}, {4*REC}")
    a(f"s_add_u32 {S(sRow)}, {S(sRow)}, {4*32768}"); a(f"s_add_u32 {S(sThr)}, {S(sThr)}, 2")
    a(f"s_add_u32 {S(sI)}, {S(sI)}, 1"); a(f"s_cmp_lt_u32 {S(sI)}, 16"); a(f"s_cbranch_scc1 {L}")
    a(f"s_branch {exit_label}")
```

```python
from common import *

vLane, vL16, vOne, vA0, vA1, vA2, vA3, vB0, vB1, vB2, vB3, vC0, vC1, vC2, vC3, vC4 = range(16)
sI, sSrc, sBuf, sFlag, sDst, sPar, sMb, sThr, sX0, sX1, sX2, sX3, sX4, sX5, sX6, sX7 = range(40, 56)

def mf32(a, d, A, B, first): a(f"v_mfma_f32_32x32x16_bf16 {R(d,16)}, {R(A,4)}, {R(B,4)}, {'0' if first else R(d,16)}")
def cvt(a, d, x, y): a(f"v_cvt_pk_bf16_f32 {R(d)}, {R(x)}, {R(y)}")

def base_setup(a):
    a(f"v_lshlrev_b32 {R(vL16)}, 4, {R(vLane)}")
    make_vone(a, vOne, vLane)

def dense32_loader(a, cfg, slabs, rowstride, colbase_s, rowmap, colmap16=False):
    t0, t1, t2 = vC0, vC1, vC2
    a(f"v_lshrrev_b32 {R(t0)}, 4, {R(vLane)}")
    a(f"v_lshlrev_b32 {R(t1)}, 2, {R(t0)}"); a(f"v_and_b32 {R(t2)}, 15, {R(vLane)}"); a(f"v_xor_b32 {R(t1)}, {R(t1)}, {R(t2)}")
    a(f"s_lshl_b32 {S(sT0)}, {S(sW)}, 4"); a(f"v_add_u32 {R(t0)}, {S(sT0)}, {R(t0)}")
    a(f"v_mul_u32_u24 {R(t0)}, {rowstride}, {R(t0)}")
    a(f"v_lshl_add_u32 {R(t0)}, {R(t1)}, 4, {R(t0)}")
    a(f"v_add_u32 {R(vA0)}, {colbase_s}, {R(t0)}")
    a(f"v_bfe_u32 {R(t0)}, {R(vLane)}, 2, 2")
    a(f"v_lshrrev_b32 {R(t1)}, 5, {R(vLane)}")
    a(f"v_lshl_add_u32 {R(t1)}, {R(t1)}, {3 if rowmap == 'nat' else 2}, {R(t0)}")
    a(f"v_lshlrev_b32 {R(t1)}, 8, {R(t1)}")
    a(f"s_lshl_b32 {S(sT0)}, {S(sW)}, 1")
    if not colmap16:
        a(f"v_bfe_u32 {R(t2)}, {R(vLane)}, 4, 1")
        a(f"v_and_b32 {R(vA3)}, 3, {R(vLane)}"); a(f"v_lshlrev_b32 {R(vA3)}, 3, {R(vA3)}")
    else:
        a(f"v_and_b32 {R(t2)}, 1, {R(vLane)}")
        a(f"v_bfe_u32 {R(vA3)}, {R(vLane)}, 4, 1"); a(f"v_bfe_u32 {R(vA2)}, {R(vLane)}, 1, 1")
        a(f"v_lshl_add_u32 {R(vA3)}, {R(vA3)}, 1, {R(vA2)}"); a(f"v_lshlrev_b32 {R(vA3)}, 3, {R(vA3)}")
    a(f"v_add_u32 {R(t2)}, {S(sT0)}, {R(t2)}")
    a(f"v_lshlrev_b32 {R(t0)}, 1, {R(t0)}"); a(f"v_xor_b32 {R(t2)}, {R(t2)}, {R(t0)}")
    a(f"v_lshl_add_u32 {R(t1)}, {R(t2)}, 5, {R(t1)}")
    a(f"v_add_u32 {R(vA1)}, {R(t1)}, {R(vA3)}")
    a(f"v_add_u32 {R(vA2)}, 65536, {R(vA1)}")
    ustep = 4 if rowmap == 'nat' else 8
    L1 = a.newlabel('ld1'); L2 = a.newlabel('ld2')
    a(f"s_cmp_lg_u32 {S(sPar)}, 0"); a(f"s_cbranch_scc1 {L1}")
    for var in (0, 1):
        sl = slabs
        if var:
            G = cfg.get('stag', 3); sl = []
            for b in range(0, len(slabs), 2 * G):
                ch = slabs[b:b + 2 * G]; sl += ch[len(ch) // 2:] + ch[:len(ch) // 2]
        def src(n, i):
            srd, row0, _ = sl[n]
            return vA0, srd, f"s_mov_b32 {S(sT0)}, {(row0 + 4*i) * rowstride}"
        def reads(n, base):
            ad = vA1 if base < 65536 else vA2
            for ks, d in enumerate(sl[n][2]):
                if d is None: continue
                for u in (0, 1):
                    a(f"ds_read_b64_tr_b16 {R(d+2*u,2)}, {R(ad)} offset:{(base & 65535) + (16*ks + ustep*u)*256}")
        slab_loader(a, len(sl), 8, 0, sMb, src, reads, cfg)
        if var == 0:
            a(f"s_branch {L2}"); a.label(L1)
    a.label(L2)


def xn_gemm(a, cfg, wreg, acc, swap, epilogue, nst, flag_at, exit_label, after_flag=None, local=False):
    FR = 16
    nm = len(acc)
    rstamp(a, cfg, 1)
    wait_all_tickets(a, vC0, vC1)
    a(f"v_readlane_b32 {S(sX7)}, {R(vC0)}, {S(sG)}")
    a(f"s_mov_b32 {S(sT2)}, {WS_FLAG + F_LN}")
    a(f"v_lshlrev_b32 {R(vC0)}, 7, {R(vLane)}"); a(f"v_add_u32 {R(vC1)}, 8192, {R(vC0)}")
    wait_flags(a, FR, vC0, S(sT2), 1, width=4, nload=2, voff2=vC1)
    a(f"s_lshl_b32 {S(sT0)}, {S(sW)}, 13"); a(f"s_mov_b32 {S(sBuf)}, {S(sT0)}")
    a(f"s_lshl_b32 {S(sSrc)}, {S(sPar)}, 15"); a(f"s_add_u32 {S(sSrc)}, {S(sSrc)}, {S(sT0)}")
    if WS_XN: a(f"s_add_u32 {S(sSrc)}, {S(sSrc)}, {WS_XN}")
    def dma():
        out = []
        for hf in (0, 1):
            out.append(f"s_add_u32 m0, {S(sBuf)}, {hf*4096}")
            out.append(f"s_add_u32 {S(sT0)}, {S(sSrc)}, {hf*4096}")
            for q in range(4): out.append(f"buffer_load_dwordx4 {R(vL16)}, {S(sWS,4)}, {S(sT0)} offen offset:{q*1024} sc1 lds")
        out.append(f"s_add_u32 {S(sSrc)}, {S(sSrc)}, 65536"); out.append(f"s_add_u32 {S(sBuf)}, {S(sBuf)}, 32768"); out.append(f"s_and_b32 {S(sBuf)}, {S(sBuf)}, 0x1ffff")
        return out
    for q in range(3):
        for x in dma(): a(x)
    a(f"v_mov_b32 {R(vB0)}, {R(vL16)}")
    a(f"s_mov_b32 {S(sI)}, 0")
    a("s_waitcnt vmcnt(16)")
    rstamp(a, cfg, 2)
    tacc(a, cfg, None)
    Lslow = a.newlabel('xgs')
    two = local and not cfg.get('slow')
    if two:
        a(f"s_cmp_lt_u32 {S(sX7)}, 32"); a(f"s_cbranch_scc1 {Lslow}")
    for sc in (('', ' sc1') if two else (' sc1',)):
        if sc: a.label(Lslow)
        L = a.newlabel('xg')
        a.label(L)
        tacc(a, cfg, 3); a("s_barrier"); tacc(a, cfg, 0)
        for k in range(3): a(f"ds_read_b128 {R(FR+4*k,4)}, {R(vB0)} offset:{k*1024}")
        side = dma()
        for k in range(32):
            a(f"s_waitcnt lgkmcnt({min(2, 31-k)})")
            f = FR + 4 * (k & 3)
            for m in range(nm):
                if swap[m]: mf32(a, acc[m], f, wreg[m](k), k == 0)
                else: mf32(a, acc[m], wreg[m](k), f, k == 0)
                if m == 0 and k + 3 < 32: a(f"ds_read_b128 {R(FR+4*((k+3)&3),4)}, {R(vB0)} offset:{(k+3)*1024}")
                elif side: a(side.pop(0));
                if m and side and side[0].startswith('s_'): a(side.pop(0))
            if k == flag_at:
                assert not side
                tacc(a, cfg, 1); a("s_waitcnt vmcnt(8)"); tacc(a, cfg, 2); post_flag(a, vC0, vOne, S(sFlag), S(sI), sc)
                if after_flag: after_flag()
        a(f"v_add_u32 {R(vB0)}, 32768, {R(vB0)}"); a(f"v_and_b32 {R(vB0)}, 0x1ffff, {R(vB0)}")
        tacc(a, cfg, 1)
        epilogue(sc)
        a(f"s_add_u32 {S(sI)}, {S(sI)}, 1"); a(f"s_cmp_lt_u32 {S(sI)}, 32"); a(f"s_cbranch_scc1 {L}")
        a("s_waitcnt vmcnt(0)"); post_flag(a, vC0, vOne, S(sFlag), 32, sc)
        a(f"s_branch {exit_label}")


def role_t1(a, cfg, exit_label):
    srd_load(a, [(sA, 'Wk'), (sB, 'Wv'), (sC_, 'Wq')])
    base_setup(a)
    sHead = sX0
    a(f"s_sub_u32 {S(sT0)}, {S(sG)}, 1"); a(f"s_lshl_b32 {S(sT0)}, {S(sT0)}, 4"); a(f"s_lshr_b32 {S(sT1)}, {S(sH)}, 1")
    a(f"s_add_u32 {S(sHead)}, {S(sT0)}, {S(sT1)}"); a(f"s_and_b32 {S(sPar)}, {S(sH)}, 1")
    a(f"s_lshl_b32 {S(sX1)}, {S(sHead)}, 8")
    wb = [128, 256, 384]
    slabs = [(srd, 64 * c, [wb[m] + 4 * (4 * c + ks) for ks in range(4)]) for m, srd in enumerate((sA, sB, sC_)) for c in range(8)]
    dense32_loader(a, cfg, slabs, 8192, S(sX1), 'nat')
    vK, vV = vB1, vB2
    a(f"v_bfe_u32 {R(vC0)}, {R(vLane)}, 4, 1"); a(f"v_lshrrev_b32 {R(vC1)}, 5, {R(vLane)}"); a(f"v_and_b32 {R(vC2)}, 15, {R(vLane)}")
    a(f"v_lshlrev_b32 {R(vC2)}, 4, {R(vC2)}")
    a(f"v_lshl_add_u32 {R(vK)}, {R(vC0)}, 12, {R(vC2)}"); a(f"v_lshl_add_u32 {R(vK)}, {R(vC1)}, 8, {R(vK)}")
    a(f"v_lshl_add_u32 {R(vV)}, {R(vC0)}, 10, {R(vC2)}"); a(f"v_lshl_add_u32 {R(vV)}, {R(vC1)}, 9, {R(vV)}")
    sK, sV, sQ = sX2, sX3, sX4
    a(f"s_lshl_b32 {S(sT0)}, {S(sHead)}, 21"); a(f"s_lshl_b32 {S(sT1)}, {S(sPar)}, 15"); a(f"s_add_u32 {S(sT0)}, {S(sT0)}, {S(sT1)}")
    a(f"s_lshl_b32 {S(sT1)}, {S(sW)}, 10"); a(f"s_add_u32 {S(sT0)}, {S(sT0)}, {S(sT1)}")
    a(f"s_add_u32 {S(sK)}, {S(sT0)}, {WS_HD + R_K}"); a(f"s_add_u32 {S(sQ)}, {S(sT0)}, {WS_HD + R_Q}")
    a(f"s_add_u32 {S(sT0)}, {S(sT0)}, {S(sT1)}"); a(f"s_add_u32 {S(sV)}, {S(sT0)}, {WS_HD + R_V}")
    a(f"s_lshl_b32 {S(sT0)}, {S(sHead)}, 1"); a(f"s_add_u32 {S(sT0)}, {S(sT0)}, {S(sPar)}"); a(f"s_lshl_b32 {S(sT0)}, {S(sT0)}, 7")
    a(f"s_lshl_b32 {S(sT1)}, {S(sW)}, 4"); a(f"s_add_u32 {S(sT0)}, {S(sT0)}, {S(sT1)}"); a(f"s_add_u32 {S(sFlag)}, {S(sT0)}, {WS_FLAG + F_T1}")
    acc = [32, 48, 64]; E = 80; SN = 104
    for q in range(4): a(f"v_mov_b32 {R(SN+q)}, -1")
    a(f"v_and_b32 {R(vB3)}, 31, {R(vLane)}"); a(f"v_lshlrev_b32 {R(vB3)}, 7, {R(vB3)}")
    a(f"s_mul_i32 {S(sT0)}, {S(sW)}, 3072"); a(f"v_add_u32 {R(vB3)}, {S(sT0)}, {R(vB3)}")
    def rb():
        a(f"s_sub_u32 {S(sT1)}, {S(sK)}, {4*REC}")
        a(f"buffer_load_dword {R(vC3)}, {R(vB3)}, {S(sWS,4)}, {S(sT1)} offen sc1")
    def epi(sc):
        a(f"s_add_u32 {S(sT1)}, {S(sK)}, {R_M - R_K}")
        a(f"buffer_store_dwordx4 {R(SN,4)}, {R(vL16)}, {S(sWS,4)}, {S(sT1)} offen sc1")
        for idx, (ac, so) in enumerate(((acc[0], sK), (acc[2], sQ))):
            for ap in (0, 1):
                q = E + 8 * idx + 4 * ap
                for b in range(4): cvt(a, q + b, ac + 4 * ap + b, ac + 4 * (ap + 2) + b)
                a(f"buffer_store_dwordx4 {R(q,4)}, {R(vK)}, {S(sWS,4)}, {S(so)} offen offset:{ap*512} sc1")
            if idx == 0:
                for be in (0, 1):
                    q = E + 16 + 4 * be
                    for d, aa in enumerate((0, 2, 1, 3)): cvt(a, q + d, acc[1] + 4 * aa + 2 * be, acc[1] + 4 * aa + 2 * be + 1)
                    a(f"buffer_store_dwordx4 {R(q,4)}, {R(vV)}, {S(sWS,4)}, {S(sV)} offen offset:{be*256} sc1")
        a(f"s_add_u32 {S(sK)}, {S(sK)}, {2*REC}"); a(f"s_add_u32 {S(sV)}, {S(sV)}, {2*REC}"); a(f"s_add_u32 {S(sQ)}, {S(sQ)}, {2*REC}")
    xn_gemm(a, cfg, [lambda k, m=m: wb[m] + 4 * k for m in range(3)], acc, [False, True, False], epi, 6, cfg.get('t1f', 20), exit_label, rb if cfg.get('t1rb', 1) else None)


def role_t2(a, cfg, exit_label):
    srd_load(a, [(sA, 'wg'), (sB, 'wu')])
    base_setup(a)
    sCb = sX0
    a(f"s_lshr_b32 {S(sCb)}, {S(sH)}, 1"); a(f"s_and_b32 {S(sPar)}, {S(sH)}, 1")
    a(f"s_lshl_b32 {S(sX1)}, {S(sCb)}, 8")
    wb = [256, 384]
    slabs = [(srd, 64 * c, [wb[m] + 4 * (4 * c + ks) for ks in range(4)]) for m, srd in enumerate((sA, sB)) for c in range(8)]
    dense32_loader(a, cfg, slabs, 2752, S(sX1), 'nat')
    a(f"s_lshl_b32 {S(sT0)}, {S(sCb)}, 2"); a(f"s_add_u32 {S(sT0)}, {S(sT0)}, {S(sW)}")
    a(f"s_cmp_lt_u32 {S(sT0)}, 43"); a(f"s_cselect_b32 {S(sT1)}, 0, {OOB:#x}")
    a(f"v_add_u32 {R(vB1)}, {S(sT1)}, {R(vL16)}")
    a(f"s_lshl_b32 {S(sDst)}, {S(sT0)}, 11"); a(f"s_mul_i32 {S(sT1)}, {S(sPar)}, {HBLK}")
    a(f"s_add_u32 {S(sDst)}, {S(sDst)}, {S(sT1)}"); a(f"s_add_u32 {S(sDst)}, {S(sDst)}, {WS_H}")
    a(f"s_lshl_b32 {S(sT0)}, {S(sCb)}, 7"); a(f"s_lshl_b32 {S(sT1)}, {S(sPar)}, 11"); a(f"s_add_u32 {S(sT0)}, {S(sT0)}, {S(sT1)}")
    a(f"s_lshl_b32 {S(sT1)}, {S(sW)}, 2"); a(f"s_add_u32 {S(sT0)}, {S(sT0)}, {S(sT1)}")
    a(f"s_add_u32 {S(sFlag)}, {S(sT0)}, {WS_FLAG + F_T2}")
    acc = [32, 48]; E = 80
    def epi(sc):
        for ap in (0, 1):
            for j in range(8): a(f"v_mul_f32 {R(E+16+j)}, {R(acc[0]+8*ap+j)}, {R(acc[1]+8*ap+j)}")
            for d in range(4): cvt(a, E + 4 * ap + d, E + 16 + 2 * d, E + 17 + 2 * d)
            a(f"buffer_store_dwordx4 {R(E+4*ap,4)}, {R(vB1)}, {S(sWS,4)}, {S(sDst)} offen offset:{ap*1024}{sc}")
        a(f"s_add_u32 {S(sDst)}, {S(sDst)}, {2*HBLK}")
    xn_gemm(a, cfg, [lambda k, m=m: wb[m] + 4 * k for m in range(2)], acc, [False, False], epi, 2, 16, exit_label, local=True)


def role_t3(a, cfg, exit_label):
    srd_load(a, [(sA, 'wd')])
    base_setup(a)
    sNb = sX0
    a(f"s_sub_u32 {S(sNb)}, {S(sH)}, 22"); a(f"s_lshr_b32 {S(sNb)}, {S(sNb)}, 1"); a(f"s_and_b32 {S(sPar)}, {S(sH)}, 1")
    a(f"s_lshl_b32 {S(sX1)}, {S(sNb)}, 8")
    W0 = 512 - 344
    SLOT = 45056; FR = 16; NF = 6; acc = 40; E = 56; AC2 = 80
    vFl, vSt, vFv = vB1, vB2, vB3
    a(f"v_min_u32 {R(vFl)}, 42, {R(vLane)}"); a(f"v_and_b32 {R(vC0)}, 3, {R(vFl)}"); a(f"v_lshrrev_b32 {R(vFl)}, 2, {R(vFl)}")
    a(f"v_lshlrev_b32 {R(vFl)}, 7, {R(vFl)}"); a(f"v_lshl_add_u32 {R(vFl)}, {R(vC0)}, 2, {R(vFl)}")
    sF2, sRd, sWoff = sX2, sX3, sX4
    a(f"s_lshl_b32 {S(sF2)}, {S(sPar)}, 11"); a(f"s_add_u32 {S(sF2)}, {S(sF2)}, {WS_FLAG + F_T2}")
    slabs = [(sA, 64 * c, [(W0 + 4 * (4 * c + ks)) if 4 * c + ks < 86 else None for ks in range(4)]) for c in range(22)]
    dense32_loader(a, cfg, slabs, 1024, S(sX1), 'h', colmap16=True)
    rstamp(a, cfg, 1)
    wait_all_tickets(a, vC0, vC1)
    wait_flags(a, vC0, vFl, S(sF2), 1, sleep=8)
    rstamp(a, cfg, 2)
    a(f"v_mov_b32 {R(vSt)}, {OOB:#x}"); a(f"v_mov_b32 {R(vFv)}, 0")
    a(f"s_lshl_b32 {S(sT0)}, {S(sNb)}, 2"); a(f"s_add_u32 {S(sT0)}, {S(sT0)}, {S(sW)}")
    a(f"s_lshl_b32 {S(sDst)}, {S(sT0)}, 11"); a(f"s_lshl_b32 {S(sT1)}, {S(sPar)}, 15"); a(f"s_add_u32 {S(sDst)}, {S(sDst)}, {S(sT1)}")
    a(f"s_add_u32 {S(sDst)}, {S(sDst)}, {WS_GATE - 65536}")
    a(f"s_lshl_b32 {S(sT0)}, {S(sNb)}, 7"); a(f"s_lshl_b32 {S(sT1)}, {S(sPar)}, 9"); a(f"s_add_u32 {S(sT0)}, {S(sT0)}, {S(sT1)}")
    a(f"s_lshl_b32 {S(sT1)}, {S(sW)}, 2"); a(f"s_add_u32 {S(sT0)}, {S(sT0)}, {S(sT1)}")
    a(f"s_add_u32 {S(sFlag)}, {S(sT0)}, {WS_FLAG + F_T3}")
    a(f"s_mul_i32 {S(sWoff)}, {S(sW)}, 11264")
    a(f"s_mul_i32 {S(sSrc)}, {S(sPar)}, {HBLK}"); a(f"s_add_u32 {S(sSrc)}, {S(sSrc)}, {S(sWoff)}"); a(f"s_add_u32 {S(sSrc)}, {S(sSrc)}, {WS_H}")
    a(f"s_mov_b32 {S(sBuf)}, 0"); a(f"s_mov_b32 {S(sRd)}, 0")
    a(f"s_mov_b32 {S(sX5)}, {f2u(-math.log2(math.e)):#x}")
    def nxt(s):
        return [f"s_add_u32 {S(s)}, {S(s)}, {SLOT}", f"s_cmp_ge_u32 {S(s)}, {3*SLOT}\ns_cselect_b32 {S(s)}, 0, {S(s)}"]
    def dma(half):
        o = [f"s_add_u32 {S(sT1)}, {S(sBuf)}, {S(sWoff)}"]
        for gq in range(3):
            o.append(f"s_add_u32 m0, {S(sT1)}, {gq*4096}\ns_add_u32 {S(sT0)}, {S(sSrc)}, {gq*4096}")
            for q in range(4 if gq < 2 else 3): o.append(f"buffer_load_dwordx4 {R(vL16)}, {S(sWS,4)}, {S(sT0)} offen offset:{q*1024} sc1 lds")
        o.append(f"s_add_u32 {S(sSrc)}, {S(sSrc)}, {43*1024 if half == 0 else 43*1024 + HBLK}")
        return o + nxt(sBuf)
    def epi():
        o = []
        for p in range(8):
            x0, x1, e0, e1 = E + 16 + 4 * (p & 1), E + 17 + 4 * (p & 1), E + 18 + 4 * (p & 1), E + 19 + 4 * (p & 1)
            o += [f"v_cvt_pk_bf16_f32 {R(x1)}, {R(AC2+2*p)}, {R(AC2+2*p+1)}",
                  f"v_lshlrev_b32 {R(x0)}, 16, {R(x1)}", f"v_and_b32 {R(x1)}, 0xffff0000, {R(x1)}",
                  f"v_mul_f32 {R(e0)}, {S(sX5)}, {R(x0)}", f"v_mul_f32 {R(e1)}, {S(sX5)}, {R(x1)}",
                  f"v_exp_f32 {R(e0)}, {R(e0)}", f"v_exp_f32 {R(e1)}, {R(e1)}",
                  f"v_add_f32 {R(e0)}, 1.0, {R(e0)}", f"v_add_f32 {R(e1)}, 1.0, {R(e1)}",
                  f"v_rcp_f32 {R(e0)}, {R(e0)}", f"v_rcp_f32 {R(e1)}, {R(e1)}",
                  f"v_mul_f32 {R(x0)}, {R(x0)}, {R(e0)}", f"v_mul_f32 {R(x1)}, {R(x1)}, {R(e1)}",
                  f"v_cvt_pk_bf16_f32 {R(E+p)}, {R(x0)}, {R(x1)}"]
        o += [f"buffer_store_dwordx4 {R(E,4)}, {R(vSt)}, {S(sWS,4)}, {S(sDst)} offen sc1",
              f"buffer_store_dwordx4 {R(E+4,4)}, {R(vSt)}, {S(sWS,4)}, {S(sDst)} offen offset:1024 sc1",
              f"s_add_u32 {S(sDst)}, {S(sDst)}, 65536", f"v_mov_b32 {R(vSt)}, {R(vL16)}"]
        return o
    for x in dma(0) + dma(1): a(x)
    a(f"s_mov_b32 {S(sI)}, 0")
    a("s_waitcnt vmcnt(0)")
    tacc(a, cfg, None)
    L = a.newlabel('t3')
    a.label(L)
    for half in (0, 1):
        tacc(a, cfg, 1)
        a(f"s_waitcnt vmcnt({12 if half == 0 else 14})")
        tacc(a, cfg, 4 + half)
        a("s_barrier")
        tacc(a, cfg, 0)
        a(f"v_add_u32 {R(vB0)}, {S(sRd)}, {R(vL16)}")
        for k in range(NF - 1): a(f"ds_read_b128 {R(FR+4*k,4)}, {R(vB0)} offset:{k*1024}")
        for x in nxt(sRd): a(x)
        if half == 0:
            Lok = a.newlabel('t3ok')
            a(f"s_add_u32 {S(sThr)}, {S(sI)}, 2"); a(f"s_min_u32 {S(sThr)}, {S(sThr)}, 32")
            a(f"v_cmp_gt_u32 vcc, {S(sThr)}, {R(vFv)}"); a(f"s_cbranch_vccz {Lok}")
            wait_flags(a, vFv, vFl, S(sF2), S(sThr))
            a.label(Lok)
            tacc(a, cfg, 3)
            sv = epi()
        else:
            a(f"buffer_load_dword {R(vFv)}, {R(vFl)}, {S(sWS,4)}, {S(sF2)} offen sc1")
            sv = []
        sd = dma(half)
        if cfg.get('t3nodma'): sd = [x for x in sd if not x.startswith('buffer')]
        for k in range(43):
            a(f"s_waitcnt lgkmcnt({min(NF-2, 42-k)})")
            mf32(a, acc, W0 + 4 * (43 * half + k), FR + 4 * (k % NF), half == 0 and k == 0)
            if k + NF - 1 < 43 and not (cfg.get('t3half') and k & 1): a(f"ds_read_b128 {R(FR+4*((k+NF-1)%NF),4)}, {R(vB0)} offset:{(k+NF-1)*1024}")
            if sd and (k % 2 == 1 or not sd[0].startswith('buffer')): a(sd.pop(0))
            for q in range(4):
                if sv: a(sv.pop(0))
            if half == 1 and k == 30:
                tacc(a, cfg, 1); a("s_waitcnt vmcnt(12)"); tacc(a, cfg, 2); post_flag(a, vC1, vOne, S(sFlag), S(sI))
        assert not sd and not sv
    for p in range(8): a(f"v_mov_b64 {R(AC2+2*p,2)}, {R(acc+2*p,2)}")
    a(f"s_add_u32 {S(sI)}, {S(sI)}, 1"); a(f"s_cmp_lt_u32 {S(sI)}, 32"); a(f"s_cbranch_scc1 {L}")
    for x in epi(): a(x)
    a("s_waitcnt vmcnt(0)"); post_flag(a, vC1, vOne, S(sFlag), 32)
    a(f"s_branch {exit_label}")


def allred(a, regs, tmps, op):
    for ctl in ('row_ror:8', 'row_ror:4', 'row_ror:2', 'row_ror:1'):
        for r in regs: a(f"{op}_dpp {R(r)}, {R(r)}, {R(r)} {ctl} row_mask:0xf bank_mask:0xf")
    for sw in ('v_permlane16_swap_b32', 'v_permlane32_swap_b32'):
        for r, t in zip(regs, tmps): a(f"v_mov_b32 {R(t)}, {R(r)}")
        for r, t in zip(regs, tmps): a(f"{sw} {R(r)}, {R(t)}")
        for r, t in zip(regs, tmps): a(f"{op} {R(r)}, {R(r)}, {R(t)}")


PFSRD = [sD, sE, 56, sB, 60]
def layernorm(a, cfg):
    X = 32; F = 64; sm = [16, 17, 18, 19]; tm = [20, 21, 22, 23]; mb = [24, 25, 26, 27]
    sU = sX0
    a(f"s_sub_u32 {S(sU)}, {S(sG)}, 4"); a(f"s_lshl_b32 {S(sU)}, {S(sU)}, 5"); a(f"s_add_u32 {S(sU)}, {S(sU)}, {S(sH)}")
    a(f"s_lshl_b32 {S(sT0)}, {S(sU)}, 14"); a(f"s_lshl_b32 {S(sT1)}, {S(sW)}, 12"); a(f"s_add_u32 {S(sT0)}, {S(sT0)}, {S(sT1)}")
    for r in range(4): a(f"buffer_load_dwordx4 {R(X+4*r,4)}, {R(vL16)}, {S(sA,4)}, {S(sT0)} offen offset:{r*1024}")
    npf = 0
    if cfg.get('pf', 1):
        a(f"v_lshlrev_b32 {R(vC0)}, 7, {R(vLane)}")
        a(f"s_lshl_b32 {S(sT1)}, {S(sU)}, 2"); a(f"s_add_u32 {S(sT1)}, {S(sT1)}, {S(sW)}"); a(f"s_lshl_b32 {S(sT1)}, {S(sT1)}, 13")
        a(f"v_add_u32 {R(vC0)}, {S(sT1)}, {R(vC0)}")
        for q, srd in enumerate(PFSRD):
            a(f"buffer_load_dword {R(100+q)}, {R(vC0)}, {S(srd,4)}, 0 offen"); npf += 1
    for r in range(4):
        a(f"s_waitcnt vmcnt({3-r+npf})")
        for d in range(4):
            a(f"v_lshlrev_b32 {R(F+8*r+2*d)}, 16, {R(X+4*r+d)}"); a(f"v_and_b32 {R(F+8*r+2*d+1)}, 0xffff0000, {R(X+4*r+d)}")
        a(f"v_add_f32 {R(sm[r])}, {R(F+8*r)}, {R(F+8*r+1)}")
        for j in range(2, 8): a(f"v_add_f32 {R(sm[r])}, {R(sm[r])}, {R(F+8*r+j)}")
    allred(a, sm, tm, 'v_add_f32')
    a(f"s_mov_b32 {S(sT2)}, {f2u(1/512):#x}")
    for r in range(4):
        a(f"v_mul_f32 {R(sm[r])}, {S(sT2)}, {R(sm[r])}")
        cvt(a, mb[r], sm[r], sm[r]); a(f"v_lshlrev_b32 {R(mb[r])}, 16, {R(mb[r])}")
    vs = [28, 29, 30, 31]
    for r in range(4):
        for j in range(8):
            a(f"v_sub_f32 {R(tm[r])}, {R(F+8*r+j)}, {R(sm[r])}")
            if j == 0: a(f"v_mul_f32 {R(vs[r])}, {R(tm[r])}, {R(tm[r])}")
            else: a(f"v_fmac_f32 {R(vs[r])}, {R(tm[r])}, {R(tm[r])}")
    allred(a, vs, tm, 'v_add_f32')
    def rnd(r): cvt(a, r, r, r); a(f"v_lshlrev_b32 {R(r)}, 16, {R(r)}")
    for r in range(4):
        v = vs[r]
        a(f"v_mul_f32 {R(v)}, {S(sT2)}, {R(v)}"); rnd(v)
        a(f"v_add_f32 {R(v)}, {f2u(1e-5):#x}, {R(v)}"); rnd(v)
        a(f"v_sqrt_f32 {R(v)}, {R(v)}"); rnd(v)
        a(f"v_rcp_f32 {R(v)}, {R(v)}")
    a(f"s_lshl_b32 {S(sT1)}, {S(sW)}, 6"); a(f"v_lshlrev_b32 {R(vC0)}, 8, {R(vLane)}"); a(f"v_add_u32 {R(vC0)}, {S(sT1)}, {R(vC0)}")
    for r in range(4):
        for d in range(4):
            f = F + 8 * r + 2 * d
            a(f"v_sub_f32 {R(f)}, {R(f)}, {R(mb[r])}"); a(f"v_sub_f32 {R(f+1)}, {R(f+1)}, {R(mb[r])}")
            cvt(a, f + 1, f, f + 1)
            a(f"v_lshlrev_b32 {R(f)}, 16, {R(f+1)}"); a(f"v_and_b32 {R(f+1)}, 0xffff0000, {R(f+1)}")
            a(f"v_mul_f32 {R(f)}, {R(f)}, {R(vs[r])}"); a(f"v_mul_f32 {R(f+1)}, {R(f+1)}, {R(vs[r])}")
            cvt(a, X + 4 * r + d, f, f + 1)
        a(f"ds_write_b128 {R(vC0)}, {R(X+4*r,4)} offset:{r*16}")
    a("s_waitcnt lgkmcnt(0)"); a("s_barrier")
    a(f"s_lshl_b32 {S(sT1)}, {S(sW)}, 12"); a(f"v_add_u32 {R(vC0)}, {S(sT1)}, {R(vL16)}")
    for r in range(4): a(f"ds_read_b128 {R(X+4*r,4)}, {R(vC0)} offset:{r*1024}")
    a(f"v_lshrrev_b32 {R(vC1)}, 4, {R(vLane)}"); a(f"v_and_b32 {R(vC2)}, 15, {R(vLane)}")
    a(f"v_lshlrev_b32 {R(vC1)}, 9, {R(vC1)}"); a(f"v_lshl_add_u32 {R(vC1)}, {R(vC2)}, 4, {R(vC1)}")
    a(f"s_lshr_b32 {S(sT0)}, {S(sU)}, 1"); a(f"s_lshl_b32 {S(sT0)}, {S(sT0)}, 15")
    a(f"s_and_b32 {S(sT1)}, {S(sU)}, 1"); a(f"s_lshl_b32 {S(sT1)}, {S(sT1)}, 8"); a(f"s_add_u32 {S(sT0)}, {S(sT0)}, {S(sT1)}")
    a(f"s_lshl_b32 {S(sT1)}, {S(sW)}, 13"); a(f"s_add_u32 {S(sT0)}, {S(sT0)}, {S(sT1)}")
    if WS_XN: a(f"s_add_u32 {S(sT0)}, {S(sT0)}, {WS_XN}")
    a(f"s_add_u32 {S(sT1)}, {S(sT0)}, 4096")
    for r in range(4):
        a(f"s_waitcnt lgkmcnt({3-r})")
        a(f"buffer_store_dwordx4 {R(X+4*r,4)}, {R(vC1)}, {S(sWS,4)}, {S(sT0 if r < 2 else sT1)} offen offset:{(r&1)*2048} sc1")
    wait_all_tickets(a, vC3, vC4)
    a(f"s_lshl_b32 {S(sT0)}, {S(sU)}, 5"); a(f"s_add_u32 {S(sT0)}, {S(sT0)}, {S(sW)}"); a(f"s_lshl_b32 {S(sT0)}, {S(sT0)}, 2")
    a(f"s_add_u32 {S(sT0)}, {S(sT0)}, {WS_FLAG + F_LN}")
    post_flag(a, vC0, vOne, S(sT0), 1)
    rstamp(a, cfg, 1)
    a("s_barrier")
```

```python
import sys
from common import *
import chain, workers, p3

NAME = 'recurrent_scan__memory_aug_recurrent_mem_tr__glu_gated_bilinear__prompt_kernel'
HEAD = open('recurrent_scan__memory_aug_recurrent_mem_tr__glu_gated_bilinear__prompt.s.ref').read().split('; Override launch')[0]

def build(cfg):
    a = Asm()
    diag = cfg.get('diag')
    a("s_cmp_ge_u32 s2, 256"); a("s_cbranch_scc1 L_exit")
    if diag: a("s_memrealtime s[96:97]")
    srd_load(a, [(sWS, 'ws'), (sDBG, 'dbg')])
    a("v_lshrrev_b32 v1, 6, v0"); a(f"v_readfirstlane_b32 {S(sW)}, v1")
    a("v_and_b32 v0, 63, v0")
    a(f"s_mov_b32 {S(sCnt)}, 0")
    a(f"s_getreg_b32 {S(sG)}, hwreg(HW_REG_XCC_ID)"); a(f"s_and_b32 {S(sG)}, {S(sG)}, 7")
    if cfg.get('fakexcc') == 1: a(f"s_lshr_b32 {S(sG)}, s2, 5")
    if cfg.get('fakexcc') == 2:
        a(f"s_lshr_b32 {S(sG)}, s2, 4"); a(f"s_min_u32 {S(sG)}, {S(sG)}, 7")
    a("v_mov_b32 v2, 0")
    a(f"s_cmp_lg_u32 {S(sW)}, 0"); a("s_cbranch_scc1 L_code")
    a("v_lshlrev_b32 v1, 2, v0")
    a(f"s_lshl_b32 {S(sT0)}, s2, 8"); a(f"s_add_u32 {S(sT0)}, {S(sT0)}, {WS_FLAG}")
    a(f"buffer_store_dword v2, v1, {S(sWS,4)}, {S(sT0)} offen sc1")
    a("v_mov_b32 v1, 1"); a(f"s_lshl_b32 {S(sT0)}, {S(sG)}, 5"); a(f"v_mov_b32 v3, {S(sT0)}")
    a("s_waitcnt vmcnt(0)")
    a("s_mov_b64 exec, 1")
    a(f"buffer_atomic_add v1, v3, {S(sDBG,4)}, 0 offen sc0 sc1")
    a("s_waitcnt vmcnt(0)")
    a("ds_write_b32 v2, v1")
    a("s_mov_b64 exec, -1")
    a("s_waitcnt lgkmcnt(0)")
    a("s_branch L_tk")
    a.label("L_code")
    if cfg.get('codepf', 1):
        a("s_getpc_b64 s[40:41]")
        a.label("L_pc")
        a("s_mov_b32 s42, L_end-L_pc-4")
        a("s_lshr_b32 s44, s2, 3"); a("s_and_b32 s44, s44, 3"); a("s_mul_i32 s44, s44, 3"); a(f"s_add_u32 s44, s44, {S(sW)}")
        a("s_sub_u32 s44, s44, 1"); a("s_lshl_b32 s44, s44, 13")
        a("v_lshlrev_b32 v3, 7, v0"); a("v_add_u32 v3, s44, v3")
        a("v_min_u32 v3, s42, v3")
        a("v_mov_b32 v5, s41"); a("v_add_co_u32 v4, vcc, s40, v3"); a("v_addc_co_u32 v5, vcc, 0, v5, vcc")
        a("global_load_dword v3, v[4:5], off")
        a("s_waitcnt vmcnt(0)")
    a.label("L_tk")
    a("s_barrier")
    a("ds_read_b32 v1, v2"); a("s_waitcnt lgkmcnt(0)")
    a(f"v_readfirstlane_b32 {S(sH)}, v1")
    a("s_barrier")
    a(f"s_cmp_lt_u32 {S(sH)}, 32"); a("s_cbranch_scc1 L_role")
    wait_all_tickets(a, 1, 2)
    sR, sX, sCn = 40, 41, 42
    a(f"s_sub_u32 {S(sR)}, {S(sH)}, 32")
    for x in range(7):
        a(f"v_readlane_b32 {S(sCn)}, v1, {x}"); a(f"s_max_u32 {S(sCn)}, {S(sCn)}, 32"); a(f"s_sub_u32 {S(sCn)}, {S(sCn)}, 32")
        a(f"s_cmp_gt_u32 {S(sG)}, {x}"); a(f"s_cselect_b32 {S(sCn)}, {S(sCn)}, 0"); a(f"s_add_u32 {S(sR)}, {S(sR)}, {S(sCn)}")
    for x in range(8):
        a(f"v_readlane_b32 {S(sCn)}, v1, {x}"); a(f"s_min_u32 {S(sCn)}, {S(sCn)}, 32")
        a(f"s_mov_b32 {S(sG)}, {x}"); a(f"s_add_u32 {S(sH)}, {S(sCn)}, {S(sR)}")
        a(f"s_cmp_lt_u32 {S(sH)}, 32"); a("s_cbranch_scc1 L_role")
        a(f"s_sub_u32 {S(sR)}, {S(sH)}, 32")
    a("s_branch L_exit")
    a.label("L_role")
    if diag:
        for q in list(range(84, 92)) + list(range(66, 78)): a(f"s_mov_b32 s{q}, 0")
    rstamp(a, cfg, 0)
    a(f"s_cmp_ge_u32 {S(sG)}, 4"); a("s_cbranch_scc1 L_p3")
    a(f"s_cmp_eq_u32 {S(sG)}, 3"); a("s_cbranch_scc1 L_glu")
    a(f"s_cmp_lg_u32 {S(sG)}, 0"); a("s_cbranch_scc1 L_t1")
    done = "L_done" if diag else "L_exit"
    m0 = chain.chain_setup(a, cfg)
    chain.chain_init_buffers(a, cfg, m0, ' sc1')
    def hook():
        t = chain.O(6)
        wait_all_tickets(a, t, t + 1)
        a(f"v_mov_b32 {R(t+1)}, 0"); a(f"v_mov_b32 {R(t)}, 1")
        a(f"s_lshl_b32 {S(sT0)}, {S(sH)}, 2"); a(f"s_add_u32 {S(sT0)}, {S(sT0)}, {WS_FLAG + F_RDY}")
        a("s_mov_b64 exec, 1")
        a(f"buffer_store_dword {R(t)}, {R(t+1)}, {S(sWS,4)}, {S(sT0)} offen sc1")
        a("s_mov_b64 exec, -1")
    chain.chain_load_weights(a, cfg, hook)
    t = chain.O(4)
    if diag:
        a("s_memrealtime s[90:91]"); a("s_waitcnt lgkmcnt(0)"); a("s_mov_b32 s97, s84")
    wait_all_tickets(a, t, t + 1)
    a(f"v_readlane_b32 {S(chain.sFast)}, {R(t)}, 0")
    a(f"v_and_b32 {R(t+4)}, 0x70, {R(chain.vL16)}")
    a(f"s_mov_b32 {S(sT2)}, {WS_FLAG + F_RDY}")
    if not cfg.get('noflag'):
        wait_flags(a, t, t + 4, S(sT2), 1, width=4)
        a(f"v_and_b32 {R(t+4)}, 0xb0, {R(chain.vL16)}")
        wait_flags(a, t, t + 4, S(chain.sF1), 1 if cfg.get('tdist', 1) == 1 else 2)
    a(f"s_cmp_lg_u32 {S(sW)}, 3"); a("s_cbranch_scc1 L_nold")
    a(f"v_mov_b32 {R(t+1)}, 0"); a(f"v_mov_b32 {R(t+2)}, 1")
    a(f"s_lshl_b32 {S(sT0)}, {S(sH)}, 7"); a(f"s_add_u32 {S(sT0)}, {S(sT0)}, {WS_FLAG + F_LD}")
    a("s_mov_b64 exec, 1")
    a(f"buffer_store_dword {R(t+2)}, {R(t+1)}, {S(sWS,4)}, {S(sT0)} offen sc1")
    a("s_mov_b64 exec, -1")
    a.label("L_nold")
    if diag: a("s_memrealtime s[98:99]"); a("s_memtime s[94:95]")
    if not cfg.get('slow'):
        a(f"s_cmp_lt_u32 {S(chain.sFast)}, 32"); a("s_cbranch_scc1 L_chain_slow")
        chain.chain_loop(a, cfg, '', done)
    a.label("L_chain_slow")
    chain.chain_loop(a, dict(cfg, diag=None) if not cfg.get('slow') else cfg, ' sc1', done)
    a.label("L_t1")
    workers.role_t1(a, cfg, done)
    a.label("L_glu")
    a(f"s_cmp_ge_u32 {S(sH)}, 30"); a("s_cbranch_scc1 L_exit")
    a(f"s_cmp_ge_u32 {S(sH)}, 22"); a("s_cbranch_scc1 L_t3")
    workers.role_t2(a, cfg, done)
    a.label("L_t3")
    workers.role_t3(a, cfg, done)
    a.label("L_p3")
    p3.p3_setup(a, cfg)
    p3.p3_consts(a, cfg)
    if diag: a("s_memrealtime s[98:99]")
    if not cfg.get('slow'):
        a(f"s_cmp_lt_u32 {S(workers.sX7)}, 32"); a("s_cbranch_scc1 L_p3_slow")
        p3.p3_loop(a, cfg, '', done)
    a.label("L_p3_slow")
    p3.p3_loop(a, cfg, ' sc1', done)
    if diag:
        a.label("L_done")
        a("s_nop 7"); a("s_nop 7")
        a("s_memrealtime s[100:101]"); a("s_memtime s[92:93]"); a("s_waitcnt lgkmcnt(0)"); a("s_sub_u32 s92, s92, s94")
        a(f"s_lshl_b32 {S(sT0)}, {S(sG)}, 5"); a(f"s_add_u32 {S(sT0)}, {S(sT0)}, {S(sH)}")
        a(f"s_lshl_b32 {S(sT0)}, {S(sT0)}, 2"); a(f"s_add_u32 {S(sT0)}, {S(sT0)}, {S(sW)}"); a(f"s_lshl_b32 {S(sT0)}, {S(sT0)}, 8")
        a(f"s_add_u32 {S(sT0)}, {S(sT0)}, {WS_DBG}")
        a("v_mov_b32 v13, 0")
        a(f"s_cmp_eq_u32 {S(sG)}, 0"); a("s_cselect_b32 s84, s97, s84")
        for k, s in enumerate([96, 98, 100, chain.sR1, chain.sR2, 92, sCnt, 84, 86, 88, 90, 70, 71, 72, 73, 74, 75, 76, 77]):
            a(f"v_mov_b32 v12, s{s}")
            a(f"buffer_store_dword v12, v13, {S(sWS,4)}, {S(sT0)} offen offset:{128+4*k}")
        for e in range(8):
            Le = a.newlabel('cal')
            a("s_memrealtime s[40:41]"); a("s_waitcnt lgkmcnt(0)")
            a.label(Le)
            a("s_memrealtime s[42:43]"); a("s_memtime s[44:45]"); a("s_waitcnt lgkmcnt(0)")
            a("s_cmp_eq_u32 s40, s42"); a(f"s_cbranch_scc1 {Le}")
            a("v_mov_b32 v12, s42"); a(f"buffer_store_dword v12, v13, {S(sWS,4)}, {S(sT0)} offen offset:{48+8*e}")
            a("v_mov_b32 v12, s44"); a(f"buffer_store_dword v12, v13, {S(sWS,4)}, {S(sT0)} offen offset:{52+8*e}")
    a.label("L_exit")
    a("s_endpgm")
    a.label("L_end")
    body = a.finish(cfg.get('verbose'))
    hdr = HEAD + f"""; @launch grid=(256,1,1) block=(256,1,1) lds=163840
.amdgcn_target "amdgcn-amd-amdhsa--gfx950"
.text
.globl {NAME}
.p2align 8
.type {NAME},@function
{NAME}:
"""
    tail = f""".section .rodata,"a"
.p2align 6
.amdhsa_kernel {NAME}
  .amdhsa_next_free_vgpr 512
  .amdhsa_next_free_sgpr 102
  .amdhsa_accum_offset 256
  .amdhsa_group_segment_fixed_size 0
  .amdhsa_kernarg_size 112
  .amdhsa_user_sgpr_count 2
  .amdhsa_user_sgpr_kernarg_segment_ptr 1
  .amdhsa_system_sgpr_workgroup_id_x 1
.end_amdhsa_kernel
"""
    return hdr + body + tail

DEF = dict(pf=0, p3early=1, nx=0, h1=[11,0,0,2,3,3,3], h2a=4)
if __name__ == '__main__':
    cfg = dict(DEF); cfg.update(eval(sys.argv[2]) if len(sys.argv) > 2 else {})
    open(sys.argv[1], 'w').write(build(cfg))
```

```python
import re

def R(i, n=1):
    p = 'v' if i < 256 else 'a'
    j = i if i < 256 else i - 256
    assert 0 <= i < 512 and (i + n - 1) // 256 == i // 256, (i, n)
    return f"{p}{j}" if n == 1 else f"{p}[{j}:{j+n-1}]"

def S(i, n=1):
    return f"s{i}" if n == 1 else f"s[{i}:{i+n-1}]"

_reg_re = re.compile(r"^(-|abs\()?\s*([vas])(?:(\d+)|\[(\d+):(\d+)\])\)?$")

def _regs(op):
    op = op.strip()
    if op in ('vcc',): return {('s', 106), ('s', 107)}
    if op == 'vcc_lo': return {('s', 106)}
    if op == 'vcc_hi': return {('s', 107)}
    if op == 'exec': return {('s', 126), ('s', 127)}
    if op == 'm0': return {('s', 124)}
    m = _reg_re.match(op)
    if not m: return set()
    k = m.group(2)
    if m.group(3) is not None: lo = hi = int(m.group(3))
    else: lo, hi = int(m.group(4)), int(m.group(5))
    if k == 's': return {('s', i) for i in range(lo, hi + 1)}
    off = 256 if k == 'a' else 0
    return {('v', i + off) for i in range(lo, hi + 1)}

TRANS = ('v_exp_', 'v_log_', 'v_rcp_', 'v_rsq_', 'v_sqrt_', 'v_sin_', 'v_cos_')

class Ins:
    __slots__ = ('text', 'mn', 'kind', 'w', 'r', 'passes', 'srcc', 'ab', 'dpp', 'ws', 'wide', 'data', 'ldsdma', 'lanesel')
    def __init__(self, text):
        self.text = text
        t = text.split(';')[0].strip()
        parts = t.split(None, 1)
        mn = parts[0]; self.mn = mn
        rest = parts[1] if len(parts) > 1 else ''
        ops = []; mods = ''
        for o in (rest.split(',') if rest else []):
            sp = o.strip().split(None, 1)
            ops.append(sp[0])
            if len(sp) > 1:
                mods = rest[rest.index(sp[1]):]
                break
        self.w = set(); self.r = set(); self.passes = 0; self.srcc = set(); self.ab = set()
        self.dpp = False; self.ws = 1; self.wide = False; self.data = set(); self.ldsdma = False; self.lanesel = set()
        rs = [_regs(o) for o in ops]
        if mn == 's_nop':
            self.kind = 'nop'; self.ws = int(ops[0], 0) + 1
        elif mn.startswith('v_mfma') or mn.startswith('v_smfmac'):
            self.kind = 'mfma'
            self.passes = 8 if '32x32' in mn else 4
            self.w = rs[0]
            if mn.startswith('v_smfmac'):
                self.ab = rs[1] | rs[2] | rs[3]; self.srcc = rs[0]
            else:
                self.ab = rs[1] | rs[2]; self.srcc = rs[3]
            self.r = self.ab | self.srcc
        elif mn.startswith('v_'):
            self.kind = 'valu'
            self.dpp = ('_dpp' in mn) or ('quad_perm' in mods) or ('row_' in mods)
            if 'permlane' in mn and 'swap' in mn:
                self.w = rs[0] | rs[1]; self.r = rs[0] | rs[1]
            elif mn.startswith('v_cmpx'):
                raise ValueError('avoid v_cmpx')
            elif mn.startswith(('v_add_co', 'v_sub_co', 'v_addc_co', 'v_subb_co', 'v_mad_u64', 'v_div_scale')):
                self.w = rs[0] | rs[1]
                for x in rs[2:]: self.r |= x
            else:
                self.w = rs[0]
                for x in rs[1:]: self.r |= x
                if mn.startswith(('v_fmac', 'v_dot2c', 'v_pk_fmac', 'v_writelane')) or self.dpp: self.r |= rs[0]
                if mn.startswith(('v_readlane', 'v_writelane')): self.lanesel = rs[2]
                if mn.startswith('v_div_fmas'): self.r |= _regs('vcc')
        elif mn.startswith('ds_'):
            self.kind = 'ds'
            if mn.startswith(('ds_read', 'ds_bpermute', 'ds_permute', 'ds_swizzle')) or '_rtn' in mn:
                self.w = rs[0]
                for x in rs[1:]: self.r |= x
            else:
                for x in rs: self.r |= x
        elif mn.startswith(('buffer_', 'global_')):
            self.kind = 'vmem'
            allm = (mods + ' ').split()
            if mn in ('buffer_inv', 'buffer_wbl2'):
                pass
            elif 'lds' in allm or '_lds_' in mn:
                self.ldsdma = True
                for x in rs: self.r |= x
                self.r |= _regs('m0')
            elif '_load' in mn:
                self.w = rs[0]
                for x in rs[1:]: self.r |= x
            elif '_store' in mn:
                for x in rs: self.r |= x
                self.data = rs[0] if mn.startswith('buffer_') else rs[1]
                self.wide = mn.endswith(('x3', 'x4'))
            elif '_atomic' in mn:
                for x in rs: self.r |= x
                if 'sc0' in allm: self.w = rs[0]
            else:
                raise ValueError(text)
        elif mn.startswith('s_'):
            self.kind = 'salu'
            if mn.startswith(('s_cmp', 's_cbranch', 's_branch', 's_waitcnt', 's_barrier', 's_endpgm', 's_sleep', 's_setprio', 's_bitcmp', 's_setreg')):
                for x in rs: self.r |= x
            else:
                if rs: self.w = rs[0]
                for x in rs[1:]: self.r |= x
                if 'saveexec' in mn: self.w |= _regs('exec')
        else:
            raise ValueError('unknown instr ' + text)

def need(p, c):
    n = 0
    pv = {x for x in p.w if x[0] == 'v'}
    ps = {x for x in p.w if x[0] == 's'}
    if p.kind == 'valu':
        if c.kind == 'mfma' and pv & c.r: n = max(n, 2)
        if c.kind == 'valu':
            if 'permlane' in c.mn and pv & c.r: n = max(n, 2)
            if c.dpp and pv & c.r: n = max(n, 2)
            if c.mn.startswith(('v_readlane', 'v_readfirstlane')) and pv & c.r: n = max(n, 1)
            if p.mn.startswith(TRANS) and pv & c.r: n = max(n, 1)
            if ps & c.r: n = max(n, 2)
            if ps & c.lanesel: n = max(n, 4)
            if c.mn.startswith('v_div_fmas') and ps & _regs('vcc'): n = max(n, 4)
            if 'op_sel' in p.text and pv & (c.r | c.w): n = max(n, 1)
        if c.kind == 'vmem' and ps & c.r: n = max(n, 5)
        if c.kind == 'salu' and ps & c.r: n = max(n, 1)
    if p.kind == 'mfma':
        big = 12 if p.passes == 8 else 8
        mid = 10 if p.passes == 8 else 6
        if c.kind == 'mfma':
            if pv & c.ab: n = max(n, big)
            if pv & c.srcc:
                if not (c.srcc == pv and c.passes == p.passes): n = max(n, mid)
            elif pv & c.w and c.passes != p.passes: n = max(n, big)
        if c.kind in ('valu', 'vmem', 'ds') and pv & (c.r | c.w): n = max(n, big)
        if c.kind == 'valu' and p.srcc & c.w: n = max(n, 7 if p.passes == 8 else 3)
        if c.kind == 'valu' and p.mn.startswith('v_smfmac') and p.ab & c.w: n = max(n, 1)
    if p.kind == 'vmem' and p.wide and p.data & c.w:
        n = max(n, 2)
    if p.kind == 'salu' and ('s', 124) in p.w and (c.ldsdma or c.mn.startswith('s_movrel') or 'addtid' in c.mn): n = max(n, 1)
    return n

class Asm:
    def __init__(self):
        self.lines = []
        self.uid = 0
    def __call__(self, text):
        for t in text.split('\n'):
            t = t.strip()
            if not t: continue
            if t.endswith(':') or t.startswith(('.', ';')):
                self.lines.append(t)
            else:
                self.lines.append(Ins(t))
    def label(self, name): self.lines.append(name + ':')
    def newlabel(self, base='L'):
        self.uid += 1
        return f"{base}_{self.uid}"
    def finish(self, verbose=False):
        out = []
        hist = []
        inserted = 0
        labels = {}
        def elapsed(seq, c):
            now = 0; mf = 0; vf = 0
            def at(x):
                if x.kind == 'mfma': return max(now, mf, vf)
                if x.kind == 'valu': return max(now, vf)
                return now
            for x in seq:
                t = at(x)
                now = t + x.ws
                if x.kind == 'mfma':
                    mf = t + x.passes; vf = t + (3 if x.mn.startswith('v_smfmac') else 2)
                elif x.kind == 'valu' and x.mn.startswith(TRANS): vf = t + 2
            return now, at(c)
        for ln in self.lines:
            if isinstance(ln, str):
                if ln.endswith(':'): labels[ln[:-1]] = len(out)
                out.append(ln); continue
            req = 0
            for i, p in enumerate(hist):
                k = need(p, ln)
                if k:
                    now, t = elapsed(hist[i:], ln)
                    if p.kind == 'valu' and i == len(hist) - 1: t = now
                    if t - 1 < k: req = max(req, k + 1 - now)
            if req:
                nop = Ins(f"s_nop {req-1}")
                out.append(nop); hist.append(nop); inserted += 1
                if verbose: print('nop', req, 'before', ln.text)
            out.append(ln); hist.append(ln)
            if len(hist) > 14: hist = hist[-14:]
            if ln.mn in ('s_branch', 's_endpgm'): hist = []
        for i, ln in enumerate(out):
            if isinstance(ln, Ins) and ln.mn.startswith(('s_cbranch', 's_branch')):
                tgt = ln.text.split()[1]
                if tgt not in labels: raise ValueError('no label ' + tgt)
                pre = []; j = i
                while j >= 0 and sum(p.ws for p in pre) < 14:
                    if isinstance(out[j], Ins):
                        if j < i and out[j].mn in ('s_branch', 's_endpgm'): break
                        pre.append(out[j])
                    j -= 1
                post = []; j = labels[tgt]
                while j < len(out) and sum(p.ws for p in post) < 14:
                    if isinstance(out[j], Ins): post.append(out[j])
                    j += 1
                pre.reverse()
                for pi_, p in enumerate(pre):
                    for ci, c in enumerate(post):
                        k = need(p, c)
                        if k and elapsed(pre[pi_:] + post[:ci], c)[1] - 1 < k:
                            raise ValueError(f'hazard across branch {ln.text}: {p.text} -> {c.text}')
                        if c.mn in ('s_branch', 's_endpgm'): break
        self.inserted = inserted
        return '\n'.join(x if isinstance(x, str) else '    ' + x.text for x in out) + '\n'

class Cnt:
    def __init__(self, a, name, maxv):
        self.a = a; self.name = name; self.maxv = maxv; self.q = []
    def issue(self, tag): self.q.append(tag)
    def wait(self, tag):
        idx = max((i for i, t in enumerate(self.q) if t == tag), default=None)
        if idx is None: return
        n = len(self.q) - 1 - idx
        n = min(n, self.maxv)
        self.a(f"s_waitcnt {self.name}({n})")
        self.q = self.q[len(self.q) - n:] if n else []
    def drain(self):
        self.a(f"s_waitcnt {self.name}(0)"); self.q = []
    def reset(self): self.q = []
```

```python
from common import *
import math, struct

KXB = 0
SAREA = 8192
TAREA = SAREA + 65536
MEMST = TAREA + 65536
VXB = MEMST + 8192
QB = VXB + 8192
RS = 288
KBUF = QB + 8 * RS
OB = KBUF + 8 * RS
LDS_END = OB + 8 * RS
RING = TAREA
NSLOT = 5
assert RING + NSLOT * 16384 <= 163840 and LDS_END <= 163840 and MEMST % 8192 == 0

vT, vL16, vIDX, vOWN, vQW, vQR, vKR, vTCH, vH1S, vMS, vWL, vFLAG = range(12)
TQ, PQ, KVQ, ONES = 12, 16, 20, 24
def O(i): return 32 + 8 * i
PERM0 = 128

sStep, sMemRd, sMemWr, sMemRst = 40, 41, 42, 43
sH1S = 44
sH1L, sTag, sKV, sKVM, sCc, sF1 = 48, 49, 50, 51, 52, 53
sPm = 54
RSTR = 8192 + 256 + 1024
sThr, sFast, sTch, sTinc, sKVMn = 56, 57, 57, 63, 53
sM0K, sM0V, sSlot, sR1, sR2 = 58, 59, 60, 61, 62
sRdo, sMemRd2 = 70, 71
sMu = 68
sSel = 64
sStamp = 72
vSELV = ONES + 1
vIDX3 = ONES + 5

OWN = [(m, t, c) for c in (0, 1) for m in 'qkv' for t in (0, 1)]
TREG = [O(1), O(2), O(3), O(7), O(8), O(9), O(10), O(11)]
WOORD = [(t, kap) for t in range(4) for kap in range(4)]
SREG = [O(7), O(8), O(11), O(0), O(2), O(3), O(9), O(10)]

def block_map():
    reg = {}; tidx = {}; sidx = {}
    nxt = PERM0
    for i, b in enumerate(OWN):
        if i < 8: reg[b] = TREG[i]; tidx[b] = i
        else: reg[b] = nxt; nxt += 8
    for m in 'qkv':
        for c in range(2, 8):
            for t in (0, 1):
                reg[(m, t, c)] = nxt; nxt += 8
    for i, b in enumerate(WOORD):
        key = ('o',) + b
        if i < 8: reg[key] = nxt; nxt += 8
        else: reg[key] = SREG[i - 8]; sidx[key] = i - 8
    assert nxt == 512
    return reg, tidx, sidx

REG, TIDX, SIDX = block_map()
ACC = {'q': O(4), 'k': O(5), 'v': O(6)}
def MCH(c): return O(0) + 4 * c


def chain_setup(a, cfg):
    LR = cfg.get('lr', 0)
    g, c, t0, t1, t2, t3 = O(0), O(0) + 1, O(0) + 2, O(0) + 3, O(0) + 4, O(0) + 5
    lane = O(0) + 6
    srd_load(a, [(sA, 'Wq'), (sB, 'Wk'), (sC_, 'Wv'), (sD, 'Wo'), (sE, 'mem0')])
    a(f"v_mov_b32 {R(lane)}, v0")
    a(f"v_lshlrev_b32 {R(vL16)}, 4, v0")
    a(f"v_lshrrev_b32 {R(g)}, 4, v0")
    a(f"v_and_b32 {R(c)}, 15, v0")
    a(f"s_mov_b32 {S(sPm)}, 0xcccccccc"); a(f"s_mov_b32 {S(sPm+1)}, 0xcccccccc")
    a(f"s_mov_b32 {S(sSel)}, 0xaaaaaaaa"); a(f"s_mov_b32 {S(sSel+1)}, 0xaaaaaaaa")
    a(f"s_mov_b32 {S(sSel+2)}, 0xf0f0f0f0"); a(f"s_mov_b32 {S(sSel+3)}, 0xf0f0f0f0")
    a(f"v_mov_b32 {R(t0)}, 0x44444444"); a(f"v_mov_b32 {R(t1)}, 0xe4e4eeee")
    a(f"v_cndmask_b32 {R(vIDX)}, {R(t0)}, {R(t1)}, {S(sPm,2)}")
    a(f"s_lshl_b32 {S(sT0)}, {S(sW)}, 11"); a(f"s_add_u32 {S(sT1)}, {S(sT0)}, {MEMST}")
    a(f"v_add_u32 {R(vOWN)}, {S(sT1)}, {R(vL16)}")
    a(f"s_add_u32 {S(sM0K)}, {S(sT0)}, {KXB}"); a(f"s_add_u32 {S(sM0V)}, {S(sT0)}, {VXB}")
    a(f"s_lshl_b32 {S(sT1)}, {S(sW)}, 14"); a(f"s_add_u32 {S(sT1)}, {S(sT1)}, {SAREA}")
    a(f"v_add_u32 {R(vWL)}, {S(sT1)}, {R(vL16)}")
    a(f"s_lshl_b32 {S(sT1)}, {S(sW)}, 6"); a(f"s_add_u32 {S(sT1)}, {S(sT1)}, {QB}")
    a(f"v_mul_u32_u24 {R(t0)}, {2*RS}, {R(g)}")
    a(f"v_lshl_add_u32 {R(t0)}, {R(c)}, 2, {R(t0)}")
    a(f"v_add_u32 {R(vQW)}, {S(sT1)}, {R(t0)}")
    a(f"v_lshrrev_b32 {R(t0)}, 2, {R(c)}"); a(f"v_and_b32 {R(t1)}, 1, {R(c)}")
    a(f"v_lshl_add_u32 {R(t1)}, {R(t0)}, 1, {R(t1)}")
    a(f"v_mul_u32_u24 {R(t1)}, {RS}, {R(t1)}")
    a(f"v_lshl_add_u32 {R(t2)}, {R(g)}, 4, {R(t1)}")
    a(f"v_add_u32 {R(vQR)}, {QB}, {R(t2)}")
    a(f"v_and_b32 {R(t1)}, 2, {R(t0)}")
    a(f"v_add_u32 {R(t1)}, {R(t1)}, {R(c)}"); a(f"v_and_b32 {R(t1)}, 3, {R(t1)}")
    a(f"v_and_b32 {R(t2)}, 1, {R(t0)}")
    a(f"v_lshl_add_u32 {R(t1)}, {R(t2)}, 2, {R(t1)}")
    a(f"v_mul_u32_u24 {R(t1)}, {RS}, {R(t1)}")
    a(f"v_lshl_add_u32 {R(t1)}, {R(g)}, 4, {R(t1)}")
    a(f"v_add_u32 {R(vKR)}, {KBUF}, {R(t1)}")
    a(f"v_lshrrev_b32 {R(t0)}, 5, {R(lane)}"); a(f"v_mul_u32_u24 {R(t0)}, {RSTR}, {R(t0)}")
    a(f"v_and_b32 {R(t1)}, 31, {R(lane)}"); a(f"v_lshl_add_u32 {R(vH1S)}, {R(t1)}, 3, {R(t0)}")
    for t in range(4):
        a(f"s_add_u32 {S(sT0)}, {S(sH)}, {t}"); a(f"s_and_b32 {S(sT0)}, {S(sT0)}, 3")
        a(f"s_lshl_b32 {S(sT1)}, {S(sW)}, 2"); a(f"s_add_u32 {S(sT0)}, {S(sT0)}, {S(sT1)}")
        a(f"s_mul_i32 {S(sT0)}, {S(sT0)}, {2*RSTR}")
        a(f"s_lshr_b32 {S(sT1)}, {S(sH)}, 2"); a(f"s_lshl_b32 {S(sT1)}, {S(sT1)}, 8")
        a(f"s_add_u32 {S(sT0)}, {S(sT0)}, {S(sT1)}")
        a(f"s_add_u32 {S(sH1S+t)}, {S(sT0)}, {WS_PART + t*2048}")
    a(f"s_mul_i32 {S(sT0)}, {S(sH)}, {RSTR}"); a(f"s_add_u32 {S(sH1L)}, {S(sT0)}, {WS_PART}")
    a(f"s_lshr_b32 {S(sT0)}, {S(sH)}, 1"); a(f"s_and_b32 {S(sT0)}, {S(sT0)}, 3"); a(f"s_lshl_b32 {S(sT2)}, {S(sT0)}, {11+LR}")
    a(f"s_lshr_b32 {S(sT1)}, {S(sH)}, 4"); a(f"s_lshl_b32 {S(sT1)}, {S(sT1)}, {10+LR}"); a(f"s_add_u32 {S(sT2)}, {S(sT2)}, {S(sT1)}")
    a(f"s_and_b32 {S(sT1)}, {S(sH)}, {(1<<LR)-1}"); a(f"s_lshl_b32 {S(sT1)}, {S(sT1)}, 10"); a(f"s_lshl_b32 {S(sRdo)}, {S(sW)}, {11+LR}"); a(f"s_add_u32 {S(sRdo)}, {S(sRdo)}, {S(sT1)}")
    a(f"s_bfe_u32 {S(sT1)}, {S(sH)}, 0x10003"); a(f"s_lshl_b32 {S(sT1)}, {S(sT1)}, 9"); a(f"s_add_u32 {S(sT2)}, {S(sT2)}, {S(sT1)}")
    a(f"s_and_b32 {S(sT1)}, {S(sH)}, 1"); a(f"s_lshl_b32 {S(sT1)}, {S(sT1)}, 7"); a(f"s_add_u32 {S(sT2)}, {S(sT2)}, {S(sT1)}")
    a(f"v_and_b32 {R(t2)}, 1, {R(g)}"); a(f"v_lshlrev_b32 {R(t0)}, 8, {R(t2)}")
    a(f"v_lshrrev_b32 {R(t1)}, 1, {R(g)}"); a(f"v_lshl_add_u32 {R(t0)}, {R(t1)}, 4, {R(t0)}")
    a(f"v_lshrrev_b32 {R(t3)}, 2, {R(c)}"); a(f"v_lshl_add_u32 {R(t0)}, {R(t3)}, 5, {R(t0)}")
    a(f"v_and_b32 {R(t3)}, 3, {R(c)}"); a(f"v_lshl_add_u32 {R(t0)}, {R(t3)}, 2, {R(t0)}")
    a(f"s_cmp_eq_u32 {S(sW)}, 0"); a(f"s_cselect_b32 {S(sT2)}, {S(sT2)}, {OOB:#x}")
    a(f"v_add_u32 {R(vMS)}, {S(sT2)}, {R(t0)}")
    a(f"s_lshl_b32 {S(sT2)}, {S(sT0)}, 8")
    a(f"s_lshr_b32 {S(sT1)}, {S(sH)}, 3"); a(f"s_lshl_b32 {S(sT1)}, {S(sT1)}, 6"); a(f"s_add_u32 {S(sT2)}, {S(sT2)}, {S(sT1)}")
    a(f"s_and_b32 {S(sT1)}, {S(sH)}, 1"); a(f"s_lshl_b32 {S(sT1)}, {S(sT1)}, 12"); a(f"s_add_u32 {S(sT2)}, {S(sT2)}, {S(sT1)}")
    a(f"v_lshlrev_b32 {R(t0)}, 5, {R(t2)}")
    a(f"v_lshl_add_u32 {R(t0)}, {R(t1)}, 10, {R(t0)}")
    a(f"v_lshrrev_b32 {R(t3)}, 3, {R(c)}"); a(f"v_lshl_add_u32 {R(t0)}, {R(t3)}, 11, {R(t0)}")
    a(f"v_and_b32 {R(t1)}, 7, {R(c)}"); a(f"v_lshl_add_u32 {R(t0)}, {R(t1)}, 2, {R(t0)}")
    for j in (0, 2, 3, 4, 6, 7): a(f"v_mov_b32 {R(ONES+j)}, 0x3f803f80")
    a(f"v_lshlrev_b32 {R(t1)}, 4, {R(t3)}"); a(f"v_mov_b32 {R(t2)}, 0x3f80")
    a(f"v_lshlrev_b32 {R(vSELV)}, {R(t1)}, {R(t2)}")
    a(f"v_bfe_u32 {R(t1)}, {R(c)}, 2, 1"); a(f"v_mul_u32_u24 {R(t1)}, 0xaaaa, {R(t1)}"); a(f"v_add_u32 {R(vIDX3)}, 0x4444, {R(t1)}")
    a(f"v_and_b32 {R(t1)}, 31, {R(lane)}")
    a(f"s_cmp_eq_u32 {S(sW)}, 1"); a(f"s_cselect_b32 {S(sT1)}, 4, 2"); a(f"v_lshlrev_b32 {R(vTCH)}, {S(sT1)}, {R(t1)}")
    a(f"s_add_u32 {S(sT1)}, {S(sW)}, 1"); a(f"s_bitcmp1_b32 {S(sT1)}, 1"); a(f"s_cselect_b32 {S(sT1)}, 0, {OOB:#x}"); a(f"v_or_b32 {R(vTCH)}, {S(sT1)}, {R(vTCH)}")
    a(f"s_lshl_b32 {S(sT1)}, {S(sH)}, 8"); a(f"s_add_u32 {S(sF1)}, {S(sT1)}, {WS_FLAG + F_T1}")
    a(f"buffer_load_dword {R(t3)}, {R(t0)}, {S(sE,4)}, {S(sT2)} offen")
    a(f"s_mov_b32 {S(sCc)}, {f2u(128 ** -0.5 * math.log2(math.e)):#x}")
    a(f"s_mov_b32 {S(sR1)}, 0"); a(f"s_mov_b32 {S(sR2)}, 0")
    a(f"s_lshl_b32 {S(sT0)}, {S(sH)}, 21"); a(f"s_lshl_b32 {S(sT1)}, {S(sW)}, 10")
    a(f"s_add_u32 {S(sT0)}, {S(sT0)}, {S(sT1)}"); a(f"s_add_u32 {S(sKVM)}, {S(sT0)}, {WS_HD + R_M}")
    a(f"s_add_u32 {S(sT0)}, {S(sT0)}, {S(sT1)}"); a(f"s_add_u32 {S(sKV)}, {S(sT0)}, {WS_HD}")
    return t3


def chain_init_buffers(a, cfg, m0reg, sc):
    q = O(4)
    for i in range(4): a(f"v_mov_b32 {R(q+i)}, 0")
    a(f"s_lshl_b32 {S(sT2)}, {S(sW)}, 11"); a(f"s_add_u32 {S(sT2)}, {S(sT2)}, {S(sH1L)}")
    a(f"s_add_u32 {S(sT1)}, {S(sT2)}, {512*KB}")
    for so in (sT2, sT1):
        for t in range(2):
            a(f"buffer_store_dwordx4 {R(q,4)}, {R(vL16)}, {S(sWS,4)}, {S(so)} offen offset:{t*1024}{sc}")
    a(f"v_mov_b32 {R(q+4)}, -1")
    NR = 1 << cfg.get('lr', 0)
    for slot in (1, 2, 3):
        a(f"s_mov_b32 {S(sT0)}, {WS_MEMR + slot*8192*NR}")
        for r in range(NR): a(f"buffer_store_dword {R(q+4)}, {R(vMS)}, {S(sWS,4)}, {S(sT0)} offen offset:{r*1024}{sc}")
    a(f"s_waitcnt vmcnt({4+3*NR})")
    a(f"v_min_u32 {R(m0reg)}, 0xfffffffe, {R(m0reg)}")
    a(f"s_mov_b32 {S(sT0)}, {WS_MEMR}")
    for r in range(NR): a(f"buffer_store_dword {R(m0reg)}, {R(vMS)}, {S(sWS,4)}, {S(sT0)} offen offset:{r*1024}{sc}")


def chain_load_weights(a, cfg, hook=None):
    lane = O(0) + 6
    vA = [TQ, TQ + 1]; vO = [TQ + 2, TQ + 3]; vTR = [PQ, PQ + 1, PQ + 2, PQ + 3]; vTO = [KVQ, KVQ + 1, KVQ + 2, KVQ + 3]
    t0, t1, t2, t3 = O(5), O(5) + 1, O(5) + 2, O(5) + 3
    a(f"v_lshrrev_b32 {R(t0)}, 4, {R(lane)}")
    a(f"v_lshlrev_b32 {R(t1)}, 1, {R(t0)}")
    a(f"v_and_b32 {R(t2)}, 15, {R(lane)}")
    a(f"v_xor_b32 {R(t1)}, {R(t1)}, {R(t2)}")
    a(f"v_lshlrev_b32 {R(t1)}, 4, {R(t1)}")
    a(f"v_lshrrev_b32 {R(t2)}, 1, {R(t0)}")
    a(f"v_and_b32 {R(t3)}, 1, {R(t0)}")
    a(f"s_lshl_b32 {S(sT0)}, {S(sW)}, 17"); a(f"s_lshl_b32 {S(sT1)}, {S(sH)}, 8"); a(f"s_add_u32 {S(sT0)}, {S(sT0)}, {S(sT1)}")
    a(f"v_lshlrev_b32 {R(t0)}, 16, {R(t2)}"); a(f"v_lshl_add_u32 {R(t0)}, {R(t3)}, 13, {R(t0)}")
    a(f"v_add_u32 {R(t0)}, {S(sT0)}, {R(t0)}")
    a(f"v_add_u32 {R(vA[0])}, {R(t0)}, {R(t1)}"); a(f"v_xor_b32 {R(vA[1])}, 128, {R(vA[0])}")
    a(f"s_lshr_b32 {S(sT0)}, {S(sW)}, 1"); a(f"s_lshl_b32 {S(sT0)}, {S(sT0)}, 15")
    a(f"s_and_b32 {S(sT1)}, {S(sW)}, 1"); a(f"s_lshl_b32 {S(sT1)}, {S(sT1)}, 13"); a(f"s_add_u32 {S(sT0)}, {S(sT0)}, {S(sT1)}")
    a(f"s_lshl_b32 {S(sT1)}, {S(sH)}, 17"); a(f"s_add_u32 {S(sT0)}, {S(sT0)}, {S(sT1)}")
    a(f"v_lshlrev_b32 {R(t0)}, 14, {R(t2)}"); a(f"v_lshl_add_u32 {R(t0)}, {R(t3)}, 10, {R(t0)}")
    a(f"v_add_u32 {R(t0)}, {S(sT0)}, {R(t0)}")
    a(f"v_add_u32 {R(vO[0])}, {R(t0)}, {R(t1)}"); a(f"v_xor_b32 {R(vO[1])}, 128, {R(vO[0])}")
    a(f"v_lshrrev_b32 {R(t0)}, 4, {R(lane)}")
    a(f"v_bfe_u32 {R(t1)}, {R(lane)}, 2, 2")
    a(f"v_lshl_add_u32 {R(t2)}, {R(t0)}, 3, {R(t1)}"); a(f"v_lshlrev_b32 {R(t2)}, 8, {R(t2)}")
    a(f"v_and_b32 {R(t0)}, 1, {R(t0)}"); a(f"v_lshl_add_u32 {R(t0)}, {R(t0)}, 2, {R(t1)}")
    a(f"s_lshl_b32 {S(sT0)}, {S(sW)}, 1")
    a(f"v_xor_b32 {R(t0)}, {S(sT0)}, {R(t0)}")
    a(f"v_lshl_add_u32 {R(t2)}, {R(t0)}, 5, {R(t2)}")
    a(f"v_and_b32 {R(t1)}, 3, {R(lane)}"); a(f"v_lshl_add_u32 {R(t2)}, {R(t1)}, 3, {R(t2)}")
    a(f"v_add_u32 {R(vTR[0])}, {RING}, {R(t2)}"); a(f"v_xor_b32 {R(vTR[1])}, 32, {R(vTR[0])}")
    a(f"v_add_u32 {R(vTR[2])}, {3*16384}, {R(vTR[0])}"); a(f"v_add_u32 {R(vTR[3])}, {3*16384}, {R(vTR[1])}")
    a(f"v_bfe_u32 {R(t0)}, {R(lane)}, 4, 1")
    a(f"v_bfe_u32 {R(t1)}, {R(lane)}, 2, 1")
    a(f"v_lshl_add_u32 {R(t3)}, {R(t0)}, 1, {R(t1)}"); a(f"v_lshlrev_b32 {R(t3)}, 1, {R(t3)}")
    a(f"v_lshlrev_b32 {R(t2)}, 11, {R(t0)}"); a(f"v_lshl_add_u32 {R(t2)}, {R(t1)}, 9, {R(t2)}")
    a(f"v_lshrrev_b32 {R(t0)}, 5, {R(lane)}"); a(f"v_lshl_add_u32 {R(t2)}, {R(t0)}, 10, {R(t2)}")
    a(f"v_bfe_u32 {R(t0)}, {R(lane)}, 3, 1")
    a(f"v_add_u32 {R(t0)}, {S(sT0)}, {R(t0)}"); a(f"v_xor_b32 {R(t0)}, {R(t0)}, {R(t3)}")
    a(f"v_lshl_add_u32 {R(t2)}, {R(t0)}, 5, {R(t2)}")
    a(f"v_and_b32 {R(t1)}, 3, {R(lane)}"); a(f"v_lshl_add_u32 {R(t2)}, {R(t1)}, 3, {R(t2)}")
    a(f"v_add_u32 {R(vTO[0])}, {RING}, {R(t2)}"); a(f"v_xor_b32 {R(vTO[1])}, {32+256}, {R(vTO[0])}")
    a(f"v_add_u32 {R(vTO[2])}, {3*16384}, {R(vTO[0])}"); a(f"v_add_u32 {R(vTO[3])}, {3*16384}, {R(vTO[1])}")
    sAo = sStamp
    for t in range(4):
        a(f"s_add_u32 {S(sT0)}, {S(sH)}, {t}"); a(f"s_and_b32 {S(sT0)}, {S(sT0)}, 3"); a(f"s_lshl_b32 {S(sAo+t)}, {S(sT0)}, 8")
    sMb = sStamp + 4
    a(f"s_lshl_b32 {S(sMb)}, {S(sW)}, 12"); a(f"s_add_u32 {S(sMb)}, {S(sMb)}, {RING}")
    slabs = [(m, k) for m in cfg.get('word', 'kvq') for k in range(8)] + [('o', t, kc) for t in range(4) for kc in (0, 1)]
    srd = {'q': sA, 'k': sB, 'v': sC_, 'o': sD}

    def dma(n):
        sl = slabs[n]; slot = n % NSLOT
        for i in range(4):
            a(f"s_add_u32 m0, {S(sMb)}, {slot*16384 + i*1024}")
            if sl[0] == 'o':
                a(f"s_add_u32 {S(sT0)}, {S(sAo+sl[1])}, {sl[2]*65536 + (0, 4, 2, 6)[i]*1024}"); vo = vO[i >> 1]
            else:
                a(f"s_mov_b32 {S(sT0)}, {sl[1]*64*8192 + i*2*8192}"); vo = vA[i >> 1]
            a(f"buffer_load_dwordx4 {R(vo)}, {S(srd[sl[0]],4)}, {S(sT0)} offen{' nt' if cfg.get('ntc') else ''} lds")

    for n in range(NSLOT - 1): dma(n)
    done = a.newlabel('cw_done')
    labs = [a.newlabel(f'cw{w}') for w in range(4)]
    for w in range(1, 4):
        a(f"s_cmp_eq_u32 {S(sW)}, {w}"); a(f"s_cbranch_scc1 {labs[w]}")
    tmp = [O(4), O(5), O(6), O(0)]
    for w in range(4):
        a.label(labs[w])
        pend = []
        for n, sl in enumerate(slabs):
            ahead = min(len(slabs) - 1, n + NSLOT - 2) - n
            a(f"s_waitcnt vmcnt({4*ahead}) lgkmcnt(0)")
            a("s_barrier")
            if n + NSLOT - 1 < len(slabs): dma(n + NSLOT - 1)
            if hook: hook(n, w)
            for r, idx in pend:
                a(f"ds_write_b128 {R(vWL)}, {R(r,4)} offset:{idx*2048}")
                a(f"ds_write_b128 {R(vWL)}, {R(r+4,4)} offset:{idx*2048+1024}")
            pend = []
            slot = n % NSLOT
            for tp in (0, 1):
                if sl[0] == 'o': key = ('o', sl[1], 2 * sl[2] + tp)
                else: key = (sl[0], tp, sl[1] ^ (2 * w))
                if key in SIDX:
                    r = tmp[(2 * n + tp) % 4]; pend.append((r, SIDX[key]))
                else: r = REG[key]
                hi = 0 if slot < 3 else 2
                base = (slot if slot < 3 else slot - 3) * 16384
                for j in (0, 2, 4, 6):
                    if sl[0] == 'o':
                        a(f"ds_read_b64_tr_b16 {R(r+j,2)}, {R(vTO[hi + ((j>>1)&1)])} offset:{base + (32*tp + 16*(j>>2))*256}")
                    else:
                        a(f"ds_read_b64_tr_b16 {R(r+j,2)}, {R(vTR[hi + tp])} offset:{base + (32*(j>>2) + 4*((j>>1)&1))*256}")
        a("s_waitcnt lgkmcnt(0)")
        for r, idx in pend:
            a(f"ds_write_b128 {R(vWL)}, {R(r,4)} offset:{idx*2048}")
            a(f"ds_write_b128 {R(vWL)}, {R(r+4,4)} offset:{idx*2048+1024}")
        if w < 3: a(f"s_branch {done}")
    a.label(done)
    a("s_barrier")
    kv_dma(a, 'v', '')
    a(f"v_add_u32 {R(vT)}, 65536, {R(vWL)}")
    for i, r in enumerate(TREG):
        a(f"ds_write_b128 {R(vT)}, {R(r,4)} offset:{i*2048}")
        a(f"ds_write_b128 {R(vT)}, {R(r+4,4)} offset:{i*2048+1024}")
    a("s_waitcnt lgkmcnt(0)")


def kv_dma(a, which, sc):
    if which == 'k':
        a(f"s_mov_b32 m0, {S(sM0K)}"); so = S(sKV)
    else:
        a(f"s_mov_b32 m0, {S(sM0V)}"); a(f"s_add_u32 {S(sT0)}, {S(sKV)}, 8192"); so = S(sT0)
    a(f"buffer_load_dwordx4 {R(vL16)}, {S(sWS,4)}, {so} offen sc1 lds")
    a(f"buffer_load_dwordx4 {R(vL16)}, {S(sWS,4)}, {so} offen offset:1024 sc1 lds")


def chain_loop(a, cfg, sc, exit_label):
    diag = cfg.get('diag')
    sp = cfg.get('sp', ['m', 'q', 'k', 'sm', 'rs', 'wo', 'st', 'e', 'pub'])
    def stamp(name):
        if diag and name in sp: a(f"s_memtime {S(sStamp + 2*sp.index(name), 2)}")
    ds = Cnt(a, 'lgkmcnt', 15)
    def SM(acc, A, blk, mod=''): a(f"v_smfmac_f32_16x16x64_bf16 {R(acc,4)}, {R(A,4)}, {R(blk,8)}, {R(vIDX)}{mod}")
    def QKV(m, t, c): SM(ACC[m] + 4 * t, MCH(c), REG[(m, t, c)])
    def DM(d, A, B, c=None): a(f"v_mfma_f32_16x16x32_bf16 {R(d,4)}, {R(A,4)}, {R(B,4)}, {R(d,4) if c is None else c}")
    def rd128(dst, ad, off, tag): a(f"ds_read_b128 {R(dst,4)}, {R(ad)} offset:{off}"); ds.issue(tag)
    def stream(i):
        rd128(SREG[i], vWL, i * 2048, f'S{i}'); rd128(SREG[i] + 4, vWL, i * 2048 + 1024, f'S{i}')
    def z2(r): a(f"v_mov_b64 {R(r,2)}, 0")
    def zero(r, n):
        for i in range(0, n, 2): z2(r + i)
    def add(d, x, y): a(f"v_add_f32 {R(d)}, {R(x)}, {R(y)}")
    def mul(d, x, y): a(f"v_mul_f32 {R(d)}, {R(x)}, {R(y)}")
    def cvt(d, x, y): a(f"v_cvt_pk_bf16_f32 {R(d)}, {R(x)}, {R(y)}")
    def wr32(src, off, tag): a(f"ds_write_b32 {R(vQW)}, {R(src)} offset:{off}"); ds.issue(tag)
    def nops(n):
        for i in range(n): a("s_nop 3")
    def dmai(so, off):
        if not cfg.get('x_nodma'): a(f"buffer_load_dwordx4 {R(vL16)}, {S(sWS,4)}, {so} offen offset:{off} sc1 lds")
    L_top = a.newlabel('c_top'); L_p2 = a.newlabel('c_p2'); L_go2 = a.newlabel('c_go2'); L_r2 = a.newlabel('c_r2')
    L_dump = a.newlabel('c_dump'); L_oth = a.newlabel('c_oth'); L_last = a.newlabel('c_last'); L_join = a.newlabel('c_join')
    dma_on = not cfg.get('nodma')
    NR = 1 << cfg.get('lr', 0); SL = 8192 * NR
    dp = cfg.get('dp', 2)

    def h2load():
        a(f"buffer_load_dwordx4 {R(MCH(0),4)}, {R(vL16)}, {S(sWS,4)}, {S(sMemRd)} offen sc1")
        a(f"buffer_load_dwordx4 {R(MCH(1),4)}, {R(vL16)}, {S(sWS,4)}, {S(sMemRd2)} offen sc1")
    D2 = cfg.get('d2', 3)
    NM = cfg.get('nm', 0)
    def mload():
        a(f"s_mov_b64 exec, {S(sMu,2)}"); h2load(); a("s_mov_b64 exec, -1")
    if NM: D2 = 1 + NM
    def ring_regs():
        a(f"s_add_u32 {S(sKV)}, {S(sKV)}, {REC}")
        a(f"s_add_u32 {S(sT0)}, {S(sSlot)}, {SL}"); a(f"s_and_b32 {S(sT0)}, {S(sT0)}, {4*SL-1:#x}"); a(f"s_add_u32 {S(sMemWr)}, {S(sT0)}, {WS_MEMR}")
        a(f"s_add_u32 {S(sT2)}, {S(sSlot)}, {3*SL}"); a(f"s_and_b32 {S(sT2)}, {S(sT2)}, {4*SL-1:#x}"); a(f"s_add_u32 {S(sMemRst)}, {S(sT2)}, {WS_MEMR}")
        a(f"s_mov_b32 {S(sSlot)}, {S(sT0)}")
    def regs_a():
        for t in range(4): a(f"s_xor_b32 {S(sH1S+t)}, {S(sH1S+t)}, {512*KB}")
        a(f"s_add_u32 {S(sKV)}, {S(sKV)}, {REC}")
        a(f"s_add_u32 {S(sT2)}, {S(sSlot)}, {3*SL}"); a(f"s_and_b32 {S(sT2)}, {S(sT2)}, {4*SL-1:#x}"); a(f"s_add_u32 {S(sMemRst)}, {S(sT2)}, {WS_MEMR}")
        a(f"s_add_u32 {S(sT0)}, {S(sSlot)}, {SL}"); a(f"s_and_b32 {S(sSlot)}, {S(sT0)}, {4*SL-1:#x}")
        a(f"s_and_b32 {S(sThr)}, {S(sStep)}, 1"); a(f"s_add_u32 {S(sStep)}, {S(sStep)}, 1")
    def regs_b():
        a(f"s_xor_b32 {S(sH1L)}, {S(sH1L)}, {512*KB}"); a(f"s_xor_b32 {S(sTag)}, {S(sTag)}, {S(sThr)}")
        a(f"s_add_u32 {S(sMemWr)}, {S(sSlot)}, {WS_MEMR}")
    def step_regs():
        regs_a(); regs_b()
    def kvq_fix():
        for i in range(4): a(f"v_min_u32 {R(KVQ+i)}, 0xfffffffe, {R(KVQ+i)}")
    def xors():
        a(f"v_xor_b32 {R(TQ+1)}, 2048, {R(vOWN)}"); a(f"v_xor_b32 {R(TQ+2)}, 4096, {R(vOWN)}"); a(f"v_xor_b32 {R(TQ+3)}, 6144, {R(vOWN)}")

    a(f"s_mov_b64 {S(sE,2)}, {S(sWS,2)}")
    a(f"s_mov_b32 {S(sStep)}, 0"); a(f"s_mov_b32 {S(sSlot)}, 0"); a(f"s_mov_b32 {S(sTag)}, 1")
    a(f"s_add_u32 {S(sMemRd)}, {S(sRdo)}, {WS_MEMR}"); a(f"s_add_u32 {S(sMemRd2)}, {S(sMemRd)}, {1024*NR}")
    a(f"s_cmp_eq_u32 {S(sW)}, 1"); a(f"s_cselect_b32 {S(sTch)}, {S(sF1)}, {WS_FLAG + F_SYNC}")
    a(f"s_lshl_b32 {S(sT0)}, {S(sH)}, 2"); a(f"s_add_u32 {S(sTinc)}, {S(sT0)}, {WS_FLAG + F_SYNC}")
    zero(O(4), 24); xors(); ring_regs()
    a(f"s_mov_b32 {S(sKVMn)}, {S(sKVM)}"); a(f"s_add_u32 {S(sKVM)}, {S(sKVM)}, 4096")
    a(f"s_mov_b64 {S(sMu,2)}, 1")
    for k in range(D2): h2load()
    if cfg.get('al') is not None:
        a('.p2align 6')
        for q in range(cfg['al']): a('s_nop 0')
    a.label(L_top)
    m = MCH(0)
    a(f"s_waitcnt vmcnt({2*(D2-1-cfg.get('k0', 0))}) lgkmcnt(0)")
    if diag and 'pjb' in sp: a(f"s_mov_b32 {S(sStamp + 2*sp.index('pjb'))}, {S(sStamp + 2*sp.index('jb'))}")
    stamp('arr')
    def h2chk():
        a(f"v_max3_u32 {R(TQ)}, {R(m)}, {R(m+1)}, {R(m+2)}")
        a(f"v_max3_u32 {R(vT)}, {R(m+3)}, {R(m+4)}, {R(m+5)}")
        a(f"v_max3_u32 {R(TQ)}, {R(TQ)}, {R(m+6)}, {R(m+7)}")
        a(f"v_max_u32 {R(TQ)}, {R(TQ)}, {R(vT)}")
        a(f"v_cmp_eq_u32 vcc, -1, {R(TQ)}")
    h2chk()
    a.label(L_p2)
    QKV(*OWN[0]); stamp('m')
    a(f"ds_write_b128 {R(vOWN)}, {R(MCH(0),4)}")
    QKV(*OWN[1])
    a(f"ds_write_b128 {R(vOWN)}, {R(MCH(1),4)} offset:1024")
    a("s_cmp_lg_u64 vcc, 0" if not cfg.get('x_solo') else "s_cmp_lg_u32 0, 0")
    QKV(*OWN[2])
    a(f"s_cbranch_scc1 {L_r2}")
    a.label(L_go2)
    a(f"v_mov_b32 {R(TQ)}, -1")
    QKV(*OWN[3])
    a(f"v_mov_b32 {R(PQ+2)}, 0")
    QKV(*OWN[4])
    nb1 = cfg.get('nb1', 6)
    for b in OWN[5:nb1]: QKV(*b)
    a("s_waitcnt lgkmcnt(0)"); a("s_barrier")
    stamp('b1')
    order = [(tau, kap) for kap in range(4) for tau in (0, 1)]
    kxreg = {tk: O(7) + 4 * i for i, tk in enumerate(order)}
    rds = [lambda c=c: rd128(MCH(c), TQ + (c >> 1), (c & 1) * 1024, f'M{c}') for c in range(2, 8)]
    rds += [lambda tk=tk: rd128(kxreg[tk], vL16, KXB + (tk[0] * 4 + tk[1]) * 1024, 'KX') for tk in order]
    rds.pop(0)()
    for i, b in enumerate(OWN[nb1:12]):
        QKV(*b)
        if len(rds) > 8: rds.pop(0)()
        elif i == 5: a(f"buffer_load_dword {R(vFLAG)}, {R(vTCH)}, {S(sWS,4)}, {S(sTch)} offen sc1")
    seq = [(t, c) for c in range(2, 6) for t in (0, 1)] + [(0, 6), (0, 7), (1, 6), (1, 7)]
    qa = ACC['q']; ka = ACC['k']; va = ACC['v']
    sal = {2: f"buffer_store_dwordx4 {R(KVQ,4)}, {R(vL16)}, {S(sWS,4)}, {S(sKVM)} offen sc1",
           8: "\n".join(f"buffer_store_dword {R(TQ)}, {R(vMS)}, {S(sWS,4)}, {S(sMemRst)} offen offset:{r*1024}{sc}" for r in range(NR)),
           5: f"s_mov_b32 {S(sKVM)}, {S(sKVMn)}\ns_add_u32 {S(sKVMn)}, {S(sKVMn)}, {REC}",
           11: f"s_add_u32 {S(sMemRd)}, {S(sRdo)}, {S(sMemWr)}\ns_add_u32 {S(sMemRd2)}, {S(sMemRd)}, {1024*NR}"}
    for i, (t, c) in enumerate(seq):
        if i == 0: ds.wait('M3')
        if i == 4: ds.wait('M7')
        QKV('q', t, c)
        if i in sal: a(sal[i])
        else: rds.pop(0)()
    assert not rds
    stamp('q')
    add(qa, qa, qa + 2)
    qf = [O(11), O(11) + 4, O(0), O(0) + 4]
    def bq():
        a(f"s_waitcnt vmcnt({2+NR}) lgkmcnt(0)"); ds.reset(); a("s_barrier")
    side = [lambda: add(qa + 1, qa + 1, qa + 3), lambda: add(qa + 4, qa + 4, qa + 6), lambda: cvt(qa + 2, qa, qa + 4),
            lambda: (wr32(qa + 2, 0, 'QW'), add(qa + 5, qa + 5, qa + 7)), lambda: cvt(qa + 3, qa + 1, qa + 5),
            lambda: wr32(qa + 3, RS, 'QW'), lambda: a(f"s_add_u32 {S(sT1)}, {S(sH1L)}, 4096\ns_add_u32 {S(sT3)}, {S(sKV)}, 8192"),
            lambda: a(f"s_mov_b32 m0, {S(sM0K)}"), None]
    qr = [lambda k=k: rd128(qf[k], vQR, 64 * k, 'QF') for k in range(4)]
    if cfg.get('bqa', 10) == 9: side += [bq, qr.pop(0), lambda f=qr.pop(0): (f(), add(ka, ka, ka + 2))]
    else: side += [None, bq, lambda f=qr.pop(0), g=qr.pop(0): (f(), g(), add(ka, ka, ka + 2))]
    for i, (t, c) in enumerate(seq):
        QKV('k', t, c)
        if side[i]: side[i]()
    stamp('k')
    vl = [('v', t, c) for t, c in seq]
    sx = O(4); X = O(5) + 4; sm = O(5); mx, tt, mc, mc1 = TQ, TQ + 1, TQ + 2, TQ + 3
    oa = O(1); lacc = O(4)
    kf = [O(7), O(7) + 4, O(8), O(8) + 4]
    pvb = [O(9), O(10)]
    QKV(*vl[0]); rd128(qf[2], vQR, 128, 'QF'); dmai(S(sKV), 0); add(ka + 1, ka + 1, ka + 3)
    QKV(*vl[1]); rd128(qf[3], vQR, 192, 'QF')
    add(ka + 4, ka + 4, ka + 6); add(ka + 5, ka + 5, ka + 7)
    cvt(KVQ, ka, ka + 4); cvt(KVQ + 1, ka + 1, ka + 5)
    QKV(*vl[2]); wr32(KVQ, KBUF - QB, 'KW'); wr32(KVQ + 1, KBUF - QB + RS, 'KW')
    stamp('kw')
    QKV(*vl[3]); ds.wait('QF')
    def SX(i):
        tau, kap = order[i]
        DM(sx + 4 * tau, kxreg[(tau, kap)], qf[kap], '0' if kap == 0 else None)
    SX(0); z2(oa); z2(oa + 2)
    SX(1); dmai(S(sKV), 1024); z2(oa + 4)
    SX(2); a(f"s_mov_b32 m0, {S(sM0V)}"); z2(oa + 6)
    nsx = cfg.get('nsx', 3)
    for q in range(3, nsx): SX(q)
    ds.drain(); a("s_barrier")
    stamp('b3')
    def vx(t, hh): a(f"ds_read_b64 {R(pvb[t]+2+4*hh,2)}, {R(vOWN)} offset:{8192 + t*1024 + hh*8}"); ds.issue('VX')
    rd128(kf[0], vKR, 0, 'KF0')
    lds = [lambda: rd128(kf[1], vKR, 64, 'KF1'), lambda: rd128(kf[2], vKR, 128, 'KF2'), lambda: rd128(kf[3], vKR, 192, 'KF3')]
    for q in range(nsx, 8):
        SX(q)
        if lds: lds.pop(0)()
        elif q == 6: vx(0, 0); vx(0, 1)
    if nsx > 3: vx(0, 0); vx(0, 1)
    nv = cfg.get('nv', 6)
    sel = [f"v_cndmask_b32 {R(X+i)}, {R(sx+i)}, {R(sx+4+i)}, {S(sPm,2)}" for i in range(4)]
    pre = [f"v_max3_f32 {R(mx)}, {R(sx)}, {R(sx+1)}, {R(sx+2)}", f"v_max3_f32 {R(tt)}, {R(sx+4)}, {R(sx+5)}, {R(sx+6)}",
           f"v_max3_f32 {R(mx)}, {R(mx)}, {R(sx+3)}, {R(sx+7)}", f"v_max_f32 {R(mx)}, {R(mx)}, {R(tt)}",
           f"v_mov_b32 {R(tt)}, {R(mx)}", sel[0], sel[1], f"v_permlane32_swap_b32 {R(mx)}, {R(tt)}", sel[2], sel[3]]
    for i in range(4, nv):
        QKV(*vl[i])
        if i == 4: vx(1, 0); vx(1, 1)
        if i == nv - 1: ds.wait('KF3')
        a(pre.pop(0))
    stamp('sm')
    for kap in range(4):
        DM(sm, kf[kap], qf[kap], '0' if kap == 0 else None)
        for k in range(2):
            if pre: a(pre.pop(0))
    assert not pre
    rest = vl[nv:]
    def sh(i): rd128(SREG[i >> 1] + 4 * (i & 1), vWL, i * 1024, f'S{i>>1}')
    nonv = [lambda: (ds.wait('VX'), dmai(S(sT3), 0)), lambda: sh(0), lambda: sh(1), lambda: sh(2), lambda: (sh(3), dmai(S(sT3), 1024)), lambda: sh(4)]
    def V():
        if rest: QKV(*rest.pop(0))
        if nonv: nonv.pop(0)()
    V(); z2(lacc)
    V(); z2(lacc + 2)
    stamp('s0')
    a(f"v_max3_f32 {R(mx)}, {R(mx)}, {R(tt)}, {R(sm+3)}")
    a(f"v_max3_f32 {R(tt)}, {R(sm)}, {R(sm+1)}, {R(sm+2)}")
    a(f"v_max_f32 {R(mx)}, {R(mx)}, {R(tt)}")
    a(f"v_mov_b32 {R(tt)}, {R(mx)}")
    V()
    a(f"v_permlane16_swap_b32 {R(mx)}, {R(tt)}")
    V()
    a(f"v_max_f32 {R(mx)}, {R(mx)}, {R(tt)}")
    V()
    a(f"v_mul_f32 {R(mc)}, {S(sCc)}, {R(mx)}")
    V()
    assert not rest and not nonv
    stamp('s1')
    a(f"v_fma_f32 {R(mc1)}, {R(mx)}, {S(sCc)}, 1.0")
    for r in (X, X + 1, X + 2, X + 3): a(f"v_fma_f32 {R(r)}, {R(r)}, {S(sCc)}, -{R(mc)}")
    for r in (sm, sm + 1): a(f"v_fma_f32 {R(r)}, {R(r)}, {S(sCc)}, -{R(mc1)}")
    add(va, va, va + 2); add(va + 1, va + 1, va + 3); add(va + 4, va + 4, va + 6); add(va + 5, va + 5, va + 7)
    cvt(pvb[0], va, va + 1); cvt(pvb[1], va + 4, va + 5)
    for r in (X, X + 1, X + 2, X + 3, sm, sm + 1): a(f"v_exp_f32 {R(r)}, {R(r)}")
    cvt(PQ + 1, X, X + 1); cvt(PQ + 3, X + 2, X + 3); cvt(PQ, sm, sm + 1)
    a(f"v_permlane16_swap_b32 {R(pvb[0])}, {R(pvb[0]+4)}")
    a(f"v_permlane16_swap_b32 {R(pvb[1])}, {R(pvb[1]+4)}")
    SM(lacc, PQ, ONES, ' abid:1'); sh(5)
    stamp('rs')
    SM(oa, PQ, pvb[0], ' abid:1'); sh(6)
    SM(oa + 4, PQ, pvb[1], ' abid:1'); sh(7)
    stamp('pv')
    add(lacc, lacc, lacc + 2); add(lacc + 1, lacc + 1, lacc + 3)
    a(f"v_rcp_f32 {R(lacc)}, {R(lacc)}"); a(f"v_rcp_f32 {R(lacc+1)}, {R(lacc+1)}")
    add(oa, oa, oa + 2); add(oa + 4, oa + 4, oa + 6)
    mul(oa, oa, lacc); mul(oa + 4, oa + 4, lacc)
    cvt(oa + 2, oa, oa + 4); wr32(oa + 2, OB - QB, 'OW')
    add(oa + 1, oa + 1, oa + 3); add(oa + 5, oa + 5, oa + 7)
    mul(oa + 1, oa + 1, lacc + 1); mul(oa + 5, oa + 5, lacc + 1)
    cvt(oa + 3, oa + 1, oa + 5); wr32(oa + 3, OB - QB + RS, 'OW')
    stamp('ow')
    cvt(KVQ + 2, va, va + 1); cvt(KVQ + 3, va + 4, va + 5)
    oacc = [O(5), O(5) + 4, O(4), O(4) + 4]
    zero(O(5), 8); zero(O(4), 8)
    a(f"s_cmp_eq_u32 {S(sStep)}, {cfg.get('nsteps', 64) - 1}"); a(f"s_cbranch_scc1 {L_last}")
    of = [PQ, TQ, O(6), O(6) + 4]
    tre = []
    for i, r in enumerate(TREG):
        tre += [f"ds_read_b128 {R(r,4)}, {R(vT)} offset:{i*2048}", f"ds_read_b128 {R(r+4,4)}, {R(vT)} offset:{i*2048+1024}"]
    ds.drain(); a("s_barrier")
    stamp('b4')
    for kap in range(4):
        rd128(of[kap], vQR, OB - QB + 64 * kap, f'OF{kap}')
        a(f"v_min_u32 {R(KVQ+kap)}, 0xfffffffe, {R(KVQ+kap)}")
        if kap == 0: a(f"v_add_u32 {R(vT)}, 65536, {R(vWL)}")
        if kap == 1: a(f"s_cmp_lg_u32 {S(sW)}, 0")
        if cfg.get('ofg', 1) and kap < 3: a(f"s_nop {cfg.get('ofg', 1) - 1}")
    def outpost(t):
        d = oacc[t]
        return [f"v_cvt_pk_bf16_f32 {R(d)}, {R(d)}, {R(d+1)}", f"v_cvt_pk_bf16_f32 {R(d+1)}, {R(d+2)}, {R(d+3)}",
                f"v_and_or_b32 {R(d)}, {R(d)}, -2, {S(sTag)}",
                f"buffer_store_dwordx2 {R(d,2)}, {R(vH1S)}, {S(sWS,4)}, {S(sH1S+t)} offen{sc}"]
    pend = []; st = None
    for i, (t, kap) in enumerate(WOORD):
        key = ('o', t, kap)
        if t == 0: ds.wait(f'OF{kap}')
        if i == 12: ds.drain()
        SM(oacc[t], of[kap], REG[key])
        if i == 0: stamp('wo')
        if st: a(st); st = None
        elif 1 <= i <= 9 and not cfg.get('x_nosh'): sh(7 + i - (i > 8))
        if i in (3, 7, 11, 15): stamp(f'w{i}')
        if pend and kap: a(pend[kap - 1])
        if kap == 3:
            if pend: st = pend[3]
            pend = outpost(t)
    a(st)
    for x in (pend[0], pend[2], pend[1], pend[3]): a(x)
    stamp('st')
    a(f"s_cbranch_scc1 {L_oth}")
    if cfg.get('x_solo'): a(f"s_branch {L_oth}")
    SEL = PQ; y = TQ; ck = vFLAG
    RA = [O(5), O(6), O(0), O(4)]; RB = [O(8), O(9), O(10), O(11)]
    def h1load(t, r):
        so = S(sH1L) if t < 2 else S(sT1)
        for u in range(2):
            a(f"buffer_load_dwordx4 {R(r+4*u,4)}, {R(vL16)}, {S(sWS,4)}, {so} offen offset:{(t&1)*2048 + u*1024} sc1")
    def h1round(rr):
        for t in range(4): h1load(t, rr[t])
    g = cfg.get('h1', [5, 2, 3])
    for x in tre[:8]: a(x)
    a(f"v_cndmask_b32 {R(SEL)}, {R(vSELV)}, 0, {S(sSel,2)}"); a(f"v_cndmask_b32 {R(SEL+1)}, 0, {R(vSELV)}, {S(sSel,2)}")
    a(f"v_mov_b64 {R(SEL+2,2)}, {R(SEL,2)}")
    z2(y)
    regs_a()
    nops(g[0])
    stamp('l0')
    for t in range(3): h1load(t, RA[t])
    nops(g[1]); h1load(3, RA[3])
    NB = 8 if cfg.get('rb', 1) else 0
    if NB: nops(g[2]); h1round(RB)
    stamp('lb')
    def publish(srd=sWS):
        cvt(y + 2, y, y + 1)
        a(f"v_min_u32 {R(y+2)}, 0xfffffffe, {R(y+2)}")
        for r in range(NR): a(f"buffer_store_dword {R(y+2)}, {R(vMS)}, {S(srd,4)}, {S(sMemWr)} offen offset:{r*1024}{sc}")
    def tg(r, first=False):
        if first: a(f"v_bitop3_b32 {R(ck)}, {R(r)}, {R(r+2)}, {S(sTag)} bitop3:0x7e")
        else:
            for x in (r, r + 2): a(f"v_bitop3_b32 {R(ck)}, {R(ck)}, {R(x)}, {S(sTag)} bitop3:0xf6")
    def attempt(rr, n, fail):
        for t in range(4):
            r = rr[t]
            a(f"s_waitcnt vmcnt({n + 7 - 2*t})")
            tg(r, t == 0)
            a(f"s_waitcnt vmcnt({n + 6 - 2*t})")
            a(f"v_smfmac_f32_16x16x64_bf16 {R(y,4)}, {R(SEL,4)}, {R(r,8)}, {R(vIDX3)}")
            tg(r + 4)
            if t == 2: stamp('e')
        a(f"v_and_b32 {R(ck)}, 1, {R(ck)}")
        a(f"v_cmp_ne_u32 vcc, 0, {R(ck)}")
        a("s_cmp_eq_u64 vcc, 0"); a(f"s_cselect_b32 {S(sE+2)}, {WS_SIZE:#x}, 0")
        publish(sE)
        a(f"s_cbranch_scc0 {fail}")
    L_f0 = a.newlabel('c_f0'); L_fa = a.newlabel('c_fa'); L_fb = a.newlabel('c_fb'); L_late = a.newlabel('c_late'); L_pub = a.newlabel('c_pub')
    attempt(RA, NB, L_fa if NB else L_f0)
    stamp('pub')
    zero(O(4), 24)
    nops(cfg.get('h2a', 1))
    a("s_barrier")
    h2load(); stamp('jb')
    a.label(L_pub)
    xors(); regs_b()
    a(f"s_waitcnt vmcnt({2+NR})")
    for x in tre[8:]: a(x)
    nops(cfg.get('h2c', 2))
    h2load()
    nops(cfg.get('h2p', 6))
    h2load()
    if diag:
        a(f"s_cmp_eq_u32 {S(sStep)}, {diag+1}"); a(f"s_cbranch_scc1 {L_dump}")
    a(f"s_branch {L_top}")
    a.label(L_last)
    kvq_fix()
    a(f"buffer_store_dwordx4 {R(KVQ,4)}, {R(vL16)}, {S(sWS,4)}, {S(sKVM)} offen sc1")
    a(f"s_branch {exit_label}")
    a.label(L_f0)
    h1round(RB); nops(6)
    a.label(L_fa)
    if diag: a(f"s_add_u32 {S(sR1)}, {S(sR1)}, 65536")
    z2(y); h1round(RA)
    attempt(RB, 8, L_fb)
    a(f"s_branch {L_late}")
    a.label(L_fb)
    z2(y); h1round(RB)
    if diag: a(f"s_add_u32 {S(sR1)}, {S(sR1)}, 65536")
    L_chk = a.newlabel('c_chk')
    attempt(RA, 8, L_chk)
    a(f"s_branch {L_late}")
    a.label(L_chk)
    a(f"s_add_u32 {S(sCnt)}, {S(sCnt)}, 1"); a(f"s_cmp_lt_u32 {S(sCnt)}, {LIM}")
    a(f"s_cbranch_scc1 {L_fa}")
    publish()
    a.label(L_late)
    stamp('pub')
    nops(cfg.get('h2l', 2))
    a("s_barrier")
    h2load()
    a(f"s_waitcnt vmcnt({2+NR})")
    zero(O(4), 24)
    a(f"s_branch {L_pub}")
    a.label(L_oth)
    if cfg.get('trace'):
        if cfg.get('trt'):
            Lr = a.newlabel('trt'); a(f"s_cmp_lg_u32 {S(sW)}, 3"); a(f"s_cbranch_scc1 {Lr}")
            a("s_waitcnt lgkmcnt(0)"); a(f"s_memrealtime {S(sStamp + 2*sp.index('st'), 2)}"); a.label(Lr)
        a("s_waitcnt lgkmcnt(0)")
        a(f"v_writelane_b32 {R(vMS)}, {S(sStamp + 2*sp.index('st'))}, 0") if False else None
        a(f"s_lshl_b32 {S(sT0)}, {S(sH)}, 2"); a(f"s_add_u32 {S(sT0)}, {S(sT0)}, {S(sW)}"); a(f"s_lshl_b32 {S(sT0)}, {S(sT0)}, 6")
        a(f"s_add_u32 {S(sT0)}, {S(sT0)}, {S(sStep)}"); a(f"s_lshl_b32 {S(sT0)}, {S(sT0)}, 2"); a(f"s_add_u32 {S(sT0)}, {S(sT0)}, {WS_DBG + 262144}")
        if cfg.get('x_solo'): a(f"s_sub_u32 {S(sStamp + 2*sp.index('st'))}, {S(sStamp + 2*sp.index('st'))}, {S(sStamp)}")
        a(f"v_mov_b32 {R(PQ)}, {S(sStamp + 2*sp.index('st'))}"); a(f"v_mov_b32 {R(PQ+1)}, 0")
        a("s_mov_b64 exec, 1")
        a(f"buffer_store_dword {R(PQ)}, {R(PQ+1)}, {S(sWS,4)}, {S(sT0)} offen")
        a("s_mov_b64 exec, -1")
    if cfg.get('sync', 1) and not sc:
        Ln = a.newlabel('c_ns'); Lp = a.newlabel('c_sp'); Ld = a.newlabel('c_sd')
        a(f"s_cmp_lg_u32 {S(sW)}, 2"); a(f"s_cbranch_scc1 {Ln}")
        a(f"s_add_u32 {S(sT0)}, {S(sStep)}, 1"); a(f"v_mov_b32 {R(PQ)}, {S(sT0)}")
        a("s_mov_b64 exec, 1")
        a(f"buffer_store_dword {R(PQ)}, {R(vTCH)}, {S(sWS,4)}, {S(sTinc)} offen")
        a("s_mov_b64 exec, -1")
        pl = f"buffer_load_dword {R(vFLAG)}, {R(vTCH)}, {S(sWS,4)}, {S(sTch)} offen sc1"
        step_regs(); a(pl)
        zero(O(4), 24); xors(); a(pl)
        for x in tre[:8]: a(x)
        a(pl)
        for x in tre[8:]: a(x)
        a(f"s_mov_b32 {S(sT0)}, 0")
        a.label(Lp)
        a(pl)
        a(f"s_add_u32 {S(sT0)}, {S(sT0)}, 1"); a(f"s_cmp_ge_u32 {S(sT0)}, 64"); a(f"s_cbranch_scc1 {Ld}")
        a("s_waitcnt vmcnt(3)")
        a(f"v_cmp_gt_u32 vcc, {S(sStep)}, {R(vFLAG)}")
        a(f"s_cbranch_vccnz {Lp}")
        a.label(Ld)
        nops(cfg.get('sc', 12))
        a(f"s_branch {L_join}")
        a.label(Ln)
    for x in tre: a(x)
    zero(O(4), 24); xors(); step_regs()
    if dma_on and not cfg.get('noflag'):
        Lc = a.newlabel('c_fc'); Lo = a.newlabel('c_fo')
        a(f"s_cmp_lg_u32 {S(sW)}, 1"); a(f"s_cbranch_scc1 {Lo}")
        a(f"s_add_u32 {S(sT0)}, {S(sStep)}, {cfg.get('tdist', 1)}")
        a(f"s_lshr_b32 {S(sThr)}, {S(sT0)}, 1"); a(f"s_add_u32 {S(sThr)}, {S(sThr)}, 1"); a(f"s_min_u32 {S(sThr)}, {S(sThr)}, 32")
        a(f"s_bitcmp1_b32 {S(sT0)}, 0"); a(f"s_cselect_b32 {S(sT2)}, 0xf00, 0xf"); a(f"s_mov_b32 {S(sT3)}, 0")
        a("s_waitcnt vmcnt(9)")
        a.label(Lc)
        a(f"v_cmp_gt_u32 vcc, {S(sThr)}, {R(vFLAG)}"); a(f"s_and_b64 vcc, vcc, {S(sT2,2)}")
        a(f"s_cbranch_scc0 {Lo}")
        a(f"buffer_load_dword {R(vFLAG)}, {R(vL16)}, {S(sWS,4)}, {S(sTch)} offen sc1")
        a(f"s_add_u32 {S(sCnt)}, {S(sCnt)}, 1"); a(f"s_cmp_lt_u32 {S(sCnt)}, {LIM}")
        a("s_waitcnt vmcnt(0)")
        a(f"s_cbranch_scc1 {Lc}")
        a.label(Lo)
    a.label(L_join)
    stamp('pub')
    a("s_barrier")
    stamp('jb')
    for k in range(D2 if not cfg.get('x_solo') else 0):
        if NM and k: mload()
        else: h2load()
        if k < D2 - 1: nops(cfg.get('hm', 2) if NM else cfg.get('h2p', 6))
    if diag:
        a(f"s_cmp_eq_u32 {S(sStep)}, {diag+1}"); a(f"s_cbranch_scc1 {L_dump}")
    a(f"s_branch {L_top}")
    a.label(L_r2)
    L_r2b = a.newlabel('c_r2b')
    if NM: a(f"s_or_b64 {S(sMu,2)}, {S(sMu,2)}, vcc")
    a("s_nop 4"); zero(O(4), 12)
    if diag: a(f"s_add_u32 {S(sR2)}, {S(sR2)}, 65536")
    a.label(L_r2b)
    h2chk()
    a(f"s_cbranch_vccz {L_p2}")
    a("s_mov_b64 exec, vcc")
    h2load()
    a("s_mov_b64 exec, -1")
    if diag: a(f"s_add_u32 {S(sR2)}, {S(sR2)}, 1")
    a(f"s_add_u32 {S(sCnt)}, {S(sCnt)}, 1"); a(f"s_cmp_lt_u32 {S(sCnt)}, {LIM}")
    a(f"s_waitcnt vmcnt({cfg.get('d2r', 6)})")
    a(f"s_cbranch_scc1 {L_r2b}")
    a(f"s_branch {L_go2}")
    if diag:
        a.label(L_dump)
        a("s_waitcnt lgkmcnt(0)")
        a(f"s_lshl_b32 {S(sT0)}, {S(sH)}, 2"); a(f"s_add_u32 {S(sT0)}, {S(sT0)}, {S(sW)}"); a(f"s_lshl_b32 {S(sT0)}, {S(sT0)}, 8")
        a(f"s_add_u32 {S(sT0)}, {S(sT0)}, {WS_DBG}")
        a(f"v_mov_b32 {R(PQ+1)}, 0")
        for k in range(9):
            a(f"v_mov_b32 {R(PQ)}, {S(sStamp+2*k)}")
            a(f"buffer_store_dword {R(PQ)}, {R(PQ+1)}, {S(sWS,4)}, {S(sT0)} offen offset:{4*k}")
        a("s_waitcnt vmcnt(0)")
        a(f"s_branch {L_top}")
```

```python
from asmlib import *
import math, struct

MB = 1 << 20
KB = 1 << 10
WS_XN = 0
WS_GATE = 2 * MB
WS_H = 4 * MB
HBLK = 86 * 1024
WS_PART = 10 * MB
WS_MEMR = 11 * MB
WS_FLAG = 11 * MB + 256 * KB
WS_DBG = 11 * MB + 512 * KB
WS_HD = 32 * MB
REC = 32768
R_K, R_V, R_Q, R_M = 0, 8192, 16384, 24576
WS_P3 = 96 * MB
WS_SIZE = 256 * MB
F_RDY = 0
F_SYNC = 2048
F_LD = 4096
F_T1 = 8192
F_T2 = 16384
F_T3 = 20480
F_LN = 32768

OOB = 0x80000000
LIM = 1 << 19

sWS = 4
sDBG = 8
sA = 12
sB = 16
sC_ = 20
sD = 24
sE = 28
sW = 32
sH = 33
sG = 34
sCnt = 35
sT0 = 36
sT1 = 37
sT2 = 38
sT3 = 39

ARG = dict(x=0, mem0=8, Wq=16, Wk=24, Wv=32, Wo=40, seg=48, bx=56, wg=64, wu=72, wd=80, out=88, dbg=96, ws=104)
NBYTES = dict(x=2048 * 512 * 2, mem0=8 * 512 * 2, Wq=4 * MB, Wk=4 * MB, Wv=4 * MB, Wo=4 * MB,
              wg=512 * 1376 * 2, wu=512 * 1376 * 2, wd=512 * 1376 * 2, out=2048 * 512 * 2, dbg=256, ws=WS_SIZE)

def f2u(x): return struct.unpack('<I', struct.pack('<f', x))[0]

def srd_load(a, pairs):
    for s, n in pairs:
        a(f"s_load_dwordx2 {S(s,2)}, s[0:1], {ARG[n]}")
    a("s_waitcnt lgkmcnt(0)")
    for s, n in pairs:
        a(f"s_mov_b32 {S(s+2)}, {NBYTES[n]:#x}")
        a(f"s_mov_b32 {S(s+3)}, 0x20000")

def wait_all_tickets(a, v0, v1):
    L = a.newlabel('wt'); Ld = a.newlabel('wtd')
    a(f"v_mbcnt_lo_u32_b32 {R(v1)}, -1, 0"); a(f"v_mbcnt_hi_u32_b32 {R(v1)}, -1, {R(v1)}")
    a(f"v_lshlrev_b32 {R(v1)}, 5, {R(v1)}")
    a.label(L)
    a(f"buffer_load_dword {R(v0)}, {R(v1)}, {S(sDBG,4)}, 0 offen sc1")
    a("s_waitcnt vmcnt(0)")
    a(f"v_readlane_b32 {S(sT0)}, {R(v0)}, 0")
    for i in range(1, 8):
        a(f"v_readlane_b32 {S(sT1)}, {R(v0)}, {i}"); a(f"s_add_u32 {S(sT0)}, {S(sT0)}, {S(sT1)}")
    a(f"s_cmp_ge_u32 {S(sT0)}, 256"); a(f"s_cbranch_scc1 {Ld}")
    a("s_sleep 2")
    a(f"s_add_u32 {S(sCnt)}, {S(sCnt)}, 1"); a(f"s_cmp_lt_u32 {S(sCnt)}, {LIM}"); a(f"s_cbranch_scc1 {L}")
    a.label(Ld)

def wait_flags(a, vdst, voff, soff, thr, width=1, nload=1, sleep=2, voff2=None):
    L = a.newlabel('wf'); Ld = a.newlabel('wfd')
    a.label(L)
    sfx = {1: 'dword', 2: 'dwordx2', 4: 'dwordx4'}[width]
    for i in range(nload):
        a(f"buffer_load_{sfx} {R(vdst+i*width,width)}, {R(voff if i == 0 else voff2)}, {S(sWS,4)}, {soff} offen sc1")
    a("s_waitcnt vmcnt(0)")
    n = width * nload
    for i in range(1, n): a(f"v_min_u32 {R(vdst)}, {R(vdst)}, {R(vdst+i)}")
    a(f"v_cmp_gt_u32 vcc, {thr}, {R(vdst)}")
    a(f"s_cbranch_vccz {Ld}")
    if sleep: a(f"s_sleep {sleep}")
    a(f"s_add_u32 {S(sCnt)}, {S(sCnt)}, 1"); a(f"s_cmp_lt_u32 {S(sCnt)}, {LIM}"); a(f"s_cbranch_scc1 {L}")
    a.label(Ld)

def post_flag(a, vtmp, vone, soff, val, sc=' sc1'):
    a(f"v_mov_b32 {R(vtmp)}, {val}")
    a(f"buffer_store_dword {R(vtmp)}, {R(vone)}, {S(sWS,4)}, {soff} offen{sc}")

def make_vone(a, v, lane):
    a(f"v_cmp_eq_u32 vcc, 0, {R(lane)}"); a(f"v_mov_b32 {R(v)}, {OOB:#x}")
    a(f"v_cndmask_b32 {R(v)}, {R(v)}, 0, vcc")

def slab_loader(a, nslab, nslot, ring, sMb, dma_src, reads, cfg={}, hook=None):
    a(f"s_lshl_b32 {S(sMb)}, {S(sW)}, 12"); a(f"s_add_u32 {S(sMb)}, {S(sMb)}, {ring}")
    def dma(n):
        for i in range(4):
            vo, srd, ins = dma_src(n, i)
            a(f"s_add_u32 m0, {S(sMb)}, {(n % nslot)*16384 + i*1024}")
            a(ins)
            a(f"buffer_load_dwordx4 {R(vo)}, {S(srd,4)}, {S(sT0)} offen{' nt' if cfg.get('ntw') else ''} lds")
    c2 = dict(tacc=cfg.get('lacc'))
    tacc(a, c2, None)
    for n in range(min(nslot - 1, nslab)): dma(n)
    tacc(a, c2, 4)
    for n in range(nslab):
        ahead = min(nslab - 1, n + nslot - 2) - n
        a(f"s_waitcnt vmcnt({4*ahead}) lgkmcnt(0)")
        tacc(a, c2, 0)
        a("s_barrier")
        tacc(a, c2, 1)
        if n + nslot - 1 < nslab: dma(n + nslot - 1)
        if hook and n == nslab - 7: hook()
        tacc(a, c2, 2)
        reads(n, (n % nslot) * 16384)
        if c2['tacc']: a("s_waitcnt lgkmcnt(0)")
        tacc(a, c2, 3)
    a("s_waitcnt lgkmcnt(0)")
    a("s_barrier")

def rstamp(a, cfg, k):
    if cfg.get('diag'): a(f"s_memrealtime {S(84+2*k,2)}")

def tacc(a, cfg, k):
    if not cfg.get('tacc'): return
    a("s_memtime s[66:67]"); a("s_waitcnt lgkmcnt(0)")
    if k is not None:
        a("s_sub_u32 s69, s66, s68"); a(f"s_add_u32 s{70+k}, s{70+k}, s69")
    a("s_mov_b32 s68, s66")
```

```python
from common import *

vLane, vL16, vOne, vA0, vA1, vA2, vA3, vB0, vB1, vB2, vB3, vC0, vC1, vC2, vC3, vC4 = range(16)
sI, sSrc, sBuf, sFlag, sDst, sPar, sMb, sThr, sX0, sX1, sX2, sX3, sX4, sX5, sX6, sX7 = range(40, 56)

def mf32(a, d, A, B, first): a(f"v_mfma_f32_32x32x16_bf16 {R(d,16)}, {R(A,4)}, {R(B,4)}, {'0' if first else R(d,16)}")
def cvt(a, d, x, y): a(f"v_cvt_pk_bf16_f32 {R(d)}, {R(x)}, {R(y)}")

def base_setup(a):
    a(f"v_lshlrev_b32 {R(vL16)}, 4, {R(vLane)}")
    make_vone(a, vOne, vLane)

def dense32_loader(a, cfg, slabs, rowstride, colbase_s, rowmap, colmap16=False, hook=None):
    t0, t1, t2 = vC0, vC1, vC2
    a(f"v_lshrrev_b32 {R(t0)}, 4, {R(vLane)}")
    a(f"v_lshlrev_b32 {R(t1)}, 2, {R(t0)}"); a(f"v_and_b32 {R(t2)}, 15, {R(vLane)}"); a(f"v_xor_b32 {R(t1)}, {R(t1)}, {R(t2)}")
    a(f"s_lshl_b32 {S(sT0)}, {S(sW)}, 4"); a(f"v_add_u32 {R(t0)}, {S(sT0)}, {R(t0)}")
    a(f"v_mul_u32_u24 {R(t0)}, {rowstride}, {R(t0)}")
    a(f"v_lshl_add_u32 {R(t0)}, {R(t1)}, 4, {R(t0)}")
    a(f"v_add_u32 {R(vA0)}, {colbase_s}, {R(t0)}")
    a(f"v_bfe_u32 {R(t0)}, {R(vLane)}, 2, 2")
    a(f"v_lshrrev_b32 {R(t1)}, 5, {R(vLane)}")
    a(f"v_lshl_add_u32 {R(t1)}, {R(t1)}, {3 if rowmap == 'nat' else 2}, {R(t0)}")
    a(f"v_lshlrev_b32 {R(t1)}, 8, {R(t1)}")
    a(f"s_lshl_b32 {S(sT0)}, {S(sW)}, 1")
    if not colmap16:
        a(f"v_bfe_u32 {R(t2)}, {R(vLane)}, 4, 1")
        a(f"v_and_b32 {R(vA3)}, 3, {R(vLane)}"); a(f"v_lshlrev_b32 {R(vA3)}, 3, {R(vA3)}")
    else:
        a(f"v_and_b32 {R(t2)}, 1, {R(vLane)}")
        a(f"v_bfe_u32 {R(vA3)}, {R(vLane)}, 4, 1"); a(f"v_bfe_u32 {R(vA2)}, {R(vLane)}, 1, 1")
        a(f"v_lshl_add_u32 {R(vA3)}, {R(vA3)}, 1, {R(vA2)}"); a(f"v_lshlrev_b32 {R(vA3)}, 3, {R(vA3)}")
    a(f"v_add_u32 {R(t2)}, {S(sT0)}, {R(t2)}")
    a(f"v_lshlrev_b32 {R(t0)}, 1, {R(t0)}"); a(f"v_xor_b32 {R(t2)}, {R(t2)}, {R(t0)}")
    a(f"v_lshl_add_u32 {R(t1)}, {R(t2)}, 5, {R(t1)}")
    a(f"v_add_u32 {R(vA1)}, {R(t1)}, {R(vA3)}")
    a(f"v_add_u32 {R(vA2)}, 65536, {R(vA1)}")
    ustep = 4 if rowmap == 'nat' else 8
    L1 = a.newlabel('ld1'); L2 = a.newlabel('ld2')
    a(f"s_cmp_lg_u32 {S(sPar)}, 0"); a(f"s_cbranch_scc1 {L1}")
    for var in (0, 1):
        sl = slabs
        if var:
            G = cfg.get('stag', 3); sl = []
            for b in range(0, len(slabs), 2 * G):
                ch = slabs[b:b + 2 * G]; sl += ch[len(ch) // 2:] + ch[:len(ch) // 2]
        def src(n, i):
            srd, row0, _ = sl[n]
            return vA0, srd, f"s_mov_b32 {S(sT0)}, {(row0 + 4*i) * rowstride}"
        def reads(n, base):
            ad = vA1 if base < 65536 else vA2
            for ks, d in enumerate(sl[n][2]):
                if d is None: continue
                for u in (0, 1):
                    a(f"ds_read_b64_tr_b16 {R(d+2*u,2)}, {R(ad)} offset:{(base & 65535) + (16*ks + ustep*u)*256}")
        slab_loader(a, len(sl), 8, 0, sMb, src, reads, cfg, hook)
        if var == 0:
            a(f"s_branch {L2}"); a.label(L1)
    a.label(L2)


def xn_dma():
    out = []
    for hf in (0, 1):
        out.append(f"s_add_u32 m0, {S(sBuf)}, {hf*4096}")
        out.append(f"s_add_u32 {S(sT0)}, {S(sSrc)}, {hf*4096}")
        for q in range(4): out.append(f"buffer_load_dwordx4 {R(vL16)}, {S(sWS,4)}, {S(sT0)} offen offset:{q*1024} sc1 lds")
    out.append(f"s_add_u32 {S(sSrc)}, {S(sSrc)}, 65536"); out.append(f"s_add_u32 {S(sBuf)}, {S(sBuf)}, 32768"); out.append(f"s_and_b32 {S(sBuf)}, {S(sBuf)}, 0x1ffff")
    return out

def xn_first(a, cfg):
    FR = 16
    wait_all_tickets(a, vC0, vC1)
    a(f"v_readlane_b32 {S(sX7)}, {R(vC0)}, {S(sG)}")
    a(f"s_mov_b32 {S(sT2)}, {WS_FLAG + F_LN}")
    a(f"v_lshlrev_b32 {R(vC0)}, 7, {R(vLane)}"); a(f"v_add_u32 {R(vC1)}, 8192, {R(vC0)}")
    wait_flags(a, FR, vC0, S(sT2), 1, width=4, nload=2, voff2=vC1)
    a(f"s_lshl_b32 {S(sT0)}, {S(sW)}, 13"); a(f"s_add_u32 {S(sBuf)}, {S(sT0)}, 131072")
    a(f"s_lshl_b32 {S(sSrc)}, {S(sPar)}, 15"); a(f"s_add_u32 {S(sSrc)}, {S(sSrc)}, {S(sT0)}")
    if WS_XN: a(f"s_add_u32 {S(sSrc)}, {S(sSrc)}, {WS_XN}")
    for x in xn_dma(): a(x)

def xn_gemm(a, cfg, wreg, acc, swap, epilogue, nst, flag_at, exit_label, after_flag=None, local=False):
    FR = 16
    nm = len(acc)
    rstamp(a, cfg, 1)
    dma = xn_dma
    for q in range(2):
        for x in dma(): a(x)
    a(f"v_add_u32 {R(vB0)}, 131072, {R(vL16)}")
    a(f"s_mov_b32 {S(sI)}, 0")
    a("s_waitcnt vmcnt(16)")
    rstamp(a, cfg, 2)
    tacc(a, cfg, None)
    Lslow = a.newlabel('xgs')
    two = local and not cfg.get('slow')
    if two:
        a(f"s_cmp_lt_u32 {S(sX7)}, 32"); a(f"s_cbranch_scc1 {Lslow}")
    for sc in (('', ' sc1') if two else (' sc1',)):
        if sc: a.label(Lslow)
        L = a.newlabel('xg')
        a.label(L)
        tacc(a, cfg, 3); a("s_barrier"); tacc(a, cfg, 0)
        for k in range(3): a(f"ds_read_b128 {R(FR+4*k,4)}, {R(vB0)} offset:{k*1024}")
        side = dma()
        for k in range(32):
            a(f"s_waitcnt lgkmcnt({min(2, 31-k)})")
            f = FR + 4 * (k & 3)
            for m in range(nm):
                if swap[m]: mf32(a, acc[m], f, wreg[m](k), k == 0)
                else: mf32(a, acc[m], wreg[m](k), f, k == 0)
                if m == 0 and k + 3 < 32: a(f"ds_read_b128 {R(FR+4*((k+3)&3),4)}, {R(vB0)} offset:{(k+3)*1024}")
                elif side: a(side.pop(0));
                if m and side and side[0].startswith('s_'): a(side.pop(0))
            if k == flag_at:
                assert not side
                tacc(a, cfg, 1); a("s_waitcnt vmcnt(8)"); tacc(a, cfg, 2); post_flag(a, vC0, vOne, S(sFlag), S(sI), sc)
                if after_flag: after_flag()
        a(f"v_add_u32 {R(vB0)}, 32768, {R(vB0)}"); a(f"v_and_b32 {R(vB0)}, 0x1ffff, {R(vB0)}")
        tacc(a, cfg, 1)
        epilogue(sc)
        a(f"s_add_u32 {S(sI)}, {S(sI)}, 1")
        Lf = a.newlabel('xgf')
        a(f"s_cmp_gt_u32 {S(sI)}, 1"); a(f"s_cbranch_scc1 {Lf}")
        a("s_waitcnt vmcnt(0)"); post_flag(a, vC0, vOne, S(sFlag), 1, sc); rstamp(a, cfg, 3)
        a.label(Lf)
        a(f"s_cmp_lt_u32 {S(sI)}, 32"); a(f"s_cbranch_scc1 {L}")
        a("s_waitcnt vmcnt(0)"); post_flag(a, vC0, vOne, S(sFlag), 32, sc)
        a(f"s_branch {exit_label}")


def role_t1(a, cfg, exit_label):
    srd_load(a, [(sA, 'Wk'), (sB, 'Wv'), (sC_, 'Wq')])
    base_setup(a)
    sHead = sX0
    a(f"s_sub_u32 {S(sT0)}, {S(sG)}, 1"); a(f"s_lshl_b32 {S(sT0)}, {S(sT0)}, 4"); a(f"s_lshr_b32 {S(sT1)}, {S(sH)}, 1")
    a(f"s_add_u32 {S(sHead)}, {S(sT0)}, {S(sT1)}"); a(f"s_and_b32 {S(sPar)}, {S(sH)}, 1")
    a(f"s_lshl_b32 {S(sX1)}, {S(sHead)}, 8")
    wb = [128, 256, 384]
    slabs = [(srd, 64 * c, [wb[m] + 4 * (4 * c + ks) for ks in range(4)]) for m, srd in enumerate((sA, sB, sC_)) for c in range(8)]
    dense32_loader(a, cfg, slabs, 8192, S(sX1), 'nat', hook=lambda: xn_first(a, cfg))
    vK, vV = vB1, vB2
    a(f"v_bfe_u32 {R(vC0)}, {R(vLane)}, 4, 1"); a(f"v_lshrrev_b32 {R(vC1)}, 5, {R(vLane)}"); a(f"v_and_b32 {R(vC2)}, 15, {R(vLane)}")
    a(f"v_lshlrev_b32 {R(vC2)}, 4, {R(vC2)}")
    a(f"v_lshl_add_u32 {R(vK)}, {R(vC0)}, 12, {R(vC2)}"); a(f"v_lshl_add_u32 {R(vK)}, {R(vC1)}, 8, {R(vK)}")
    a(f"v_lshl_add_u32 {R(vV)}, {R(vC0)}, 10, {R(vC2)}"); a(f"v_lshl_add_u32 {R(vV)}, {R(vC1)}, 9, {R(vV)}")
    sK, sV, sQ = sX2, sX3, sX4
    a(f"s_lshl_b32 {S(sT0)}, {S(sHead)}, 21"); a(f"s_lshl_b32 {S(sT1)}, {S(sPar)}, 15"); a(f"s_add_u32 {S(sT0)}, {S(sT0)}, {S(sT1)}")
    a(f"s_lshl_b32 {S(sT1)}, {S(sW)}, 10"); a(f"s_add_u32 {S(sT0)}, {S(sT0)}, {S(sT1)}")
    a(f"s_add_u32 {S(sK)}, {S(sT0)}, {WS_HD + R_K}"); a(f"s_add_u32 {S(sQ)}, {S(sT0)}, {WS_HD + R_Q}")
    a(f"s_add_u32 {S(sT0)}, {S(sT0)}, {S(sT1)}"); a(f"s_add_u32 {S(sV)}, {S(sT0)}, {WS_HD + R_V}")
    a(f"s_lshl_b32 {S(sT0)}, {S(sHead)}, 1"); a(f"s_add_u32 {S(sT0)}, {S(sT0)}, {S(sPar)}"); a(f"s_lshl_b32 {S(sT0)}, {S(sT0)}, 7")
    a(f"s_lshl_b32 {S(sT1)}, {S(sW)}, 4"); a(f"s_add_u32 {S(sT0)}, {S(sT0)}, {S(sT1)}"); a(f"s_add_u32 {S(sFlag)}, {S(sT0)}, {WS_FLAG + F_T1}")
    acc = [32, 48, 64]; E = 80; SN = 104
    for q in range(4): a(f"v_mov_b32 {R(SN+q)}, -1")
    a(f"v_and_b32 {R(vB3)}, 31, {R(vLane)}"); a(f"v_lshlrev_b32 {R(vB3)}, 7, {R(vB3)}")
    a(f"s_mul_i32 {S(sT0)}, {S(sW)}, 3072"); a(f"v_add_u32 {R(vB3)}, {S(sT0)}, {R(vB3)}")
    def rb():
        a(f"s_sub_u32 {S(sT1)}, {S(sK)}, {4*REC}")
        a(f"buffer_load_dword {R(vC3)}, {R(vB3)}, {S(sWS,4)}, {S(sT1)} offen sc1")
    def epi(sc):
        a(f"s_add_u32 {S(sT1)}, {S(sK)}, {R_M - R_K}")
        a(f"buffer_store_dwordx4 {R(SN,4)}, {R(vL16)}, {S(sWS,4)}, {S(sT1)} offen sc1")
        for idx, (ac, so) in enumerate(((acc[0], sK), (acc[2], sQ))):
            for ap in (0, 1):
                q = E + 8 * idx + 4 * ap
                for b in range(4): cvt(a, q + b, ac + 4 * ap + b, ac + 4 * (ap + 2) + b)
                a(f"buffer_store_dwordx4 {R(q,4)}, {R(vK)}, {S(sWS,4)}, {S(so)} offen offset:{ap*512} sc1")
            if idx == 0:
                for be in (0, 1):
                    q = E + 16 + 4 * be
                    for d, aa in enumerate((0, 2, 1, 3)): cvt(a, q + d, acc[1] + 4 * aa + 2 * be, acc[1] + 4 * aa + 2 * be + 1)
                    a(f"buffer_store_dwordx4 {R(q,4)}, {R(vV)}, {S(sWS,4)}, {S(sV)} offen offset:{be*256} sc1")
        a(f"s_add_u32 {S(sK)}, {S(sK)}, {2*REC}"); a(f"s_add_u32 {S(sV)}, {S(sV)}, {2*REC}"); a(f"s_add_u32 {S(sQ)}, {S(sQ)}, {2*REC}")
    xn_gemm(a, cfg, [lambda k, m=m: wb[m] + 4 * k for m in range(3)], acc, [False, True, False], epi, 6, cfg.get('t1f', 20), exit_label, rb if cfg.get('t1rb', 1) else None)


def role_t2(a, cfg, exit_label):
    srd_load(a, [(sA, 'wg'), (sB, 'wu')])
    base_setup(a)
    sCb = sX0
    a(f"s_lshr_b32 {S(sCb)}, {S(sH)}, 1"); a(f"s_and_b32 {S(sPar)}, {S(sH)}, 1")
    a(f"s_lshl_b32 {S(sX1)}, {S(sCb)}, 8")
    wb = [256, 384]
    slabs = [(srd, 64 * c, [wb[m] + 4 * (4 * c + ks) for ks in range(4)]) for m, srd in enumerate((sA, sB)) for c in range(8)]
    dense32_loader(a, cfg, slabs, 2752, S(sX1), 'nat', hook=lambda: xn_first(a, cfg))
    a(f"s_lshl_b32 {S(sT0)}, {S(sCb)}, 2"); a(f"s_add_u32 {S(sT0)}, {S(sT0)}, {S(sW)}")
    a(f"s_cmp_lt_u32 {S(sT0)}, 43"); a(f"s_cselect_b32 {S(sT1)}, 0, {OOB:#x}")
    a(f"v_add_u32 {R(vB1)}, {S(sT1)}, {R(vL16)}")
    a(f"s_lshl_b32 {S(sDst)}, {S(sT0)}, 11"); a(f"s_mul_i32 {S(sT1)}, {S(sPar)}, {HBLK}")
    a(f"s_add_u32 {S(sDst)}, {S(sDst)}, {S(sT1)}"); a(f"s_add_u32 {S(sDst)}, {S(sDst)}, {WS_H}")
    a(f"s_lshl_b32 {S(sT0)}, {S(sCb)}, 7"); a(f"s_lshl_b32 {S(sT1)}, {S(sPar)}, 11"); a(f"s_add_u32 {S(sT0)}, {S(sT0)}, {S(sT1)}")
    a(f"s_lshl_b32 {S(sT1)}, {S(sW)}, 2"); a(f"s_add_u32 {S(sT0)}, {S(sT0)}, {S(sT1)}")
    a(f"s_add_u32 {S(sFlag)}, {S(sT0)}, {WS_FLAG + F_T2}")
    acc = [32, 48]; E = 80
    def epi(sc):
        for ap in (0, 1):
            for j in range(8): a(f"v_mul_f32 {R(E+16+j)}, {R(acc[0]+8*ap+j)}, {R(acc[1]+8*ap+j)}")
            for d in range(4): cvt(a, E + 4 * ap + d, E + 16 + 2 * d, E + 17 + 2 * d)
            a(f"buffer_store_dwordx4 {R(E+4*ap,4)}, {R(vB1)}, {S(sWS,4)}, {S(sDst)} offen offset:{ap*1024}{sc}")
        a(f"s_add_u32 {S(sDst)}, {S(sDst)}, {2*HBLK}")
    xn_gemm(a, cfg, [lambda k, m=m: wb[m] + 4 * k for m in range(2)], acc, [False, False], epi, 2, 16, exit_label, local=True)


def role_t3(a, cfg, exit_label):
    srd_load(a, [(sA, 'wd')])
    base_setup(a)
    sNb = sX0
    a(f"s_sub_u32 {S(sNb)}, {S(sH)}, 22"); a(f"s_lshr_b32 {S(sNb)}, {S(sNb)}, 1"); a(f"s_and_b32 {S(sPar)}, {S(sH)}, 1")
    a(f"s_lshl_b32 {S(sX1)}, {S(sNb)}, 8")
    W0 = 512 - 344
    SLOT = 45056; FR = 16; NF = 6; acc = 40; E = 56; AC2 = 80
    vFl, vSt, vFv = vB1, vB2, vB3
    a(f"v_min_u32 {R(vFl)}, 42, {R(vLane)}"); a(f"v_and_b32 {R(vC0)}, 3, {R(vFl)}"); a(f"v_lshrrev_b32 {R(vFl)}, 2, {R(vFl)}")
    a(f"v_lshlrev_b32 {R(vFl)}, 7, {R(vFl)}"); a(f"v_lshl_add_u32 {R(vFl)}, {R(vC0)}, 2, {R(vFl)}")
    sF2, sRd, sWoff = sX2, sX3, sX4
    a(f"s_lshl_b32 {S(sF2)}, {S(sPar)}, 11"); a(f"s_add_u32 {S(sF2)}, {S(sF2)}, {WS_FLAG + F_T2}")
    slabs = [(sA, 64 * c, [(W0 + 4 * (4 * c + ks)) if 4 * c + ks < 86 else None for ks in range(4)]) for c in range(22)]
    dense32_loader(a, cfg, slabs, 1024, S(sX1), 'h', colmap16=True)
    rstamp(a, cfg, 1)
    wait_all_tickets(a, vC0, vC1)
    wait_flags(a, vC0, vFl, S(sF2), 1, sleep=8)
    rstamp(a, cfg, 2)
    a(f"v_mov_b32 {R(vSt)}, {OOB:#x}"); a(f"v_mov_b32 {R(vFv)}, 0")
    a(f"s_lshl_b32 {S(sT0)}, {S(sNb)}, 2"); a(f"s_add_u32 {S(sT0)}, {S(sT0)}, {S(sW)}")
    a(f"s_lshl_b32 {S(sDst)}, {S(sT0)}, 11"); a(f"s_lshl_b32 {S(sT1)}, {S(sPar)}, 15"); a(f"s_add_u32 {S(sDst)}, {S(sDst)}, {S(sT1)}")
    a(f"s_add_u32 {S(sDst)}, {S(sDst)}, {WS_GATE - 65536}")
    a(f"s_lshl_b32 {S(sT0)}, {S(sNb)}, 7"); a(f"s_lshl_b32 {S(sT1)}, {S(sPar)}, 9"); a(f"s_add_u32 {S(sT0)}, {S(sT0)}, {S(sT1)}")
    a(f"s_lshl_b32 {S(sT1)}, {S(sW)}, 2"); a(f"s_add_u32 {S(sT0)}, {S(sT0)}, {S(sT1)}")
    a(f"s_add_u32 {S(sFlag)}, {S(sT0)}, {WS_FLAG + F_T3}")
    a(f"s_mul_i32 {S(sWoff)}, {S(sW)}, 11264")
    a(f"s_mul_i32 {S(sSrc)}, {S(sPar)}, {HBLK}"); a(f"s_add_u32 {S(sSrc)}, {S(sSrc)}, {S(sWoff)}"); a(f"s_add_u32 {S(sSrc)}, {S(sSrc)}, {WS_H}")
    a(f"s_mov_b32 {S(sBuf)}, 0"); a(f"s_mov_b32 {S(sRd)}, 0")
    a(f"s_mov_b32 {S(sX5)}, {f2u(-math.log2(math.e)):#x}")
    def nxt(s):
        return [f"s_add_u32 {S(s)}, {S(s)}, {SLOT}", f"s_cmp_ge_u32 {S(s)}, {3*SLOT}\ns_cselect_b32 {S(s)}, 0, {S(s)}"]
    def dma(half):
        o = [f"s_add_u32 {S(sT1)}, {S(sBuf)}, {S(sWoff)}"]
        for gq in range(3):
            o.append(f"s_add_u32 m0, {S(sT1)}, {gq*4096}\ns_add_u32 {S(sT0)}, {S(sSrc)}, {gq*4096}")
            for q in range(4 if gq < 2 else 3): o.append(f"buffer_load_dwordx4 {R(vL16)}, {S(sWS,4)}, {S(sT0)} offen offset:{q*1024} sc1 lds")
        o.append(f"s_add_u32 {S(sSrc)}, {S(sSrc)}, {43*1024 if half == 0 else 43*1024 + HBLK}")
        return o + nxt(sBuf)
    def epi():
        o = []
        for p in range(8):
            x0, x1, e0, e1 = E + 16 + 4 * (p & 1), E + 17 + 4 * (p & 1), E + 18 + 4 * (p & 1), E + 19 + 4 * (p & 1)
            o += [f"v_cvt_pk_bf16_f32 {R(x1)}, {R(AC2+2*p)}, {R(AC2+2*p+1)}",
                  f"v_lshlrev_b32 {R(x0)}, 16, {R(x1)}", f"v_and_b32 {R(x1)}, 0xffff0000, {R(x1)}",
                  f"v_mul_f32 {R(e0)}, {S(sX5)}, {R(x0)}", f"v_mul_f32 {R(e1)}, {S(sX5)}, {R(x1)}",
                  f"v_exp_f32 {R(e0)}, {R(e0)}", f"v_exp_f32 {R(e1)}, {R(e1)}",
                  f"v_add_f32 {R(e0)}, 1.0, {R(e0)}", f"v_add_f32 {R(e1)}, 1.0, {R(e1)}",
                  f"v_rcp_f32 {R(e0)}, {R(e0)}", f"v_rcp_f32 {R(e1)}, {R(e1)}",
                  f"v_mul_f32 {R(x0)}, {R(x0)}, {R(e0)}", f"v_mul_f32 {R(x1)}, {R(x1)}, {R(e1)}",
                  f"v_cvt_pk_bf16_f32 {R(E+p)}, {R(x0)}, {R(x1)}"]
        o += [f"buffer_store_dwordx4 {R(E,4)}, {R(vSt)}, {S(sWS,4)}, {S(sDst)} offen sc1",
              f"buffer_store_dwordx4 {R(E+4,4)}, {R(vSt)}, {S(sWS,4)}, {S(sDst)} offen offset:1024 sc1",
              f"s_add_u32 {S(sDst)}, {S(sDst)}, 65536", f"v_mov_b32 {R(vSt)}, {R(vL16)}"]
        return o
    for x in dma(0) + dma(1): a(x)
    a(f"s_mov_b32 {S(sI)}, 0")
    a("s_waitcnt vmcnt(0)")
    tacc(a, cfg, None)
    L = a.newlabel('t3')
    a.label(L)
    for half in (0, 1):
        tacc(a, cfg, 1)
        a(f"s_waitcnt vmcnt({12 if half == 0 else 14})")
        tacc(a, cfg, 4 + half)
        a("s_barrier")
        tacc(a, cfg, 0)
        a(f"v_add_u32 {R(vB0)}, {S(sRd)}, {R(vL16)}")
        for k in range(NF - 1): a(f"ds_read_b128 {R(FR+4*k,4)}, {R(vB0)} offset:{k*1024}")
        for x in nxt(sRd): a(x)
        if half == 0:
            Lok = a.newlabel('t3ok')
            a(f"s_add_u32 {S(sThr)}, {S(sI)}, 2"); a(f"s_min_u32 {S(sThr)}, {S(sThr)}, 32")
            a(f"v_cmp_gt_u32 vcc, {S(sThr)}, {R(vFv)}"); a(f"s_cbranch_vccz {Lok}")
            wait_flags(a, vFv, vFl, S(sF2), S(sThr))
            a.label(Lok)
            tacc(a, cfg, 3)
            sv = epi()
        else:
            a(f"buffer_load_dword {R(vFv)}, {R(vFl)}, {S(sWS,4)}, {S(sF2)} offen sc1")
            sv = []
        sd = dma(half)
        if cfg.get('t3nodma'): sd = [x for x in sd if not x.startswith('buffer')]
        for k in range(43):
            a(f"s_waitcnt lgkmcnt({min(NF-2, 42-k)})")
            mf32(a, acc, W0 + 4 * (43 * half + k), FR + 4 * (k % NF), half == 0 and k == 0)
            if k + NF - 1 < 43 and not (cfg.get('t3half') and k & 1): a(f"ds_read_b128 {R(FR+4*((k+NF-1)%NF),4)}, {R(vB0)} offset:{(k+NF-1)*1024}")
            if sd and (k % 2 == 1 or not sd[0].startswith('buffer')): a(sd.pop(0))
            for q in range(4):
                if sv: a(sv.pop(0))
            if half == 1 and k == 30:
                tacc(a, cfg, 1); a("s_waitcnt vmcnt(12)"); tacc(a, cfg, 2); post_flag(a, vC1, vOne, S(sFlag), S(sI))
        assert not sd and not sv
    for p in range(8): a(f"v_mov_b64 {R(AC2+2*p,2)}, {R(acc+2*p,2)}")
    a(f"s_add_u32 {S(sI)}, {S(sI)}, 1"); a(f"s_cmp_lt_u32 {S(sI)}, 32"); a(f"s_cbranch_scc1 {L}")
    for x in epi(): a(x)
    a("s_waitcnt vmcnt(0)"); post_flag(a, vC1, vOne, S(sFlag), 32)
    if cfg.get('wb', 0): a("buffer_wbl2 sc1")
    a(f"s_branch {exit_label}")


def allred(a, regs, tmps, op):
    for ctl in ('row_ror:8', 'row_ror:4', 'row_ror:2', 'row_ror:1'):
        for r in regs: a(f"{op}_dpp {R(r)}, {R(r)}, {R(r)} {ctl} row_mask:0xf bank_mask:0xf")
    for sw in ('v_permlane16_swap_b32', 'v_permlane32_swap_b32'):
        for r, t in zip(regs, tmps): a(f"v_mov_b32 {R(t)}, {R(r)}")
        for r, t in zip(regs, tmps): a(f"{sw} {R(r)}, {R(t)}")
        for r, t in zip(regs, tmps): a(f"{op} {R(r)}, {R(r)}, {R(t)}")


PFSRD = [sD, sE, 56, sB, 60]
def layernorm(a, cfg):
    X = 32; F = 64; sm = [16, 17, 18, 19]; tm = [20, 21, 22, 23]; mb = [24, 25, 26, 27]
    sU = sX0
    a(f"s_sub_u32 {S(sU)}, {S(sG)}, 4"); a(f"s_lshl_b32 {S(sU)}, {S(sU)}, 5"); a(f"s_add_u32 {S(sU)}, {S(sU)}, {S(sH)}")
    a(f"s_lshl_b32 {S(sT0)}, {S(sU)}, 14"); a(f"s_lshl_b32 {S(sT1)}, {S(sW)}, 12"); a(f"s_add_u32 {S(sT0)}, {S(sT0)}, {S(sT1)}")
    for r in range(4): a(f"buffer_load_dwordx4 {R(X+4*r,4)}, {R(vL16)}, {S(sA,4)}, {S(sT0)} offen offset:{r*1024}")
    npf = 0
    if cfg.get('pf', 1):
        a(f"v_lshlrev_b32 {R(vC0)}, 7, {R(vLane)}")
        a(f"s_lshl_b32 {S(sT1)}, {S(sU)}, 2"); a(f"s_add_u32 {S(sT1)}, {S(sT1)}, {S(sW)}"); a(f"s_lshl_b32 {S(sT1)}, {S(sT1)}, 13")
        a(f"v_add_u32 {R(vC0)}, {S(sT1)}, {R(vC0)}")
        for q, srd in enumerate(PFSRD):
            a(f"buffer_load_dword {R(100+q)}, {R(vC0)}, {S(srd,4)}, 0 offen"); npf += 1
    for r in range(4):
        a(f"s_waitcnt vmcnt({3-r+npf})")
        for d in range(4):
            a(f"v_lshlrev_b32 {R(F+8*r+2*d)}, 16, {R(X+4*r+d)}"); a(f"v_and_b32 {R(F+8*r+2*d+1)}, 0xffff0000, {R(X+4*r+d)}")
        a(f"v_add_f32 {R(sm[r])}, {R(F+8*r)}, {R(F+8*r+1)}")
        for j in range(2, 8): a(f"v_add_f32 {R(sm[r])}, {R(sm[r])}, {R(F+8*r+j)}")
    allred(a, sm, tm, 'v_add_f32')
    a(f"s_mov_b32 {S(sT2)}, {f2u(1/512):#x}")
    for r in range(4):
        a(f"v_mul_f32 {R(sm[r])}, {S(sT2)}, {R(sm[r])}")
        cvt(a, mb[r], sm[r], sm[r]); a(f"v_lshlrev_b32 {R(mb[r])}, 16, {R(mb[r])}")
    vs = [28, 29, 30, 31]
    for r in range(4):
        for j in range(8):
            a(f"v_sub_f32 {R(tm[r])}, {R(F+8*r+j)}, {R(sm[r])}")
            if j == 0: a(f"v_mul_f32 {R(vs[r])}, {R(tm[r])}, {R(tm[r])}")
            else: a(f"v_fmac_f32 {R(vs[r])}, {R(tm[r])}, {R(tm[r])}")
    allred(a, vs, tm, 'v_add_f32')
    def rnd(r): cvt(a, r, r, r); a(f"v_lshlrev_b32 {R(r)}, 16, {R(r)}")
    for r in range(4):
        v = vs[r]
        a(f"v_mul_f32 {R(v)}, {S(sT2)}, {R(v)}"); rnd(v)
        a(f"v_add_f32 {R(v)}, {f2u(1e-5):#x}, {R(v)}"); rnd(v)
        a(f"v_sqrt_f32 {R(v)}, {R(v)}"); rnd(v)
        a(f"v_rcp_f32 {R(v)}, {R(v)}")
    a(f"s_lshl_b32 {S(sT1)}, {S(sW)}, 6"); a(f"v_lshlrev_b32 {R(vC0)}, 8, {R(vLane)}"); a(f"v_add_u32 {R(vC0)}, {S(sT1)}, {R(vC0)}")
    for r in range(4):
        for d in range(4):
            f = F + 8 * r + 2 * d
            a(f"v_sub_f32 {R(f)}, {R(f)}, {R(mb[r])}"); a(f"v_sub_f32 {R(f+1)}, {R(f+1)}, {R(mb[r])}")
            cvt(a, f + 1, f, f + 1)
            a(f"v_lshlrev_b32 {R(f)}, 16, {R(f+1)}"); a(f"v_and_b32 {R(f+1)}, 0xffff0000, {R(f+1)}")
            a(f"v_mul_f32 {R(f)}, {R(f)}, {R(vs[r])}"); a(f"v_mul_f32 {R(f+1)}, {R(f+1)}, {R(vs[r])}")
            cvt(a, X + 4 * r + d, f, f + 1)
        a(f"ds_write_b128 {R(vC0)}, {R(X+4*r,4)} offset:{r*16}")
    a("s_waitcnt lgkmcnt(0)"); a("s_barrier")
    a(f"s_lshl_b32 {S(sT1)}, {S(sW)}, 12"); a(f"v_add_u32 {R(vC0)}, {S(sT1)}, {R(vL16)}")
    for r in range(4): a(f"ds_read_b128 {R(X+4*r,4)}, {R(vC0)} offset:{r*1024}")
    a(f"v_lshrrev_b32 {R(vC1)}, 4, {R(vLane)}"); a(f"v_and_b32 {R(vC2)}, 15, {R(vLane)}")
    a(f"v_lshlrev_b32 {R(vC1)}, 9, {R(vC1)}"); a(f"v_lshl_add_u32 {R(vC1)}, {R(vC2)}, 4, {R(vC1)}")
    a(f"s_lshr_b32 {S(sT0)}, {S(sU)}, 1"); a(f"s_lshl_b32 {S(sT0)}, {S(sT0)}, 15")
    a(f"s_and_b32 {S(sT1)}, {S(sU)}, 1"); a(f"s_lshl_b32 {S(sT1)}, {S(sT1)}, 8"); a(f"s_add_u32 {S(sT0)}, {S(sT0)}, {S(sT1)}")
    a(f"s_lshl_b32 {S(sT1)}, {S(sW)}, 13"); a(f"s_add_u32 {S(sT0)}, {S(sT0)}, {S(sT1)}")
    if WS_XN: a(f"s_add_u32 {S(sT0)}, {S(sT0)}, {WS_XN}")
    a(f"s_add_u32 {S(sT1)}, {S(sT0)}, 4096")
    for r in range(4):
        a(f"s_waitcnt lgkmcnt({3-r})")
        a(f"buffer_store_dwordx4 {R(X+4*r,4)}, {R(vC1)}, {S(sWS,4)}, {S(sT0 if r < 2 else sT1)} offen offset:{(r&1)*2048} sc1")
    wait_all_tickets(a, vC3, vC4)
    a(f"s_lshl_b32 {S(sT0)}, {S(sU)}, 5"); a(f"s_add_u32 {S(sT0)}, {S(sT0)}, {S(sW)}"); a(f"s_lshl_b32 {S(sT0)}, {S(sT0)}, 2")
    a(f"s_add_u32 {S(sT0)}, {S(sT0)}, {WS_FLAG + F_LN}")
    post_flag(a, vC0, vOne, S(sT0), 1)
    rstamp(a, cfg, 1)
    a("s_barrier")
```

```python
import sys
from common import *
import chain, workers, p3

NAME = 'recurrent_scan__memory_aug_recurrent_mem_tr__glu_gated_bilinear__prompt_kernel'
HEAD = open('recurrent_scan__memory_aug_recurrent_mem_tr__glu_gated_bilinear__prompt.s.ref').read().split('; Override launch')[0]

def build(cfg):
    a = Asm()
    diag = cfg.get('diag')
    a("s_cmp_ge_u32 s2, 256"); a("s_cbranch_scc1 L_exit")
    if diag: a("s_memrealtime s[96:97]")
    srd_load(a, [(sWS, 'ws'), (sDBG, 'dbg')])
    a("v_lshrrev_b32 v1, 6, v0"); a(f"v_readfirstlane_b32 {S(sW)}, v1")
    a("v_and_b32 v0, 63, v0")
    a(f"s_mov_b32 {S(sCnt)}, 0")
    a(f"s_getreg_b32 {S(sG)}, hwreg(HW_REG_XCC_ID)"); a(f"s_and_b32 {S(sG)}, {S(sG)}, 7")
    if cfg.get('fakexcc') == 1: a(f"s_lshr_b32 {S(sG)}, s2, 5")
    if cfg.get('fakexcc') == 2:
        a(f"s_lshr_b32 {S(sG)}, s2, 4"); a(f"s_min_u32 {S(sG)}, {S(sG)}, 7")
    a("v_mov_b32 v2, 0")
    a(f"s_cmp_lg_u32 {S(sW)}, 0"); a("s_cbranch_scc1 L_code")
    a("v_lshlrev_b32 v1, 2, v0")
    a(f"s_lshl_b32 {S(sT0)}, s2, 8"); a(f"s_add_u32 {S(sT0)}, {S(sT0)}, {WS_FLAG}")
    a(f"buffer_store_dword v2, v1, {S(sWS,4)}, {S(sT0)} offen sc1")
    a("v_mov_b32 v1, 1"); a(f"s_lshl_b32 {S(sT0)}, {S(sG)}, 5"); a(f"v_mov_b32 v3, {S(sT0)}")
    a("s_waitcnt vmcnt(0)")
    a("s_mov_b64 exec, 1")
    a(f"buffer_atomic_add v1, v3, {S(sDBG,4)}, 0 offen sc0 sc1")
    a("s_waitcnt vmcnt(0)")
    a("ds_write_b32 v2, v1")
    a("s_mov_b64 exec, -1")
    a("s_waitcnt lgkmcnt(0)")
    a("s_branch L_tk")
    a.label("L_code")
    if cfg.get('codepf', 1):
        a("s_getpc_b64 s[40:41]")
        a.label("L_pc")
        a("s_mov_b32 s42, L_end-L_pc-4")
        a("s_lshr_b32 s44, s2, 3"); a("s_and_b32 s44, s44, 3"); a("s_mul_i32 s44, s44, 3"); a(f"s_add_u32 s44, s44, {S(sW)}")
        a("s_sub_u32 s44, s44, 1"); a("s_lshl_b32 s44, s44, 13")
        a("v_lshlrev_b32 v3, 7, v0"); a("v_add_u32 v3, s44, v3")
        a("v_min_u32 v3, s42, v3")
        a("v_mov_b32 v5, s41"); a("v_add_co_u32 v4, vcc, s40, v3"); a("v_addc_co_u32 v5, vcc, 0, v5, vcc")
        a("global_load_dword v3, v[4:5], off")
        a("s_waitcnt vmcnt(0)")
    a.label("L_tk")
    a("s_barrier")
    a("ds_read_b32 v1, v2"); a("s_waitcnt lgkmcnt(0)")
    a(f"v_readfirstlane_b32 {S(sH)}, v1")
    a("s_barrier")
    a(f"s_cmp_lt_u32 {S(sH)}, 32"); a("s_cbranch_scc1 L_role")
    wait_all_tickets(a, 1, 2)
    sR, sX, sCn = 40, 41, 42
    a(f"s_sub_u32 {S(sR)}, {S(sH)}, 32")
    for x in range(7):
        a(f"v_readlane_b32 {S(sCn)}, v1, {x}"); a(f"s_max_u32 {S(sCn)}, {S(sCn)}, 32"); a(f"s_sub_u32 {S(sCn)}, {S(sCn)}, 32")
        a(f"s_cmp_gt_u32 {S(sG)}, {x}"); a(f"s_cselect_b32 {S(sCn)}, {S(sCn)}, 0"); a(f"s_add_u32 {S(sR)}, {S(sR)}, {S(sCn)}")
    for x in range(8):
        a(f"v_readlane_b32 {S(sCn)}, v1, {x}"); a(f"s_min_u32 {S(sCn)}, {S(sCn)}, 32")
        a(f"s_mov_b32 {S(sG)}, {x}"); a(f"s_add_u32 {S(sH)}, {S(sCn)}, {S(sR)}")
        a(f"s_cmp_lt_u32 {S(sH)}, 32"); a("s_cbranch_scc1 L_role")
        a(f"s_sub_u32 {S(sR)}, {S(sH)}, 32")
    a("s_branch L_exit")
    a.label("L_role")
    if diag:
        for q in list(range(84, 92)) + list(range(66, 78)): a(f"s_mov_b32 s{q}, 0")
    rstamp(a, cfg, 0)
    a(f"s_cmp_ge_u32 {S(sG)}, 4"); a("s_cbranch_scc1 L_p3")
    a(f"s_cmp_eq_u32 {S(sG)}, 3"); a("s_cbranch_scc1 L_glu")
    a(f"s_cmp_lg_u32 {S(sG)}, 0"); a("s_cbranch_scc1 L_t1")
    done = "L_done" if diag else "L_exit"
    m0 = chain.chain_setup(a, cfg)
    chain.chain_init_buffers(a, cfg, m0, ' sc1')
    def hook(n, w):
        t = chain.O(6)
        if n == 6 + w:
            wait_all_tickets(a, t, t + 1)
            a(f"v_readlane_b32 {S(chain.sFast)}, {R(t)}, 0")
            if w == 0:
                a(f"v_mov_b32 {R(t+1)}, 0"); a(f"v_mov_b32 {R(t)}, 1")
                a(f"s_lshl_b32 {S(sT0)}, {S(sH)}, 2"); a(f"s_add_u32 {S(sT0)}, {S(sT0)}, {WS_FLAG + F_RDY}")
                a("s_mov_b64 exec, 1")
                a(f"buffer_store_dword {R(t)}, {R(t+1)}, {S(sWS,4)}, {S(sT0)} offen sc1")
                a("s_mov_b64 exec, -1")
        if n == 22 and w == 1:
            a(f"v_and_b32 {R(t+4)}, 0x70, {R(chain.vL16)}"); a(f"s_mov_b32 {S(sT2)}, {WS_FLAG + F_RDY}")
            wait_flags(a, t, t + 4, S(sT2), 1, width=4)
        if n == 23:
            a(f"s_lshl_b32 {S(sT2)}, {S(sW)}, 11"); a(f"s_add_u32 {S(sT1)}, {S(sT2)}, {S(chain.sH1L)}"); a(f"s_add_u32 {S(sT3)}, {S(sT1)}, {512*KB}")
            for so in (sT1, sT3):
                for q in (0, 1): a(f"buffer_load_dwordx4 {R(t,4)}, {R(chain.vL16)}, {S(sWS,4)}, {S(so)} offen offset:{q*1024} sc1")
            a(f"s_lshl_b32 {S(sT1)}, {S(sH)}, 2"); a(f"s_add_u32 {S(sT1)}, {S(sT1)}, {S(sW)}"); a(f"s_lshl_b32 {S(sT1)}, {S(sT1)}, 10"); a(f"s_add_u32 {S(sT1)}, {S(sT1)}, {WS_MEMR}")
            a(f"buffer_load_dwordx4 {R(t,4)}, {R(chain.vL16)}, {S(sWS,4)}, {S(sT1)} offen sc1")
        if n == 27 and w == 2 and not cfg.get('noflag'):
            a(f"v_and_b32 {R(t+4)}, 0xb0, {R(chain.vL16)}")
            wait_flags(a, t, t + 4, S(chain.sF1), 1)
        if n == 28:
            chain.kv_dma(a, 'k', '')
            if w == 3:
                a(f"v_mov_b32 {R(chain.vT)}, 1")
                a(f"s_lshl_b32 {S(sT0)}, {S(sH)}, 7"); a(f"s_add_u32 {S(sT0)}, {S(sT0)}, {WS_FLAG + F_LD}")
                a("s_mov_b64 exec, 1")
                a(f"buffer_store_dword {R(chain.vT)}, {R(chain.vL16)}, {S(sWS,4)}, {S(sT0)} offen sc1")
                a("s_mov_b64 exec, -1")
    chain.chain_load_weights(a, cfg, hook)
    if diag:
        a("s_memrealtime s[90:91]"); a("s_waitcnt lgkmcnt(0)"); a("s_mov_b32 s97, s84")
    if diag: a("s_memrealtime s[98:99]"); a("s_memtime s[94:95]")
    if not cfg.get('slow'):
        a(f"s_cmp_lt_u32 {S(chain.sFast)}, 32"); a("s_cbranch_scc1 L_chain_slow")
        chain.chain_loop(a, cfg, '', done)
    a.label("L_chain_slow")
    chain.chain_loop(a, dict(cfg, diag=None) if not cfg.get('slow') else cfg, ' sc1', done)
    a.label("L_t1")
    workers.role_t1(a, cfg, done)
    a.label("L_glu")
    a(f"s_cmp_ge_u32 {S(sH)}, 30"); a("s_cbranch_scc1 L_exit")
    if cfg.get('gludly'):
        wait_all_tickets(a, 1, 2)
        a("v_mov_b32 v2, 0"); a(f"s_mov_b32 {S(sT2)}, {WS_FLAG + F_T1}")
        wait_flags(a, 1, 2, S(sT2), 1, sleep=16)
    a(f"s_cmp_ge_u32 {S(sH)}, 22"); a("s_cbranch_scc1 L_t3")
    workers.role_t2(a, cfg, done)
    a.label("L_t3")
    workers.role_t3(a, cfg, done)
    a.label("L_p3")
    p3.p3_setup(a, cfg)
    p3.p3_consts(a, cfg)
    if diag: a("s_memrealtime s[98:99]")
    if not cfg.get('slow'):
        a(f"s_cmp_lt_u32 {S(workers.sX7)}, 32"); a("s_cbranch_scc1 L_p3_slow")
        p3.p3_loop(a, cfg, '', done)
    a.label("L_p3_slow")
    p3.p3_loop(a, cfg, ' sc1', done)
    if diag:
        a.label("L_done")
        a("s_nop 7"); a("s_nop 7")
        a("s_memrealtime s[100:101]"); a("s_memtime s[92:93]"); a("s_waitcnt lgkmcnt(0)"); a("s_sub_u32 s92, s92, s94")
        a(f"s_lshl_b32 {S(sT0)}, {S(sG)}, 5"); a(f"s_add_u32 {S(sT0)}, {S(sT0)}, {S(sH)}")
        a(f"s_lshl_b32 {S(sT0)}, {S(sT0)}, 2"); a(f"s_add_u32 {S(sT0)}, {S(sT0)}, {S(sW)}"); a(f"s_lshl_b32 {S(sT0)}, {S(sT0)}, 8")
        a(f"s_add_u32 {S(sT0)}, {S(sT0)}, {WS_DBG}")
        a("v_mov_b32 v13, 0")
        a(f"s_cmp_eq_u32 {S(sG)}, 0"); a("s_cselect_b32 s84, s97, s84")
        for k, s in enumerate([96, 98, 100, chain.sR1, chain.sR2, 92, sCnt, 84, 86, 88, 90, 70, 71, 72, 73, 74, 75, 76, 77]):
            a(f"v_mov_b32 v12, s{s}")
            a(f"buffer_store_dword v12, v13, {S(sWS,4)}, {S(sT0)} offen offset:{128+4*k}")
        for e in range(8):
            Le = a.newlabel('cal')
            a("s_memrealtime s[40:41]"); a("s_waitcnt lgkmcnt(0)")
            a.label(Le)
            a("s_memrealtime s[42:43]"); a("s_memtime s[44:45]"); a("s_waitcnt lgkmcnt(0)")
            a("s_cmp_eq_u32 s40, s42"); a(f"s_cbranch_scc1 {Le}")
            a("v_mov_b32 v12, s42"); a(f"buffer_store_dword v12, v13, {S(sWS,4)}, {S(sT0)} offen offset:{48+8*e}")
            a("v_mov_b32 v12, s44"); a(f"buffer_store_dword v12, v13, {S(sWS,4)}, {S(sT0)} offen offset:{52+8*e}")
    a.label("L_exit")
    a("s_endpgm")
    a.label("L_end")
    body = a.finish(cfg.get('verbose'))
    hdr = HEAD + f"""; @launch grid=(256,1,1) block=(256,1,1) lds=163840
.amdgcn_target "amdgcn-amd-amdhsa--gfx950"
.text
.globl {NAME}
.p2align 8
.type {NAME},@function
{NAME}:
"""
    tail = f""".section .rodata,"a"
.p2align 6
.amdhsa_kernel {NAME}
  .amdhsa_next_free_vgpr 512
  .amdhsa_next_free_sgpr 102
  .amdhsa_accum_offset 256
  .amdhsa_group_segment_fixed_size 0
  .amdhsa_kernarg_size 112
  .amdhsa_user_sgpr_count 2
  .amdhsa_user_sgpr_kernarg_segment_ptr 1
  .amdhsa_system_sgpr_workgroup_id_x 1
.end_amdhsa_kernel
"""
    return hdr + body + tail

DEF = dict(nsx=4, bqa=9, h2a=3, h1=[7,2,3], ntc=1, gludly=1, sync=0, pf=0, p3early=1)
if __name__ == '__main__':
    cfg = dict(DEF); cfg.update(eval(sys.argv[2]) if len(sys.argv) > 2 else {})
    open(sys.argv[1], 'w').write(build(cfg))
```

```python
import sys
from common import *
import chain, workers, p3

NAME = 'recurrent_scan__memory_aug_recurrent_mem_tr__glu_gated_bilinear__prompt_kernel'
HEAD = open('recurrent_scan__memory_aug_recurrent_mem_tr__glu_gated_bilinear__prompt.s.ref').read().split('; Override launch')[0]

def build(cfg):
    a = Asm()
    diag = cfg.get('diag')
    a("s_cmp_ge_u32 s2, 256"); a("s_cbranch_scc1 L_exit")
    if diag: a("s_memrealtime s[96:97]")
    srd_load(a, [(sWS, 'ws'), (sDBG, 'dbg')])
    a("v_lshrrev_b32 v1, 6, v0"); a(f"v_readfirstlane_b32 {S(sW)}, v1")
    a("v_and_b32 v0, 63, v0")
    a(f"s_mov_b32 {S(sCnt)}, 0")
    a(f"s_getreg_b32 {S(sG)}, hwreg(HW_REG_XCC_ID)"); a(f"s_and_b32 {S(sG)}, {S(sG)}, 7")
    if cfg.get('fakexcc') == 1: a(f"s_lshr_b32 {S(sG)}, s2, 5")
    if cfg.get('fakexcc') == 2:
        a(f"s_lshr_b32 {S(sG)}, s2, 4"); a(f"s_min_u32 {S(sG)}, {S(sG)}, 7")
    a("v_mov_b32 v2, 0")
    a(f"s_cmp_lg_u32 {S(sW)}, 0"); a("s_cbranch_scc1 L_code")
    a("v_lshlrev_b32 v1, 2, v0")
    a(f"s_lshl_b32 {S(sT0)}, s2, 8"); a(f"s_add_u32 {S(sT0)}, {S(sT0)}, {WS_FLAG}")
    a(f"buffer_store_dword v2, v1, {S(sWS,4)}, {S(sT0)} offen sc1")
    a("v_mov_b32 v1, 1"); a(f"s_lshl_b32 {S(sT0)}, {S(sG)}, 5"); a(f"v_mov_b32 v3, {S(sT0)}")
    a("s_waitcnt vmcnt(0)")
    a("s_mov_b64 exec, 1")
    a(f"buffer_atomic_add v1, v3, {S(sDBG,4)}, 0 offen sc0 sc1")
    a("s_waitcnt vmcnt(0)")
    a("ds_write_b32 v2, v1")
    a("s_mov_b64 exec, -1")
    a("s_waitcnt lgkmcnt(0)")
    a("s_branch L_tk")
    a.label("L_code")
    if cfg.get('codepf', 1):
        a("s_getpc_b64 s[40:41]")
        a.label("L_pc")
        a("s_mov_b32 s42, L_end-L_pc-4")
        a("s_lshr_b32 s44, s2, 3"); a("s_and_b32 s44, s44, 3"); a("s_mul_i32 s44, s44, 3"); a(f"s_add_u32 s44, s44, {S(sW)}")
        a("s_sub_u32 s44, s44, 1"); a("s_lshl_b32 s44, s44, 13")
        a("v_lshlrev_b32 v3, 7, v0"); a("v_add_u32 v3, s44, v3")
        a("v_min_u32 v3, s42, v3")
        a("v_mov_b32 v5, s41"); a("v_add_co_u32 v4, vcc, s40, v3"); a("v_addc_co_u32 v5, vcc, 0, v5, vcc")
        a("global_load_dword v3, v[4:5], off")
        a("s_waitcnt vmcnt(0)")
    a.label("L_tk")
    a("s_barrier")
    a("ds_read_b32 v1, v2"); a("s_waitcnt lgkmcnt(0)")
    a(f"v_readfirstlane_b32 {S(sH)}, v1")
    a("s_barrier")
    a(f"s_cmp_lt_u32 {S(sH)}, 32"); a("s_cbranch_scc1 L_role")
    wait_all_tickets(a, 1, 2)
    sR, sX, sCn = 40, 41, 42
    a(f"s_sub_u32 {S(sR)}, {S(sH)}, 32")
    for x in range(7):
        a(f"v_readlane_b32 {S(sCn)}, v1, {x}"); a(f"s_max_u32 {S(sCn)}, {S(sCn)}, 32"); a(f"s_sub_u32 {S(sCn)}, {S(sCn)}, 32")
        a(f"s_cmp_gt_u32 {S(sG)}, {x}"); a(f"s_cselect_b32 {S(sCn)}, {S(sCn)}, 0"); a(f"s_add_u32 {S(sR)}, {S(sR)}, {S(sCn)}")
    for x in range(8):
        a(f"v_readlane_b32 {S(sCn)}, v1, {x}"); a(f"s_min_u32 {S(sCn)}, {S(sCn)}, 32")
        a(f"s_mov_b32 {S(sG)}, {x}"); a(f"s_add_u32 {S(sH)}, {S(sCn)}, {S(sR)}")
        a(f"s_cmp_lt_u32 {S(sH)}, 32"); a("s_cbranch_scc1 L_role")
        a(f"s_sub_u32 {S(sR)}, {S(sH)}, 32")
    a("s_branch L_exit")
    a.label("L_role")
    if diag:
        for q in list(range(84, 92)) + list(range(66, 78)): a(f"s_mov_b32 s{q}, 0")
    rstamp(a, cfg, 0)
    a(f"s_cmp_ge_u32 {S(sG)}, 4"); a("s_cbranch_scc1 L_p3")
    a(f"s_cmp_eq_u32 {S(sG)}, 3"); a("s_cbranch_scc1 L_glu")
    a(f"s_cmp_lg_u32 {S(sG)}, 0"); a("s_cbranch_scc1 L_t1")
    done = "L_done" if diag else "L_exit"
    m0 = chain.chain_setup(a, cfg)
    chain.chain_init_buffers(a, cfg, m0, ' sc1')
    def hook(n, w):
        t = chain.O(6)
        if n == 6 + w:
            wait_all_tickets(a, t, t + 1)
            a(f"v_readlane_b32 {S(chain.sFast)}, {R(t)}, 0")
            if w == 0:
                a(f"v_mov_b32 {R(t+1)}, 0"); a(f"v_mov_b32 {R(t)}, 1")
                a(f"s_lshl_b32 {S(sT0)}, {S(sH)}, 2"); a(f"s_add_u32 {S(sT0)}, {S(sT0)}, {WS_FLAG + F_RDY}")
                a("s_mov_b64 exec, 1")
                a(f"buffer_store_dword {R(t)}, {R(t+1)}, {S(sWS,4)}, {S(sT0)} offen sc1")
                a("s_mov_b64 exec, -1")
        if n == 22 and w == 1:
            a(f"v_and_b32 {R(t+4)}, 0x70, {R(chain.vL16)}"); a(f"s_mov_b32 {S(sT2)}, {WS_FLAG + F_RDY}")
            wait_flags(a, t, t + 4, S(sT2), 1, width=4)
        if n == 23:
            a(f"s_lshl_b32 {S(sT2)}, {S(sW)}, 11"); a(f"s_add_u32 {S(sT1)}, {S(sT2)}, {S(chain.sH1L)}"); a(f"s_add_u32 {S(sT3)}, {S(sT1)}, {512*KB}")
            for so in (sT1, sT3):
                for q in (0, 1): a(f"buffer_load_dwordx4 {R(t,4)}, {R(chain.vL16)}, {S(sWS,4)}, {S(so)} offen offset:{q*1024} sc1")
            a(f"s_lshl_b32 {S(sT1)}, {S(sH)}, 2"); a(f"s_add_u32 {S(sT1)}, {S(sT1)}, {S(sW)}"); a(f"s_lshl_b32 {S(sT1)}, {S(sT1)}, 10"); a(f"s_add_u32 {S(sT1)}, {S(sT1)}, {WS_MEMR}")
            a(f"buffer_load_dwordx4 {R(t,4)}, {R(chain.vL16)}, {S(sWS,4)}, {S(sT1)} offen sc1")
        if n == 27 and w == 2 and not cfg.get('noflag'):
            a(f"v_and_b32 {R(t+4)}, 0xb0, {R(chain.vL16)}")
            wait_flags(a, t, t + 4, S(chain.sF1), 1)
        if n == 28:
            chain.kv_dma(a, 'k', '')
            if w == 3:
                a(f"v_mov_b32 {R(chain.vT)}, 1")
                a(f"s_lshl_b32 {S(sT0)}, {S(sH)}, 7"); a(f"s_add_u32 {S(sT0)}, {S(sT0)}, {WS_FLAG + F_LD}")
                a("s_mov_b64 exec, 1")
                a(f"buffer_store_dword {R(chain.vT)}, {R(chain.vL16)}, {S(sWS,4)}, {S(sT0)} offen sc1")
                a("s_mov_b64 exec, -1")
    chain.chain_load_weights(a, cfg, hook)
    if diag:
        a("s_memrealtime s[90:91]"); a("s_waitcnt lgkmcnt(0)"); a("s_mov_b32 s97, s84")
    if diag: a("s_memrealtime s[98:99]"); a("s_memtime s[94:95]")
    if not cfg.get('slow'):
        a(f"s_cmp_lt_u32 {S(chain.sFast)}, 32"); a("s_cbranch_scc1 L_chain_slow")
        chain.chain_loop(a, cfg, '', done)
    a.label("L_chain_slow")
    chain.chain_loop(a, dict(cfg, diag=None) if not cfg.get('slow') else cfg, ' sc1', done)
    a.label("L_t1")
    workers.role_t1(a, cfg, done)
    a.label("L_glu")
    a(f"s_cmp_ge_u32 {S(sH)}, 30"); a("s_cbranch_scc1 L_exit")
    if cfg.get('gludly'):
        wait_all_tickets(a, 1, 2)
        a("v_mov_b32 v2, 0"); a(f"s_mov_b32 {S(sT2)}, {WS_FLAG + F_T1}")
        wait_flags(a, 1, 2, S(sT2), 1, sleep=16)
    a(f"s_cmp_ge_u32 {S(sH)}, 22"); a("s_cbranch_scc1 L_t3")
    workers.role_t2(a, cfg, done)
    a.label("L_t3")
    workers.role_t3(a, cfg, done)
    a.label("L_p3")
    p3.p3_setup(a, cfg)
    p3.p3_consts(a, cfg)
    if diag: a("s_memrealtime s[98:99]")
    if not cfg.get('slow'):
        a(f"s_cmp_lt_u32 {S(workers.sX7)}, 32"); a("s_cbranch_scc1 L_p3_slow")
        p3.p3_loop(a, cfg, '', done)
    a.label("L_p3_slow")
    p3.p3_loop(a, cfg, ' sc1', done)
    if diag:
        a.label("L_done")
        a("s_nop 7"); a("s_nop 7")
        a("s_memrealtime s[100:101]"); a("s_memtime s[92:93]"); a("s_waitcnt lgkmcnt(0)"); a("s_sub_u32 s92, s92, s94")
        a(f"s_lshl_b32 {S(sT0)}, {S(sG)}, 5"); a(f"s_add_u32 {S(sT0)}, {S(sT0)}, {S(sH)}")
        a(f"s_lshl_b32 {S(sT0)}, {S(sT0)}, 2"); a(f"s_add_u32 {S(sT0)}, {S(sT0)}, {S(sW)}"); a(f"s_lshl_b32 {S(sT0)}, {S(sT0)}, 8")
        a(f"s_add_u32 {S(sT0)}, {S(sT0)}, {WS_DBG}")
        a("v_mov_b32 v13, 0")
        a(f"s_cmp_eq_u32 {S(sG)}, 0"); a("s_cselect_b32 s84, s97, s84")
        for k, s in enumerate([96, 98, 100, chain.sR1, chain.sR2, 92, sCnt, 84, 86, 88, 90, 70, 71, 72, 73, 74, 75, 76, 77]):
            a(f"v_mov_b32 v12, s{s}")
            a(f"buffer_store_dword v12, v13, {S(sWS,4)}, {S(sT0)} offen offset:{128+4*k}")
        if cfg.get('dbgout'):
            a("s_sub_u32 s40, s100, s96"); a("s_sub_u32 s41, s98, s96"); a("s_sub_u32 s42, s84, s96"); a("s_sub_u32 s43, s90, s96")
            a(f"s_min_u32 s44, {S(sG)}, 4"); a("s_lshl_b32 s44, s44, 2"); a("s_add_u32 s44, s44, 4")
            a("s_mov_b64 exec, 1")
            a("v_mov_b32 v12, s40"); a(f"buffer_atomic_umax v12, v13, {S(sDBG,4)}, s44 offen sc1")
            a("s_add_u32 s44, s44, 32")
            a(f"s_cmp_eq_u32 {S(sG)}, 0"); a("s_cselect_b32 s43, s41, s43")
            a(f"s_cmp_ge_u32 {S(sG)}, 4"); a("s_cselect_b32 s43, s41, s43")
            a("v_mov_b32 v12, s43"); a(f"buffer_atomic_umax v12, v13, {S(sDBG,4)}, s44 offen sc1")
            a("v_mov_b32 v12, s42"); a(f"buffer_atomic_umax v12, v13, {S(sDBG,4)}, 0 offen offset:24 sc1")
            a(f"s_cmp_eq_u32 {S(sG)}, 0"); a("s_cselect_b32 s92, s92, 0")
            a("v_mov_b32 v12, s92"); a(f"buffer_atomic_umax v12, v13, {S(sDBG,4)}, 0 offen offset:28 sc1")
            a("s_mov_b64 exec, -1")
            a("s_branch L_exit")
        for e in range(8):
            Le = a.newlabel('cal')
            a("s_memrealtime s[40:41]"); a("s_waitcnt lgkmcnt(0)")
            a.label(Le)
            a("s_memrealtime s[42:43]"); a("s_memtime s[44:45]"); a("s_waitcnt lgkmcnt(0)")
            a("s_cmp_eq_u32 s40, s42"); a(f"s_cbranch_scc1 {Le}")
            a("v_mov_b32 v12, s42"); a(f"buffer_store_dword v12, v13, {S(sWS,4)}, {S(sT0)} offen offset:{48+8*e}")
            a("v_mov_b32 v12, s44"); a(f"buffer_store_dword v12, v13, {S(sWS,4)}, {S(sT0)} offen offset:{52+8*e}")
    a.label("L_exit")
    a("s_endpgm")
    a.label("L_end")
    body = a.finish(cfg.get('verbose'))
    hdr = HEAD + f"""; @launch grid=(256,1,1) block=(256,1,1) lds=163840
.amdgcn_target "amdgcn-amd-amdhsa--gfx950"
.text
.globl {NAME}
.p2align 8
.type {NAME},@function
{NAME}:
"""
    tail = f""".section .rodata,"a"
.p2align 6
.amdhsa_kernel {NAME}
  .amdhsa_next_free_vgpr 512
  .amdhsa_next_free_sgpr 102
  .amdhsa_accum_offset 256
  .amdhsa_group_segment_fixed_size 0
  .amdhsa_kernarg_size 112
  .amdhsa_user_sgpr_count 2
  .amdhsa_user_sgpr_kernarg_segment_ptr 1
  .amdhsa_system_sgpr_workgroup_id_x 1
.end_amdhsa_kernel
"""
    return hdr + body + tail

DEF = dict(nsx=4, bqa=9, h2a=3, h1=[7,2,3], ntc=1, gludly=1, sync=0, pf=0, p3early=1)
if __name__ == '__main__':
    cfg = dict(DEF); cfg.update(eval(sys.argv[2]) if len(sys.argv) > 2 else {})
    open(sys.argv[1], 'w').write(build(cfg))
```

```python
from common import *
from workers import *

GS = 8448
JS = 4 * GS
RSX = 288
L_K, L_V, L_Q, L_KM, L_VM = 0, 8192, 16384, 24576, 28672

def p3_setup(a, cfg):
    srd_load(a, [(sA, 'x'), (sB, 'Wo'), (sC_, 'out'), (sD, 'Wq'), (sE, 'Wv'), (56, 'Wk'), (60, 'wd')])
    base_setup(a)
    layernorm(a, cfg)
    a(f"v_readlane_b32 {S(sX7)}, {R(vC3)}, {S(sG)}")
    sKvm, sRd = sX1, sX2
    a(f"s_sub_u32 {S(sT2)}, {S(sG)}, 4")
    a(f"s_lshl_b32 {S(sT0)}, {S(sH)}, 21"); a(f"s_lshl_b32 {S(sT1)}, {S(sT2)}, 15"); a(f"s_add_u32 {S(sT0)}, {S(sT0)}, {S(sT1)}")
    a(f"s_mul_i32 {S(sT1)}, {S(sW)}, 6144"); a(f"s_add_u32 {S(sSrc)}, {S(sT0)}, {S(sT1)}"); a(f"s_add_u32 {S(sSrc)}, {S(sSrc)}, {WS_HD}")
    a(f"s_lshl_b32 {S(sT1)}, {S(sW)}, 10"); a(f"s_add_u32 {S(sT0)}, {S(sT0)}, {S(sT1)}"); a(f"s_add_u32 {S(sKvm)}, {S(sT0)}, {WS_HD + R_M}")
    a(f"s_lshl_b32 {S(sT0)}, {S(sH)}, 2"); a(f"s_add_u32 {S(sT0)}, {S(sT0)}, {S(sW)}"); a(f"s_mul_i32 {S(sT0)}, {S(sT0)}, {GS}")
    a(f"s_lshl_b32 {S(sT1)}, {S(sT2)}, 22"); a(f"s_add_u32 {S(sT0)}, {S(sT0)}, {S(sT1)}"); a(f"s_add_u32 {S(sRd)}, {S(sT0)}, {WS_P3}")
    def t1wait():
        a(f"s_lshl_b32 {S(sT2)}, {S(sH)}, 7"); a(f"s_add_u32 {S(sT2)}, {S(sT2)}, {WS_FLAG + F_LD}"); a(f"v_mov_b32 {R(vC1)}, 0")
        wait_flags(a, vC0, vC1, S(sT2), 1, sleep=16)
    Lw = a.newlabel('p3w')
    a(f"s_cmp_lt_u32 {S(sG)}, {4 + cfg.get('p3early', 0)}"); a(f"s_cbranch_scc1 {Lw}")
    t1wait()
    a.label(Lw)
    rstamp(a, cfg, 2)
    t0, t1, t2 = vC0, vC1, vC2
    a(f"v_lshrrev_b32 {R(t0)}, 4, {R(vLane)}")
    a(f"v_lshlrev_b32 {R(t1)}, 1, {R(t0)}"); a(f"v_and_b32 {R(t2)}, 15, {R(vLane)}"); a(f"v_xor_b32 {R(t1)}, {R(t1)}, {R(t2)}")
    a(f"s_lshl_b32 {S(sT0)}, {S(sW)}, 14"); a(f"s_lshl_b32 {S(sT1)}, {S(sH)}, 17"); a(f"s_add_u32 {S(sT0)}, {S(sT0)}, {S(sT1)}")
    a(f"v_lshlrev_b32 {R(t0)}, 10, {R(t0)}"); a(f"v_lshl_add_u32 {R(t0)}, {R(t1)}, 4, {R(t0)}")
    a(f"v_add_u32 {R(vA0)}, {S(sT0)}, {R(t0)}"); a(f"v_xor_b32 {R(vA1)}, 128, {R(vA0)}")
    a(f"v_lshrrev_b32 {R(t0)}, 2, {R(vLane)}")
    a(f"v_and_b32 {R(t1)}, 7, {R(t0)}")
    a(f"v_bfe_u32 {R(t2)}, {R(vLane)}, 1, 1")
    a(f"s_and_b32 {S(sT0)}, {S(sW)}, 2"); a(f"s_lshl_b32 {S(sT0)}, {S(sT0)}, 1")
    a(f"v_add_u32 {R(t2)}, {S(sT0)}, {R(t2)}"); a(f"v_xor_b32 {R(t1)}, {R(t1)}, {R(t2)}")
    a(f"v_lshlrev_b32 {R(t0)}, 8, {R(t0)}"); a(f"v_lshl_add_u32 {R(t0)}, {R(t1)}, 5, {R(t0)}")
    a(f"v_and_b32 {R(t1)}, 1, {R(vLane)}"); a(f"v_lshl_add_u32 {R(vB0)}, {R(t1)}, 4, {R(t0)}")
    a(f"v_xor_b32 {R(vB1)}, 64, {R(vB0)}")
    a(f"v_add_u32 {R(vB2)}, 65536, {R(vB0)}"); a(f"v_add_u32 {R(vB3)}, 65536, {R(vB1)}")
    slabs = [(kc, aa) for aa in range(4) for kc in (0, 1)]
    def src(n, i):
        kc, aa = slabs[n]
        return (vA0 if (i & 1) == 0 else vA1), sB, f"s_mov_b32 {S(sT0)}, {(64*kc + 4*i)*1024 + aa*256}"
    def reads(n, base):
        kc, aa = slabs[n]
        for nup in range(4):
            ad = [vB0, vB1, vB2, vB3][(nup >> 1) + (2 if base >= 65536 else 0)]
            for kb in (0, 1):
                d = 256 + 16 * (4 * aa + nup) + 4 * (2 * kc + kb)
                for u in (0, 1):
                    a(f"ds_read_b64_tr_b16 {R(d+2*u,2)}, {R(ad)} offset:{(base & 65535) + (32*kb + 16*u)*256 + 8*(nup & 1)}")
    slab_loader(a, 8, 8, 0, sMb, src, reads)
    t1wait()
    for i in range(4): a(f"v_mov_b32 {R(36+i)}, 0")
    Ls = a.newlabel('p3cs'); Le = a.newlabel('p3ce')
    if not cfg.get('slow'):
        a(f"s_cmp_lt_u32 {S(sX7)}, 32"); a(f"s_cbranch_scc1 {Ls}")
    for sc in (('', ' sc1') if not cfg.get('slow') else (' sc1',)):
        for sg in (0, 1):
            for hf in (0, 1):
                a(f"s_add_u32 {S(sT0)}, {S(sRd)}, {sg*2*MB + hf*4096}")
                for q in range(4): a(f"buffer_store_dwordx4 {R(36,4)}, {R(vL16)}, {S(sWS,4)}, {S(sT0)} offen offset:{q*1024}{sc}")
        if sc == '':
            a(f"s_branch {Le}"); a.label(Ls)
    a.label(Le)
    a("s_waitcnt vmcnt(0)"); a("s_barrier")
    a(f"s_lshl_b32 {S(sT0)}, {S(sG)}, 5"); a(f"s_add_u32 {S(sT0)}, {S(sT0)}, {S(sH)}"); a(f"s_lshl_b32 {S(sT0)}, {S(sT0)}, 2")
    a(f"s_add_u32 {S(sT0)}, {S(sT0)}, {WS_FLAG + F_RDY}")
    Lq = a.newlabel('p3q')
    a(f"s_cmp_lg_u32 {S(sW)}, 0"); a(f"s_cbranch_scc1 {Lq}")
    post_flag(a, vC0, vOne, S(sT0), 1)
    a.label(Lq)


vQa, vKa, vKW, vKM, vVMw, vPS, vXO, vF1, vVMr, vGO = vA0, vA1, vA2, vA3, vB0, vB1, vB2, vB3, vC4, 254
SEL, CM, QF, KF, VF, SX, SMr, PX, PM, KMF, VM, OD, OF, AC, LD, XG = 16, 20, 28, 44, 76, 108, 116, 120, 124, 128, 144, 152, 184, 200, 216, 248

def p3_consts(a, cfg):
    g, c, t0, t1 = 32, 33, 34, 35
    a(f"v_lshrrev_b32 {R(g)}, 4, {R(vLane)}"); a(f"v_and_b32 {R(c)}, 15, {R(vLane)}")
    a(f"s_and_b32 {S(sT2)}, {S(sW)}, 1")
    a(f"s_lshl_b32 {S(sT0)}, {S(sT2)}, 12"); a(f"v_add_u32 {R(vQa)}, {S(sT0)}, {R(vL16)}")
    a(f"v_lshrrev_b32 {R(t0)}, 2, {R(c)}"); a(f"v_and_b32 {R(t1)}, 1, {R(c)}"); a(f"v_lshl_add_u32 {R(t0)}, {R(t0)}, 1, {R(t1)}")
    a(f"v_bfe_u32 {R(t1)}, {R(c)}, 1, 1"); a(f"v_lshlrev_b32 {R(t1)}, 12, {R(t1)}")
    a(f"v_lshl_add_u32 {R(t1)}, {R(g)}, 8, {R(t1)}"); a(f"v_lshl_add_u32 {R(vKa)}, {R(t0)}, 4, {R(t1)}")
    a(f"v_mul_u32_u24 {R(t0)}, {RSX}, {R(t0)}"); a(f"v_lshl_add_u32 {R(vKM)}, {R(g)}, 4, {R(t0)}")
    a(f"s_lshl_b32 {S(sT0)}, {S(sW)}, 6")
    a(f"v_mul_u32_u24 {R(t0)}, {2*RSX}, {R(g)}"); a(f"v_lshl_add_u32 {R(t0)}, {R(c)}, 2, {R(t0)}"); a(f"v_add_u32 {R(vKW)}, {S(sT0)}, {R(t0)}")
    a(f"v_lshlrev_b32 {R(vVMr)}, 3, {R(vLane)}")
    a(f"s_lshl_b32 {S(sT0)}, {S(sW)}, 9"); a(f"v_add_u32 {R(vVMw)}, {S(sT0)}, {R(vVMr)}")
    a(f"v_mul_u32_u24 {R(t0)}, {GS}, {R(g)}"); a(f"v_lshl_add_u32 {R(vPS)}, {R(c)}, 4, {R(t0)}")
    a(f"v_and_b32 {R(vF1)}, 3, {R(vLane)}"); a(f"v_lshlrev_b32 {R(vF1)}, 4, {R(vF1)}")
    a(f"s_lshl_b32 {S(sT0)}, {S(sT2)}, 4"); a(f"v_add_u32 {R(t0)}, {S(sT0)}, {R(c)}")
    a(f"v_lshlrev_b32 {R(t1)}, 1, {R(g)}"); a(f"v_sub_u32 {R(t0)}, {R(t0)}, {R(t1)}")
    a(f"v_mov_b32 {R(t1)}, {f2u(-1e30):#x}")
    for tp in (0, 1):
        for i in range(4):
            a(f"v_cmp_gt_i32 vcc, {8*tp + (i&1) + 16*(i>>1)}, {R(t0)}")
            a(f"v_cndmask_b32 {R(CM+4*tp+i)}, 0, {R(t1)}, vcc")
    a(f"v_and_b32 {R(t0)}, 1, {R(c)}"); a(f"v_lshlrev_b32 {R(t0)}, 4, {R(t0)}"); a(f"v_mov_b32 {R(t1)}, 0x3f80"); a(f"v_lshlrev_b32 {R(t1)}, {R(t0)}, {R(t1)}")
    a(f"v_bfe_u32 {R(t0)}, {R(c)}, 1, 2")
    for r in range(4):
        a(f"v_cmp_eq_u32 vcc, {r}, {R(t0)}"); a(f"v_cndmask_b32 {R(SEL+r)}, 0, {R(t1)}, vcc")
    a(f"v_mov_b32 {R(PM+1)}, 0"); a(f"v_mov_b32 {R(PM+2)}, 0")
    a(f"s_bfe_u32 {S(sT0)}, {S(sH)}, 0x10003"); a(f"s_lshl_b32 {S(sT0)}, {S(sT0)}, 14")
    a(f"s_bfe_u32 {S(sT1)}, {S(sH)}, 0x20001"); a(f"s_lshl_b32 {S(sT1)}, {S(sT1)}, 8"); a(f"s_add_u32 {S(sT0)}, {S(sT0)}, {S(sT1)}")
    a(f"s_lshr_b32 {S(sT1)}, {S(sH)}, 4"); a(f"s_lshl_b32 {S(sT1)}, {S(sT1)}, 7"); a(f"s_add_u32 {S(sT0)}, {S(sT0)}, {S(sT1)}")
    a(f"s_and_b32 {S(sT1)}, {S(sH)}, 1"); a(f"s_lshl_b32 {S(sT1)}, {S(sT1)}, 6"); a(f"s_add_u32 {S(sT0)}, {S(sT0)}, {S(sT1)}")
    a(f"s_lshl_b32 {S(sT1)}, {S(sW)}, 4"); a(f"s_add_u32 {S(sT0)}, {S(sT0)}, {S(sT1)}")
    a(f"v_lshlrev_b32 {R(t0)}, 10, {R(c)}"); a(f"v_lshl_add_u32 {R(t0)}, {R(g)}, 3, {R(t0)}"); a(f"v_add_u32 {R(t0)}, {S(sT0)}, {R(t0)}")
    a(f"v_mov_b32 {R(t1)}, {OOB:#x}"); a(f"v_cmp_gt_u32 vcc, 2, {R(g)}"); a(f"v_cndmask_b32 {R(vXO)}, {R(t1)}, {R(t0)}, vcc")
    a(f"s_bfe_u32 {S(sT0)}, {S(sH)}, 0x20001"); a(f"s_lshl_b32 {S(sT0)}, {S(sT0)}, 13")
    a(f"s_lshr_b32 {S(sT1)}, {S(sH)}, 4"); a(f"s_lshl_b32 {S(sT1)}, {S(sT1)}, 12"); a(f"s_add_u32 {S(sT0)}, {S(sT0)}, {S(sT1)}")
    a(f"s_and_b32 {S(sT1)}, {S(sH)}, 1"); a(f"s_lshl_b32 {S(sT1)}, {S(sT1)}, 11"); a(f"s_add_u32 {S(sT0)}, {S(sT0)}, {S(sT1)}")
    a(f"s_and_b32 {S(sT1)}, {S(sW)}, 1"); a(f"s_lshl_b32 {S(sT1)}, {S(sT1)}, 10"); a(f"s_add_u32 {S(sT0)}, {S(sT0)}, {S(sT1)}")
    a(f"s_lshr_b32 {S(sT1)}, {S(sW)}, 1"); a(f"s_lshl_b32 {S(sT1)}, {S(sT1)}, 9"); a(f"s_add_u32 {S(sT0)}, {S(sT0)}, {S(sT1)}")
    a(f"s_bfe_u32 {S(sT1)}, {S(sH)}, 0x10003"); a(f"s_lshl_b32 {S(sT1)}, {S(sT1)}, 8"); a(f"s_add_u32 {S(sT0)}, {S(sT0)}, {S(sT1)}")
    a(f"v_and_b32 {R(t0)}, 1, {R(g)}"); a(f"v_lshlrev_b32 {R(t0)}, 3, {R(t0)}"); a(f"v_lshl_add_u32 {R(t0)}, {R(c)}, 4, {R(t0)}")
    a(f"v_add_u32 {R(vGO)}, {S(sT0)}, {R(t0)}")
    sKvm, sRd, sWr, sF1, sF3, sRow = sX1, sX2, sX3, sX4, sX5, sX6
    a(f"s_sub_u32 {S(sT2)}, {S(sG)}, 4")
    a(f"s_mul_i32 {S(sT0)}, {S(sW)}, {8*JS}"); a(f"s_lshl_b32 {S(sT1)}, {S(sH)}, 8"); a(f"s_add_u32 {S(sT0)}, {S(sT0)}, {S(sT1)}")
    a(f"s_lshl_b32 {S(sT1)}, {S(sT2)}, 22"); a(f"s_add_u32 {S(sT0)}, {S(sT0)}, {S(sT1)}"); a(f"s_add_u32 {S(sWr)}, {S(sT0)}, {WS_P3}")
    a(f"s_and_b32 {S(sPar)}, {S(sT2)}, 1")
    a(f"s_lshl_b32 {S(sT0)}, {S(sH)}, 1"); a(f"s_add_u32 {S(sT0)}, {S(sT0)}, {S(sPar)}"); a(f"s_lshl_b32 {S(sT0)}, {S(sT0)}, 7")
    a(f"s_add_u32 {S(sF1)}, {S(sT0)}, {WS_FLAG + F_T1}")
    a(f"s_bfe_u32 {S(sT0)}, {S(sH)}, 0x20001"); a(f"s_lshl_b32 {S(sT0)}, {S(sT0)}, 5")
    a(f"s_lshr_b32 {S(sT1)}, {S(sH)}, 4"); a(f"s_lshl_b32 {S(sT1)}, {S(sT1)}, 1"); a(f"s_add_u32 {S(sT0)}, {S(sT0)}, {S(sT1)}")
    a(f"s_and_b32 {S(sT1)}, {S(sH)}, 1"); a(f"s_add_u32 {S(sT0)}, {S(sT0)}, {S(sT1)}"); a(f"s_lshl_b32 {S(sT0)}, {S(sT0)}, 2")
    a(f"s_lshl_b32 {S(sT1)}, {S(sPar)}, 9"); a(f"s_add_u32 {S(sT0)}, {S(sT0)}, {S(sT1)}"); a(f"s_add_u32 {S(sF3)}, {S(sT0)}, {WS_FLAG + F_T3}")
    a(f"s_lshl_b32 {S(sRow)}, {S(sT2)}, 15")
    a(f"s_lshr_b32 {S(sThr)}, {S(sT2)}, 1"); a(f"s_add_u32 {S(sThr)}, {S(sThr)}, 1")
    a(f"s_mov_b32 {S(sI)}, 0"); a(f"s_mov_b32 {S(sFlag)}, 1")
    a(f"s_mov_b32 {S(sDst)}, {f2u(128 ** -0.5 * math.log2(math.e)):#x}")
    a(f"v_and_b32 {R(t0)}, 31, {R(vLane)}"); a(f"v_lshlrev_b32 {R(t0)}, 2, {R(t0)}")
    a(f"s_lshl_b32 {S(sT2)}, {S(sG)}, 7"); a(f"s_add_u32 {S(sT2)}, {S(sT2)}, {WS_FLAG + F_RDY}")
    wait_flags(a, t1, t0, S(sT2), 1, sleep=8)


def p3_loop(a, cfg, sc, exit_label):
    sKvm, sRd, sWr, sF1, sF3, sRow = sX1, sX2, sX3, sX4, sX5, sX6
    sTag, sCc = sFlag, sDst
    def DM(d, A, B, c=None): a(f"v_mfma_f32_16x16x32_bf16 {R(d,4)}, {R(A,4)}, {R(B,4)}, {R(d,4) if c is None else c}")
    def xl(r, t, op):
        for sw in ('v_permlane16_swap_b32', 'v_permlane32_swap_b32'):
            a(f"v_mov_b32 {R(t)}, {R(r)}"); a(f"{sw} {R(r)}, {R(t)}"); a(f"{op} {R(r)}, {R(r)}, {R(t)}")
    tacc(a, cfg, None)
    L = a.newlabel('p3')
    a.label(L)
    if cfg.get('wb', 1) > 1 and not sc:
        Lw = a.newlabel('p3wb')
        a(f"s_lshl_b32 {S(sT0)}, {S(sI)}, 2"); a(f"s_add_u32 {S(sT0)}, {S(sT0)}, {S(sW)}"); a(f"s_lshl_b32 {S(sT0)}, {S(sT0)}, 5"); a(f"s_add_u32 {S(sT0)}, {S(sT0)}, {S(sH)}")
        a(f"s_cmp_lg_u32 {S(sT0)}, {15*128}"); a(f"s_cbranch_scc1 {Lw}")
        a("buffer_wbl2 sc1")
        a.label(Lw)
    wait_flags(a, vC0, vF1, S(sF1), S(sThr))
    a("s_barrier")
    a(f"s_mul_i32 {S(sT1)}, {S(sW)}, 6144"); a(f"s_mov_b32 m0, {S(sT1)}")
    for q in range(3): a(f"buffer_load_dwordx4 {R(vL16)}, {S(sWS,4)}, {S(sSrc)} offen offset:{q*1024} sc1 lds")
    a(f"s_add_u32 m0, {S(sT1)}, 3072"); a(f"s_add_u32 {S(sT0)}, {S(sSrc)}, 3072")
    for q in range(3): a(f"buffer_load_dwordx4 {R(vL16)}, {S(sWS,4)}, {S(sT0)} offen offset:{q*1024} sc1 lds")
    a(f"buffer_load_dwordx2 {R(XG,2)}, {R(vXO)}, {S(sA,4)}, {S(sRow)} offen")
    a(f"v_mov_b32 {R(vC1)}, 0")
    wait_flags(a, vC0, vC1, S(sF3), S(sThr))
    a(f"s_add_u32 {S(sT0)}, {S(sRow)}, {WS_GATE}")
    a(f"buffer_load_dwordx2 {R(XG+2,2)}, {R(vGO)}, {S(sWS,4)}, {S(sT0)} offen sc1")
    a("s_barrier")
    for k in range(4): a(f"ds_read_b128 {R(QF+4*k,4)}, {R(vQa)} offset:{L_Q + k*1024}")
    for k in range(4):
        for tp in (0, 1): a(f"ds_read_b128 {R(KF+8*k+4*tp,4)}, {R(vKa)} offset:{L_K + k*1024 + tp*128}")
    a("s_waitcnt lgkmcnt(0)")
    for k in range(4):
        for tp in (0, 1):
            DM(SX + 4 * tp, KF + 8 * k + 4 * tp, QF + 4 * k, R(CM + 4 * tp, 4) if k == 0 else None)
            a(f"ds_read_b128 {R(VF+8*k+4*tp,4)}, {R(vL16)} offset:{L_V + (2*k+tp)*1024}")
    mx, tt, mc, ls = vC0, vC1, vC2, vC3
    a(f"v_max3_f32 {R(mx)}, {R(SX)}, {R(SX+1)}, {R(SX+2)}"); a(f"v_max3_f32 {R(tt)}, {R(SX+4)}, {R(SX+5)}, {R(SX+6)}")
    a(f"v_max3_f32 {R(mx)}, {R(mx)}, {R(SX+3)}, {R(SX+7)}"); a(f"v_max_f32 {R(mx)}, {R(mx)}, {R(tt)}")
    tacc(a, cfg, 0)
    Lp = a.newlabel('p3k'); Lg = a.newlabel('p3g')
    a.label(Lp)
    a(f"buffer_load_dwordx4 {R(LD,4)}, {R(vL16)}, {S(sWS,4)}, {S(sKvm)} offen sc1")
    a(f"s_add_u32 {S(sCnt)}, {S(sCnt)}, 1"); a(f"s_cmp_ge_u32 {S(sCnt)}, {LIM}")
    a("s_waitcnt vmcnt(0)")
    a(f"s_cbranch_scc1 {Lg}")
    a(f"v_max3_u32 {R(tt)}, {R(LD)}, {R(LD+1)}, {R(LD+2)}"); a(f"v_max_u32 {R(tt)}, {R(tt)}, {R(LD+3)}")
    a(f"v_cmp_eq_u32 vcc, -1, {R(tt)}"); a(f"s_cbranch_vccz {Lg}")
    a("s_sleep 2"); a(f"s_branch {Lp}")
    a.label(Lg)
    tacc(a, cfg, 1)
    a(f"ds_write_b32 {R(vKW)}, {R(LD)} offset:{L_KM}"); a(f"ds_write_b32 {R(vKW)}, {R(LD+1)} offset:{L_KM + RSX}")
    a(f"ds_write_b64 {R(vVMw)}, {R(LD+2,2)} offset:{L_VM}")
    a("s_waitcnt lgkmcnt(0)"); a("s_barrier")
    for k in range(4): a(f"ds_read_b128 {R(KMF+4*k,4)}, {R(vKM)} offset:{L_KM + 64*k}")
    for k in range(4): a(f"ds_read_b64 {R(VM+2*k,2)}, {R(vVMr)} offset:{L_VM + 512*k}")
    for k in range(4):
        a(f"s_waitcnt lgkmcnt({7-k})"); DM(SMr, KMF + 4 * k, QF + 4 * k, '0' if k == 0 else None)
    a(f"v_max3_f32 {R(mx)}, {R(mx)}, {R(SMr)}, {R(SMr+1)}")
    xl(mx, tt, 'v_max_f32')
    a(f"v_mul_f32 {R(mc)}, {S(sCc)}, {R(mx)}")
    ev = [SX + i for i in range(8)] + [SMr, SMr + 1]
    for r in ev: a(f"v_fma_f32 {R(r)}, {R(r)}, {S(sCc)}, -{R(mc)}")
    for r in ev: a(f"v_exp_f32 {R(r)}, {R(r)}")
    a(f"v_add_f32 {R(ls)}, {R(ev[0])}, {R(ev[1])}"); a(f"v_add_f32 {R(tt)}, {R(ev[2])}, {R(ev[3])}")
    for i in range(4, 10, 2):
        a(f"v_add_f32 {R(ls)}, {R(ls)}, {R(ev[i])}"); a(f"v_add_f32 {R(tt)}, {R(tt)}, {R(ev[i+1])}")
    a(f"v_add_f32 {R(ls)}, {R(ls)}, {R(tt)}")
    xl(ls, tt, 'v_add_f32')
    a(f"v_rcp_f32 {R(ls)}, {R(ls)}")
    for r in ev: a(f"v_mul_f32 {R(r)}, {R(r)}, {R(ls)}")
    for d in range(4): cvt(a, PX + d, SX + 2 * d, SX + 2 * d + 1)
    cvt(a, PM, SMr, SMr + 1); cvt(a, PM + 3, SMr, SMr + 1)
    a("s_waitcnt lgkmcnt(0)")
    for T in range(8): DM(OD + 4 * T, VF + 4 * T, PX, '0')
    for T in range(8):
        a(f"v_mfma_f32_16x16x16_bf16 {R(OD+4*T,4)}, {R(VM+2*(T>>1),2)}, {R(PM+2*(T&1),2)}, {R(OD+4*T,4)}")
        if T >= 3:
            q = T - 3
            cvt(a, OF + 2 * q, OD + 4 * q, OD + 4 * q + 1); cvt(a, OF + 2 * q + 1, OD + 4 * q + 2, OD + 4 * q + 3)
    for q in range(5, 8):
        cvt(a, OF + 2 * q, OD + 4 * q, OD + 4 * q + 1); cvt(a, OF + 2 * q + 1, OD + 4 * q + 2, OD + 4 * q + 3)
    tacc(a, cfg, 2)
    a(f"s_mov_b32 {S(sT0)}, {S(sWr)}")
    pend = []
    for pi in range(8):
        ac = AC + 8 * (pi & 1)
        for k in range(4):
            for od in (0, 1):
                DM(ac + 4 * od, 256 + 16 * (2 * pi + od) + 4 * k, OF + 4 * k, '0' if k == 0 else None)
                if pend and 2 * k + od >= 2:
                    a(pend.pop(0))
                    if pend and not pend[0].startswith('buffer'): a(pend.pop(0))
        assert not pend
        o = OD + 4 * pi
        pend = [f"v_cvt_pk_bf16_f32 {R(o+d)}, {R(ac+2*d)}, {R(ac+2*d+1)}" for d in range(4)]
        pend += [f"v_and_or_b32 {R(o)}, {R(o)}, -2, {S(sTag)}", f"v_and_or_b32 {R(o+2)}, {R(o+2)}, -2, {S(sTag)}",
                 f"buffer_store_dwordx4 {R(o,4)}, {R(vPS)}, {S(sWS,4)}, {S(sT0)} offen{sc}", f"s_add_u32 {S(sT0)}, {S(sT0)}, {JS}"]
    for x in pend: a(x)
    tacc(a, cfg, 3)
    Lr = a.newlabel('p3r'); Lf = a.newlabel('p3f')
    a(f"s_add_u32 {S(sT1)}, {S(sRd)}, 4096")
    y = SX; ck = KF
    a.label(Lr)
    for u in range(8):
        a(f"buffer_load_dwordx4 {R(LD+4*u,4)}, {R(vL16)}, {S(sWS,4)}, {S(sRd if u < 4 else sT1)} offen offset:{(u&3)*1024} sc1")
    a(f"s_add_u32 {S(sCnt)}, {S(sCnt)}, 1"); a(f"s_cmp_ge_u32 {S(sCnt)}, {LIM}")
    for u in range(8):
        a(f"s_waitcnt vmcnt({7-u})")
        DM(y, SEL, LD + 4 * u, '0' if u == 0 else None)
        a(f"v_bitop3_b32 {R(ck+1 if u else ck)}, {R(LD+4*u)}, {R(LD+4*u+2)}, {S(sTag)} bitop3:0x7e")
        if u: a(f"v_or_b32 {R(ck)}, {R(ck)}, {R(ck+1)}")
    a(f"s_cbranch_scc1 {Lf}")
    a(f"v_and_b32 {R(ck)}, 1, {R(ck)}"); a(f"v_cmp_ne_u32 vcc, 0, {R(ck)}"); a(f"s_cbranch_vccnz {Lr}")
    a.label(Lf)
    tacc(a, cfg, 4)
    a("s_nop 4")
    t = KF + 4
    for d in (0, 1):
        cvt(a, t + 1, y + 2 * d, y + 2 * d + 1)
        a(f"v_lshlrev_b32 {R(t)}, 16, {R(t+1)}"); a(f"v_and_b32 {R(t+1)}, 0xffff0000, {R(t+1)}")
        a(f"v_lshlrev_b32 {R(t+2)}, 16, {R(XG+2+d)}"); a(f"v_and_b32 {R(t+3)}, 0xffff0000, {R(XG+2+d)}")
        a(f"v_mul_f32 {R(t)}, {R(t)}, {R(t+2)}"); a(f"v_mul_f32 {R(t+1)}, {R(t+1)}, {R(t+3)}")
        cvt(a, t + 1, t, t + 1)
        a(f"v_lshlrev_b32 {R(t)}, 16, {R(t+1)}"); a(f"v_and_b32 {R(t+1)}, 0xffff0000, {R(t+1)}")
        a(f"v_lshlrev_b32 {R(t+2)}, 16, {R(XG+d)}"); a(f"v_and_b32 {R(t+3)}, 0xffff0000, {R(XG+d)}")
        a(f"v_add_f32 {R(t)}, {R(t)}, {R(t+2)}"); a(f"v_add_f32 {R(t+1)}, {R(t+1)}, {R(t+3)}")
        cvt(a, XG + 4 + d, t, t + 1)
    a(f"buffer_store_dwordx2 {R(XG+4,2)}, {R(vXO)}, {S(sC_,4)}, {S(sRow)} offen")
    tacc(a, cfg, 5)
    a(f"s_xor_b32 {S(sWr)}, {S(sWr)}, {2*MB}"); a(f"s_xor_b32 {S(sRd)}, {S(sRd)}, {2*MB}")
    a(f"s_and_b32 {S(sT0)}, {S(sI)}, 1"); a(f"s_xor_b32 {S(sTag)}, {S(sTag)}, {S(sT0)}")
    a(f"s_add_u32 {S(sKvm)}, {S(sKvm)}, {4*REC}"); a(f"s_add_u32 {S(sSrc)}, {S(sSrc)}, {4*REC}")
    a(f"s_add_u32 {S(sRow)}, {S(sRow)}, {4*32768}"); a(f"s_add_u32 {S(sThr)}, {S(sThr)}, 2")
    a(f"s_add_u32 {S(sI)}, {S(sI)}, 1"); a(f"s_cmp_lt_u32 {S(sI)}, 16"); a(f"s_cbranch_scc1 {L}")
    if cfg.get('wb', 1) > 2 and not sc:
        a(f"s_cmp_lg_u32 {S(sW)}, 0"); a(f"s_cbranch_scc1 {exit_label}")
        a("buffer_wbl2 sc1")
    a(f"s_branch {exit_label}")
```

```python
from common import *
from workers import *

GS = 8448
JS = 4 * GS
RSX = 288
L_K, L_V, L_Q, L_KM, L_VM = 0, 8192, 16384, 24576, 28672

NG = 3

def p3_setup(a, cfg, exit_label):
    srd_load(a, [(sA, 'x'), (sB, 'Wo'), (sC_, 'out'), (sD, 'Wq'), (sE, 'Wv'), (56, 'Wk'), (60, 'wd')])
    base_setup(a)
    layernorm(a, cfg)
    L7 = a.newlabel('p3n7')
    a(f"s_cmp_lg_u32 {S(sG)}, 7"); a(f"s_cbranch_scc1 {L7}")
    a(f"s_lshl_b32 {S(sT0)}, {S(sH)}, 2"); a(f"s_add_u32 {S(sT0)}, {S(sT0)}, {S(sW)}"); a(f"s_lshl_b32 {S(sT0)}, {S(sT0)}, 15")
    a(f"v_lshlrev_b32 {R(vC0)}, 7, {R(vLane)}")
    for srd in cfg.get('pf7', [sB]):
        for q in range(4):
            a(f"s_add_u32 {S(sT1)}, {S(sT0)}, {q*8192}"); a(f"buffer_load_dword {R(vC1)}, {R(vC0)}, {S(srd,4)}, {S(sT1)} offen")
    a("s_waitcnt vmcnt(0)")
    a(f"s_branch {exit_label}")
    a.label(L7)
    a(f"v_readlane_b32 {S(sX7)}, {R(vC3)}, {S(sG)}")
    sKvm, sRd = sX1, sX2
    a(f"s_sub_u32 {S(sT2)}, {S(sG)}, 4")
    a(f"s_lshl_b32 {S(sT0)}, {S(sH)}, 21"); a(f"s_lshl_b32 {S(sT1)}, {S(sT2)}, 15"); a(f"s_add_u32 {S(sT0)}, {S(sT0)}, {S(sT1)}")
    a(f"s_mul_i32 {S(sT1)}, {S(sW)}, 6144"); a(f"s_add_u32 {S(sSrc)}, {S(sT0)}, {S(sT1)}"); a(f"s_add_u32 {S(sSrc)}, {S(sSrc)}, {WS_HD}")
    a(f"s_lshl_b32 {S(sT1)}, {S(sW)}, 10"); a(f"s_add_u32 {S(sT0)}, {S(sT0)}, {S(sT1)}"); a(f"s_add_u32 {S(sKvm)}, {S(sT0)}, {WS_HD + R_M}")
    a(f"s_lshl_b32 {S(sT0)}, {S(sH)}, 2"); a(f"s_add_u32 {S(sT0)}, {S(sT0)}, {S(sW)}"); a(f"s_mul_i32 {S(sT0)}, {S(sT0)}, {GS}")
    a(f"s_lshl_b32 {S(sT1)}, {S(sT2)}, 22"); a(f"s_add_u32 {S(sT0)}, {S(sT0)}, {S(sT1)}"); a(f"s_add_u32 {S(sRd)}, {S(sT0)}, {WS_P3}")
    def t1wait():
        a(f"s_lshl_b32 {S(sT2)}, {S(sH)}, 7"); a(f"s_add_u32 {S(sT2)}, {S(sT2)}, {WS_FLAG + F_LD}"); a(f"v_mov_b32 {R(vC1)}, 0")
        wait_flags(a, vC0, vC1, S(sT2), 1, sleep=16)
    Lw = a.newlabel('p3w')
    a(f"s_cmp_lt_u32 {S(sG)}, {4 + cfg.get('p3early', 0)}"); a(f"s_cbranch_scc1 {Lw}")
    t1wait()
    a.label(Lw)
    rstamp(a, cfg, 2)
    t0, t1, t2 = vC0, vC1, vC2
    a(f"v_lshrrev_b32 {R(t0)}, 4, {R(vLane)}")
    a(f"v_lshlrev_b32 {R(t1)}, 1, {R(t0)}"); a(f"v_and_b32 {R(t2)}, 15, {R(vLane)}"); a(f"v_xor_b32 {R(t1)}, {R(t1)}, {R(t2)}")
    a(f"s_lshl_b32 {S(sT0)}, {S(sW)}, 14"); a(f"s_lshl_b32 {S(sT1)}, {S(sH)}, 17"); a(f"s_add_u32 {S(sT0)}, {S(sT0)}, {S(sT1)}")
    a(f"v_lshlrev_b32 {R(t0)}, 10, {R(t0)}"); a(f"v_lshl_add_u32 {R(t0)}, {R(t1)}, 4, {R(t0)}")
    a(f"v_add_u32 {R(vA0)}, {S(sT0)}, {R(t0)}"); a(f"v_xor_b32 {R(vA1)}, 128, {R(vA0)}")
    a(f"v_lshrrev_b32 {R(t0)}, 2, {R(vLane)}")
    a(f"v_and_b32 {R(t1)}, 7, {R(t0)}")
    a(f"v_bfe_u32 {R(t2)}, {R(vLane)}, 1, 1")
    a(f"s_and_b32 {S(sT0)}, {S(sW)}, 2"); a(f"s_lshl_b32 {S(sT0)}, {S(sT0)}, 1")
    a(f"v_add_u32 {R(t2)}, {S(sT0)}, {R(t2)}"); a(f"v_xor_b32 {R(t1)}, {R(t1)}, {R(t2)}")
    a(f"v_lshlrev_b32 {R(t0)}, 8, {R(t0)}"); a(f"v_lshl_add_u32 {R(t0)}, {R(t1)}, 5, {R(t0)}")
    a(f"v_and_b32 {R(t1)}, 1, {R(vLane)}"); a(f"v_lshl_add_u32 {R(vB0)}, {R(t1)}, 4, {R(t0)}")
    a(f"v_xor_b32 {R(vB1)}, 64, {R(vB0)}")
    a(f"v_add_u32 {R(vB2)}, 65536, {R(vB0)}"); a(f"v_add_u32 {R(vB3)}, 65536, {R(vB1)}")
    slabs = [(kc, aa) for aa in range(4) for kc in (0, 1)]
    def src(n, i):
        kc, aa = slabs[n]
        return (vA0 if (i & 1) == 0 else vA1), sB, f"s_mov_b32 {S(sT0)}, {(64*kc + 4*i)*1024 + aa*256}"
    def reads(n, base):
        kc, aa = slabs[n]
        for nup in range(4):
            ad = [vB0, vB1, vB2, vB3][(nup >> 1) + (2 if base >= 65536 else 0)]
            for kb in (0, 1):
                d = 256 + 16 * (4 * aa + nup) + 4 * (2 * kc + kb)
                for u in (0, 1):
                    a(f"ds_read_b64_tr_b16 {R(d+2*u,2)}, {R(ad)} offset:{(base & 65535) + (32*kb + 16*u)*256 + 8*(nup & 1)}")
    slab_loader(a, 8, 8, 0, sMb, src, reads)
    t1wait()
    for i in range(4): a(f"v_mov_b32 {R(36+i)}, 0")
    Ls = a.newlabel('p3cs'); Le = a.newlabel('p3ce')
    if not cfg.get('slow'):
        a(f"s_cmp_lt_u32 {S(sX7)}, 32"); a(f"s_cbranch_scc1 {Ls}")
    for sc in (('', ' sc1') if not cfg.get('slow') else (' sc1',)):
        for sg in (0, 1):
            for hf in (0, 1):
                a(f"s_add_u32 {S(sT0)}, {S(sRd)}, {sg*2*MB + hf*4096}")
                for q in range(4): a(f"buffer_store_dwordx4 {R(36,4)}, {R(vL16)}, {S(sWS,4)}, {S(sT0)} offen offset:{q*1024}{sc}")
        if sc == '':
            a(f"s_branch {Le}"); a.label(Ls)
    a.label(Le)
    a("s_waitcnt vmcnt(0)"); a("s_barrier")
    a(f"s_lshl_b32 {S(sT0)}, {S(sG)}, 5"); a(f"s_add_u32 {S(sT0)}, {S(sT0)}, {S(sH)}"); a(f"s_lshl_b32 {S(sT0)}, {S(sT0)}, 2")
    a(f"s_add_u32 {S(sT0)}, {S(sT0)}, {WS_FLAG + F_RDY}")
    Lq = a.newlabel('p3q')
    a(f"s_cmp_lg_u32 {S(sW)}, 0"); a(f"s_cbranch_scc1 {Lq}")
    post_flag(a, vC0, vOne, S(sT0), 1)
    a.label(Lq)


vQa, vKa, vKW, vKM, vVMw, vPS, vXO, vF1, vVMr, vGO = vA0, vA1, vA2, vA3, vB0, vB1, vB2, vB3, vC4, 254
SEL, CM, QF, KF, VF, SX, SMr, PX, PM, KMF, VM, OD, OF, AC, LD, XG = 16, 20, 28, 44, 76, 108, 116, 120, 124, 128, 144, 152, 184, 200, 216, 248

def p3_consts(a, cfg):
    g, c, t0, t1 = 32, 33, 34, 35
    a(f"v_lshrrev_b32 {R(g)}, 4, {R(vLane)}"); a(f"v_and_b32 {R(c)}, 15, {R(vLane)}")
    a(f"s_and_b32 {S(sT2)}, {S(sW)}, 1")
    a(f"s_lshl_b32 {S(sT0)}, {S(sT2)}, 12"); a(f"v_add_u32 {R(vQa)}, {S(sT0)}, {R(vL16)}")
    a(f"v_lshrrev_b32 {R(t0)}, 2, {R(c)}"); a(f"v_and_b32 {R(t1)}, 1, {R(c)}"); a(f"v_lshl_add_u32 {R(t0)}, {R(t0)}, 1, {R(t1)}")
    a(f"v_bfe_u32 {R(t1)}, {R(c)}, 1, 1"); a(f"v_lshlrev_b32 {R(t1)}, 12, {R(t1)}")
    a(f"v_lshl_add_u32 {R(t1)}, {R(g)}, 8, {R(t1)}"); a(f"v_lshl_add_u32 {R(vKa)}, {R(t0)}, 4, {R(t1)}")
    a(f"v_mul_u32_u24 {R(t0)}, {RSX}, {R(t0)}"); a(f"v_lshl_add_u32 {R(vKM)}, {R(g)}, 4, {R(t0)}")
    a(f"s_lshl_b32 {S(sT0)}, {S(sW)}, 6")
    a(f"v_mul_u32_u24 {R(t0)}, {2*RSX}, {R(g)}"); a(f"v_lshl_add_u32 {R(t0)}, {R(c)}, 2, {R(t0)}"); a(f"v_add_u32 {R(vKW)}, {S(sT0)}, {R(t0)}")
    a(f"v_lshlrev_b32 {R(vVMr)}, 3, {R(vLane)}")
    a(f"s_lshl_b32 {S(sT0)}, {S(sW)}, 9"); a(f"v_add_u32 {R(vVMw)}, {S(sT0)}, {R(vVMr)}")
    a(f"v_mul_u32_u24 {R(t0)}, {GS}, {R(g)}"); a(f"v_lshl_add_u32 {R(vPS)}, {R(c)}, 4, {R(t0)}")
    a(f"v_and_b32 {R(vF1)}, 3, {R(vLane)}"); a(f"v_lshlrev_b32 {R(vF1)}, 4, {R(vF1)}")
    a(f"s_lshl_b32 {S(sT0)}, {S(sT2)}, 4"); a(f"v_add_u32 {R(t0)}, {S(sT0)}, {R(c)}")
    a(f"v_lshlrev_b32 {R(t1)}, 1, {R(g)}"); a(f"v_sub_u32 {R(t0)}, {R(t0)}, {R(t1)}")
    a(f"v_mov_b32 {R(t1)}, {f2u(-1e30):#x}")
    for tp in (0, 1):
        for i in range(4):
            a(f"v_cmp_gt_i32 vcc, {8*tp + (i&1) + 16*(i>>1)}, {R(t0)}")
            a(f"v_cndmask_b32 {R(CM+4*tp+i)}, 0, {R(t1)}, vcc")
    a(f"v_and_b32 {R(t0)}, 1, {R(c)}"); a(f"v_lshlrev_b32 {R(t0)}, 4, {R(t0)}"); a(f"v_mov_b32 {R(t1)}, 0x3f80"); a(f"v_lshlrev_b32 {R(t1)}, {R(t0)}, {R(t1)}")
    a(f"v_bfe_u32 {R(t0)}, {R(c)}, 1, 2")
    for r in range(4):
        a(f"v_cmp_eq_u32 vcc, {r}, {R(t0)}"); a(f"v_cndmask_b32 {R(SEL+r)}, 0, {R(t1)}, vcc")
    a(f"v_mov_b32 {R(PM+1)}, 0"); a(f"v_mov_b32 {R(PM+2)}, 0")
    a(f"s_bfe_u32 {S(sT0)}, {S(sH)}, 0x10003"); a(f"s_lshl_b32 {S(sT0)}, {S(sT0)}, 14")
    a(f"s_bfe_u32 {S(sT1)}, {S(sH)}, 0x20001"); a(f"s_lshl_b32 {S(sT1)}, {S(sT1)}, 8"); a(f"s_add_u32 {S(sT0)}, {S(sT0)}, {S(sT1)}")
    a(f"s_lshr_b32 {S(sT1)}, {S(sH)}, 4"); a(f"s_lshl_b32 {S(sT1)}, {S(sT1)}, 7"); a(f"s_add_u32 {S(sT0)}, {S(sT0)}, {S(sT1)}")
    a(f"s_and_b32 {S(sT1)}, {S(sH)}, 1"); a(f"s_lshl_b32 {S(sT1)}, {S(sT1)}, 6"); a(f"s_add_u32 {S(sT0)}, {S(sT0)}, {S(sT1)}")
    a(f"s_lshl_b32 {S(sT1)}, {S(sW)}, 4"); a(f"s_add_u32 {S(sT0)}, {S(sT0)}, {S(sT1)}")
    a(f"v_lshlrev_b32 {R(t0)}, 10, {R(c)}"); a(f"v_lshl_add_u32 {R(t0)}, {R(g)}, 3, {R(t0)}"); a(f"v_add_u32 {R(t0)}, {S(sT0)}, {R(t0)}")
    a(f"v_mov_b32 {R(t1)}, {OOB:#x}"); a(f"v_cmp_gt_u32 vcc, 2, {R(g)}"); a(f"v_cndmask_b32 {R(vXO)}, {R(t1)}, {R(t0)}, vcc")
    a(f"s_bfe_u32 {S(sT0)}, {S(sH)}, 0x20001"); a(f"s_lshl_b32 {S(sT0)}, {S(sT0)}, 13")
    a(f"s_lshr_b32 {S(sT1)}, {S(sH)}, 4"); a(f"s_lshl_b32 {S(sT1)}, {S(sT1)}, 12"); a(f"s_add_u32 {S(sT0)}, {S(sT0)}, {S(sT1)}")
    a(f"s_and_b32 {S(sT1)}, {S(sH)}, 1"); a(f"s_lshl_b32 {S(sT1)}, {S(sT1)}, 11"); a(f"s_add_u32 {S(sT0)}, {S(sT0)}, {S(sT1)}")
    a(f"s_and_b32 {S(sT1)}, {S(sW)}, 1"); a(f"s_lshl_b32 {S(sT1)}, {S(sT1)}, 10"); a(f"s_add_u32 {S(sT0)}, {S(sT0)}, {S(sT1)}")
    a(f"s_lshr_b32 {S(sT1)}, {S(sW)}, 1"); a(f"s_lshl_b32 {S(sT1)}, {S(sT1)}, 9"); a(f"s_add_u32 {S(sT0)}, {S(sT0)}, {S(sT1)}")
    a(f"s_bfe_u32 {S(sT1)}, {S(sH)}, 0x10003"); a(f"s_lshl_b32 {S(sT1)}, {S(sT1)}, 8"); a(f"s_add_u32 {S(sT0)}, {S(sT0)}, {S(sT1)}")
    a(f"v_and_b32 {R(t0)}, 1, {R(g)}"); a(f"v_lshlrev_b32 {R(t0)}, 3, {R(t0)}"); a(f"v_lshl_add_u32 {R(t0)}, {R(c)}, 4, {R(t0)}")
    a(f"v_add_u32 {R(vGO)}, {S(sT0)}, {R(t0)}")
    sKvm, sRd, sWr, sF1, sF3, sRow = sX1, sX2, sX3, sX4, sX5, sX6
    a(f"s_sub_u32 {S(sT2)}, {S(sG)}, 4")
    a(f"s_mul_i32 {S(sT0)}, {S(sW)}, {8*JS}"); a(f"s_lshl_b32 {S(sT1)}, {S(sH)}, 8"); a(f"s_add_u32 {S(sT0)}, {S(sT0)}, {S(sT1)}")
    a(f"s_lshl_b32 {S(sT1)}, {S(sT2)}, 22"); a(f"s_add_u32 {S(sT0)}, {S(sT0)}, {S(sT1)}"); a(f"s_add_u32 {S(sWr)}, {S(sT0)}, {WS_P3}")
    a(f"s_mov_b32 {S(sPar)}, {S(sT2)}")
    a(f"s_lshl_b32 {S(sT0)}, {S(sH)}, 8"); a(f"s_add_u32 {S(sF1)}, {S(sT0)}, {WS_FLAG + F_T1}")
    a(f"s_bfe_u32 {S(sT0)}, {S(sH)}, 0x20001"); a(f"s_lshl_b32 {S(sT0)}, {S(sT0)}, 5")
    a(f"s_lshr_b32 {S(sT1)}, {S(sH)}, 4"); a(f"s_lshl_b32 {S(sT1)}, {S(sT1)}, 1"); a(f"s_add_u32 {S(sT0)}, {S(sT0)}, {S(sT1)}")
    a(f"s_and_b32 {S(sT1)}, {S(sH)}, 1"); a(f"s_add_u32 {S(sT0)}, {S(sT0)}, {S(sT1)}"); a(f"s_lshl_b32 {S(sT0)}, {S(sT0)}, 2")
    a(f"s_add_u32 {S(sF3)}, {S(sT0)}, {WS_FLAG + F_T3}")
    a(f"s_lshl_b32 {S(sRow)}, {S(sT2)}, 15")
    a(f"s_mov_b32 {S(sI)}, 0"); a(f"s_mov_b32 {S(sFlag)}, 1")
    a(f"s_mov_b32 {S(sDst)}, {f2u(128 ** -0.5 * math.log2(math.e)):#x}")
    a(f"v_and_b32 {R(t0)}, 31, {R(vLane)}"); a(f"v_lshlrev_b32 {R(t0)}, 2, {R(t0)}")
    a(f"s_lshl_b32 {S(sT2)}, {S(sG)}, 7"); a(f"s_add_u32 {S(sT2)}, {S(sT2)}, {WS_FLAG + F_RDY}")
    wait_flags(a, t1, t0, S(sT2), 1, sleep=8)


def p3_loop(a, cfg, sc, exit_label):
    sKvm, sRd, sWr, sF1, sF3, sRow = sX1, sX2, sX3, sX4, sX5, sX6
    sTag, sCc = sFlag, sDst
    def DM(d, A, B, c=None): a(f"v_mfma_f32_16x16x32_bf16 {R(d,4)}, {R(A,4)}, {R(B,4)}, {R(d,4) if c is None else c}")
    def xl(r, t, op):
        for sw in ('v_permlane16_swap_b32', 'v_permlane32_swap_b32'):
            a(f"v_mov_b32 {R(t)}, {R(r)}"); a(f"{sw} {R(r)}, {R(t)}"); a(f"{op} {R(r)}, {R(r)}, {R(t)}")
    tacc(a, cfg, None)
    L = a.newlabel('p3')
    a.label(L)
    if cfg.get('wb', 0) > 1 and not sc:
        Lw = a.newlabel('p3wb')
        a(f"s_lshl_b32 {S(sT0)}, {S(sI)}, 2"); a(f"s_add_u32 {S(sT0)}, {S(sT0)}, {S(sW)}"); a(f"s_lshl_b32 {S(sT0)}, {S(sT0)}, 5"); a(f"s_add_u32 {S(sT0)}, {S(sT0)}, {S(sH)}")
        a(f"s_cmp_lg_u32 {S(sT0)}, {15*128}"); a(f"s_cbranch_scc1 {Lw}")
        a("buffer_wbl2 sc1")
        a.label(Lw)
    a(f"s_lshr_b32 {S(sThr)}, {S(sPar)}, 1"); a(f"s_add_u32 {S(sThr)}, {S(sThr)}, 1"); a(f"s_and_b32 {S(sT3)}, {S(sPar)}, 1")
    a(f"s_lshl_b32 {S(sT2)}, {S(sT3)}, 7"); a(f"s_add_u32 {S(sT2)}, {S(sT2)}, {S(sF1)}")
    a(f"s_lshl_b32 {S(sT3)}, {S(sT3)}, 9"); a(f"s_add_u32 {S(sT3)}, {S(sT3)}, {S(sF3)}")
    wait_flags(a, vC0, vF1, S(sT2), S(sThr))
    a("s_barrier")
    a(f"s_mul_i32 {S(sT1)}, {S(sW)}, 6144"); a(f"s_mov_b32 m0, {S(sT1)}")
    for q in range(3): a(f"buffer_load_dwordx4 {R(vL16)}, {S(sWS,4)}, {S(sSrc)} offen offset:{q*1024} sc1 lds")
    a(f"s_add_u32 m0, {S(sT1)}, 3072"); a(f"s_add_u32 {S(sT0)}, {S(sSrc)}, 3072")
    for q in range(3): a(f"buffer_load_dwordx4 {R(vL16)}, {S(sWS,4)}, {S(sT0)} offen offset:{q*1024} sc1 lds")
    a(f"buffer_load_dwordx2 {R(XG,2)}, {R(vXO)}, {S(sA,4)}, {S(sRow)} offen")
    a(f"v_mov_b32 {R(vC1)}, 0")
    wait_flags(a, vC0, vC1, S(sT3), S(sThr))
    a(f"s_add_u32 {S(sT0)}, {S(sRow)}, {WS_GATE}")
    a(f"buffer_load_dwordx2 {R(XG+2,2)}, {R(vGO)}, {S(sWS,4)}, {S(sT0)} offen sc1")
    a("s_barrier")
    for k in range(4): a(f"ds_read_b128 {R(QF+4*k,4)}, {R(vQa)} offset:{L_Q + k*1024}")
    for k in range(4):
        for tp in (0, 1): a(f"ds_read_b128 {R(KF+8*k+4*tp,4)}, {R(vKa)} offset:{L_K + k*1024 + tp*128}")
    a("s_waitcnt lgkmcnt(0)")
    for k in range(4):
        for tp in (0, 1):
            DM(SX + 4 * tp, KF + 8 * k + 4 * tp, QF + 4 * k, R(CM + 4 * tp, 4) if k == 0 else None)
            a(f"ds_read_b128 {R(VF+8*k+4*tp,4)}, {R(vL16)} offset:{L_V + (2*k+tp)*1024}")
    mx, tt, mc, ls = vC0, vC1, vC2, vC3
    a(f"v_max3_f32 {R(mx)}, {R(SX)}, {R(SX+1)}, {R(SX+2)}"); a(f"v_max3_f32 {R(tt)}, {R(SX+4)}, {R(SX+5)}, {R(SX+6)}")
    a(f"v_max3_f32 {R(mx)}, {R(mx)}, {R(SX+3)}, {R(SX+7)}"); a(f"v_max_f32 {R(mx)}, {R(mx)}, {R(tt)}")
    tacc(a, cfg, 0)
    Lp = a.newlabel('p3k'); Lg = a.newlabel('p3g')
    a.label(Lp)
    a(f"buffer_load_dwordx4 {R(LD,4)}, {R(vL16)}, {S(sWS,4)}, {S(sKvm)} offen sc1")
    a(f"s_add_u32 {S(sCnt)}, {S(sCnt)}, 1"); a(f"s_cmp_ge_u32 {S(sCnt)}, {LIM}")
    a("s_waitcnt vmcnt(0)")
    a(f"s_cbranch_scc1 {Lg}")
    a(f"v_max3_u32 {R(tt)}, {R(LD)}, {R(LD+1)}, {R(LD+2)}"); a(f"v_max_u32 {R(tt)}, {R(tt)}, {R(LD+3)}")
    a(f"v_cmp_eq_u32 vcc, -1, {R(tt)}"); a(f"s_cbranch_vccz {Lg}")
    a(f"s_sleep {cfg.get('p3sl', 2)}"); a(f"s_branch {Lp}")
    a.label(Lg)
    tacc(a, cfg, 1)
    a(f"ds_write_b32 {R(vKW)}, {R(LD)} offset:{L_KM}"); a(f"ds_write_b32 {R(vKW)}, {R(LD+1)} offset:{L_KM + RSX}")
    a(f"ds_write_b64 {R(vVMw)}, {R(LD+2,2)} offset:{L_VM}")
    a("s_waitcnt lgkmcnt(0)"); a("s_barrier")
    for k in range(4): a(f"ds_read_b128 {R(KMF+4*k,4)}, {R(vKM)} offset:{L_KM + 64*k}")
    for k in range(4): a(f"ds_read_b64 {R(VM+2*k,2)}, {R(vVMr)} offset:{L_VM + 512*k}")
    for k in range(4):
        a(f"s_waitcnt lgkmcnt({7-k})"); DM(SMr, KMF + 4 * k, QF + 4 * k, '0' if k == 0 else None)
    a(f"v_max3_f32 {R(mx)}, {R(mx)}, {R(SMr)}, {R(SMr+1)}")
    xl(mx, tt, 'v_max_f32')
    a(f"v_mul_f32 {R(mc)}, {S(sCc)}, {R(mx)}")
    ev = [SX + i for i in range(8)] + [SMr, SMr + 1]
    for r in ev: a(f"v_fma_f32 {R(r)}, {R(r)}, {S(sCc)}, -{R(mc)}")
    for r in ev: a(f"v_exp_f32 {R(r)}, {R(r)}")
    a(f"v_add_f32 {R(ls)}, {R(ev[0])}, {R(ev[1])}"); a(f"v_add_f32 {R(tt)}, {R(ev[2])}, {R(ev[3])}")
    for i in range(4, 10, 2):
        a(f"v_add_f32 {R(ls)}, {R(ls)}, {R(ev[i])}"); a(f"v_add_f32 {R(tt)}, {R(tt)}, {R(ev[i+1])}")
    a(f"v_add_f32 {R(ls)}, {R(ls)}, {R(tt)}")
    xl(ls, tt, 'v_add_f32')
    a(f"v_rcp_f32 {R(ls)}, {R(ls)}")
    for r in ev: a(f"v_mul_f32 {R(r)}, {R(r)}, {R(ls)}")
    for d in range(4): cvt(a, PX + d, SX + 2 * d, SX + 2 * d + 1)
    cvt(a, PM, SMr, SMr + 1); cvt(a, PM + 3, SMr, SMr + 1)
    a("s_waitcnt lgkmcnt(0)")
    for T in range(8): DM(OD + 4 * T, VF + 4 * T, PX, '0')
    for T in range(8):
        a(f"v_mfma_f32_16x16x16_bf16 {R(OD+4*T,4)}, {R(VM+2*(T>>1),2)}, {R(PM+2*(T&1),2)}, {R(OD+4*T,4)}")
        if T >= 3:
            q = T - 3
            cvt(a, OF + 2 * q, OD + 4 * q, OD + 4 * q + 1); cvt(a, OF + 2 * q + 1, OD + 4 * q + 2, OD + 4 * q + 3)
    for q in range(5, 8):
        cvt(a, OF + 2 * q, OD + 4 * q, OD + 4 * q + 1); cvt(a, OF + 2 * q + 1, OD + 4 * q + 2, OD + 4 * q + 3)
    tacc(a, cfg, 2)
    a(f"s_mov_b32 {S(sT0)}, {S(sWr)}")
    pend = []
    for pi in range(8):
        ac = AC + 8 * (pi & 1)
        for k in range(4):
            for od in (0, 1):
                DM(ac + 4 * od, 256 + 16 * (2 * pi + od) + 4 * k, OF + 4 * k, '0' if k == 0 else None)
                if pend and 2 * k + od >= 2:
                    a(pend.pop(0))
                    if pend and not pend[0].startswith('buffer'): a(pend.pop(0))
        assert not pend
        o = OD + 4 * pi
        pend = [f"v_cvt_pk_bf16_f32 {R(o+d)}, {R(ac+2*d)}, {R(ac+2*d+1)}" for d in range(4)]
        pend += [f"v_and_or_b32 {R(o)}, {R(o)}, -2, {S(sTag)}", f"v_and_or_b32 {R(o+2)}, {R(o+2)}, -2, {S(sTag)}",
                 f"buffer_store_dwordx4 {R(o,4)}, {R(vPS)}, {S(sWS,4)}, {S(sT0)} offen{sc}", f"s_add_u32 {S(sT0)}, {S(sT0)}, {JS}"]
    for x in pend: a(x)
    tacc(a, cfg, 3)
    Lr = a.newlabel('p3r'); Lf = a.newlabel('p3f')
    a(f"s_add_u32 {S(sT1)}, {S(sRd)}, 4096")
    y = SX; ck = KF
    a.label(Lr)
    for u in range(8):
        a(f"buffer_load_dwordx4 {R(LD+4*u,4)}, {R(vL16)}, {S(sWS,4)}, {S(sRd if u < 4 else sT1)} offen offset:{(u&3)*1024} sc1")
    a(f"s_add_u32 {S(sCnt)}, {S(sCnt)}, 1"); a(f"s_cmp_ge_u32 {S(sCnt)}, {LIM}")
    for u in range(8):
        a(f"s_waitcnt vmcnt({7-u})")
        DM(y, SEL, LD + 4 * u, '0' if u == 0 else None)
        a(f"v_bitop3_b32 {R(ck+1 if u else ck)}, {R(LD+4*u)}, {R(LD+4*u+2)}, {S(sTag)} bitop3:0x7e")
        if u: a(f"v_or_b32 {R(ck)}, {R(ck)}, {R(ck+1)}")
    a(f"s_cbranch_scc1 {Lf}")
    a(f"v_and_b32 {R(ck)}, 1, {R(ck)}"); a(f"v_cmp_ne_u32 vcc, 0, {R(ck)}"); a(f"s_cbranch_vccnz {Lr}")
    a.label(Lf)
    tacc(a, cfg, 4)
    a("s_nop 4")
    t = KF + 4
    for d in (0, 1):
        cvt(a, t + 1, y + 2 * d, y + 2 * d + 1)
        a(f"v_lshlrev_b32 {R(t)}, 16, {R(t+1)}"); a(f"v_and_b32 {R(t+1)}, 0xffff0000, {R(t+1)}")
        a(f"v_lshlrev_b32 {R(t+2)}, 16, {R(XG+2+d)}"); a(f"v_and_b32 {R(t+3)}, 0xffff0000, {R(XG+2+d)}")
        a(f"v_mul_f32 {R(t)}, {R(t)}, {R(t+2)}"); a(f"v_mul_f32 {R(t+1)}, {R(t+1)}, {R(t+3)}")
        cvt(a, t + 1, t, t + 1)
        a(f"v_lshlrev_b32 {R(t)}, 16, {R(t+1)}"); a(f"v_and_b32 {R(t+1)}, 0xffff0000, {R(t+1)}")
        a(f"v_lshlrev_b32 {R(t+2)}, 16, {R(XG+d)}"); a(f"v_and_b32 {R(t+3)}, 0xffff0000, {R(XG+d)}")
        a(f"v_add_f32 {R(t)}, {R(t)}, {R(t+2)}"); a(f"v_add_f32 {R(t+1)}, {R(t+1)}, {R(t+3)}")
        cvt(a, XG + 4 + d, t, t + 1)
    a(f"buffer_store_dwordx2 {R(XG+4,2)}, {R(vXO)}, {S(sC_,4)}, {S(sRow)} offen")
    tacc(a, cfg, 5)
    a(f"s_xor_b32 {S(sWr)}, {S(sWr)}, {2*MB}"); a(f"s_xor_b32 {S(sRd)}, {S(sRd)}, {2*MB}")
    a(f"s_and_b32 {S(sT0)}, {S(sI)}, 1"); a(f"s_xor_b32 {S(sTag)}, {S(sTag)}, {S(sT0)}")
    a(f"s_add_u32 {S(sKvm)}, {S(sKvm)}, {NG*REC}"); a(f"s_add_u32 {S(sSrc)}, {S(sSrc)}, {NG*REC}")
    a(f"s_add_u32 {S(sRow)}, {S(sRow)}, {NG*32768}"); a(f"s_add_u32 {S(sPar)}, {S(sPar)}, {NG}")
    a(f"s_add_u32 {S(sI)}, {S(sI)}, 1"); a(f"s_cmp_lt_u32 {S(sPar)}, 64"); a(f"s_cbranch_scc1 {L}")
    if cfg.get('wb', 0) > 2 and not sc:
        a(f"s_cmp_lg_u32 {S(sW)}, 0"); a(f"s_cbranch_scc1 {exit_label}")
        a("buffer_wbl2 sc1")
    a(f"s_branch {exit_label}")
```

```python
import sys
from common import *
import chain, workers, p3

NAME = 'recurrent_scan__memory_aug_recurrent_mem_tr__glu_gated_bilinear__prompt_kernel'
HEAD = open('recurrent_scan__memory_aug_recurrent_mem_tr__glu_gated_bilinear__prompt.s.ref').read().split('; Override launch')[0]

def build(cfg):
    a = Asm()
    diag = cfg.get('diag')
    a("s_cmp_ge_u32 s2, 256"); a("s_cbranch_scc1 L_exit")
    if diag: a("s_memrealtime s[96:97]")
    srd_load(a, [(sWS, 'ws'), (sDBG, 'dbg')])
    a("v_lshrrev_b32 v1, 6, v0"); a(f"v_readfirstlane_b32 {S(sW)}, v1")
    a("v_and_b32 v0, 63, v0")
    a(f"s_mov_b32 {S(sCnt)}, 0")
    a(f"s_getreg_b32 {S(sG)}, hwreg(HW_REG_XCC_ID)"); a(f"s_and_b32 {S(sG)}, {S(sG)}, 7")
    if cfg.get('gmap'):
        tab = sum(g << (4 * x) for x, g in enumerate(cfg['gmap']))
        a(f"s_lshl_b32 {S(sG)}, {S(sG)}, 2"); a(f"s_lshr_b32 {S(sG)}, {tab:#x}, {S(sG)}"); a(f"s_and_b32 {S(sG)}, {S(sG)}, 7")
    if cfg.get('fakexcc') == 1: a(f"s_lshr_b32 {S(sG)}, s2, 5")
    if cfg.get('fakexcc') == 2:
        a(f"s_lshr_b32 {S(sG)}, s2, 4"); a(f"s_min_u32 {S(sG)}, {S(sG)}, 7")
    a("v_mov_b32 v2, 0")
    a(f"s_cmp_lg_u32 {S(sW)}, 0"); a("s_cbranch_scc1 L_code")
    a("v_lshlrev_b32 v1, 2, v0")
    a(f"s_lshl_b32 {S(sT0)}, s2, 8"); a(f"s_add_u32 {S(sT0)}, {S(sT0)}, {WS_FLAG}")
    a(f"buffer_store_dword v2, v1, {S(sWS,4)}, {S(sT0)} offen sc1")
    a("v_mov_b32 v1, 1"); a(f"s_lshl_b32 {S(sT0)}, {S(sG)}, 5"); a(f"v_mov_b32 v3, {S(sT0)}")
    a("s_waitcnt vmcnt(0)")
    a("s_mov_b64 exec, 1")
    a(f"buffer_atomic_add v1, v3, {S(sDBG,4)}, 0 offen sc0 sc1")
    a("s_waitcnt vmcnt(0)")
    a("ds_write_b32 v2, v1")
    a("s_mov_b64 exec, -1")
    a("s_waitcnt lgkmcnt(0)")
    a("s_branch L_tk")
    a.label("L_code")
    if cfg.get('codepf', 1):
        a("s_getpc_b64 s[40:41]")
        a.label("L_pc")
        a("s_mov_b32 s42, L_end-L_pc-4")
        a("s_lshr_b32 s44, s2, 3"); a("s_and_b32 s44, s44, 3"); a("s_mul_i32 s44, s44, 3"); a(f"s_add_u32 s44, s44, {S(sW)}")
        a("s_sub_u32 s44, s44, 1"); a("s_lshl_b32 s44, s44, 13")
        a("v_lshlrev_b32 v3, 7, v0"); a("v_add_u32 v3, s44, v3")
        a("v_min_u32 v3, s42, v3")
        a("v_mov_b32 v5, s41"); a("v_add_co_u32 v4, vcc, s40, v3"); a("v_addc_co_u32 v5, vcc, 0, v5, vcc")
        a("global_load_dword v3, v[4:5], off")
        a("s_waitcnt vmcnt(0)")
    a.label("L_tk")
    a("s_barrier")
    a("ds_read_b32 v1, v2"); a("s_waitcnt lgkmcnt(0)")
    a(f"v_readfirstlane_b32 {S(sH)}, v1")
    a("s_barrier")
    a(f"s_cmp_lt_u32 {S(sH)}, 32"); a("s_cbranch_scc1 L_role")
    wait_all_tickets(a, 1, 2)
    sR, sX, sCn = 40, 41, 42
    a(f"s_sub_u32 {S(sR)}, {S(sH)}, 32")
    for x in range(7):
        a(f"v_readlane_b32 {S(sCn)}, v1, {x}"); a(f"s_max_u32 {S(sCn)}, {S(sCn)}, 32"); a(f"s_sub_u32 {S(sCn)}, {S(sCn)}, 32")
        a(f"s_cmp_gt_u32 {S(sG)}, {x}"); a(f"s_cselect_b32 {S(sCn)}, {S(sCn)}, 0"); a(f"s_add_u32 {S(sR)}, {S(sR)}, {S(sCn)}")
    for x in range(8):
        a(f"v_readlane_b32 {S(sCn)}, v1, {x}"); a(f"s_min_u32 {S(sCn)}, {S(sCn)}, 32")
        a(f"s_mov_b32 {S(sG)}, {x}"); a(f"s_add_u32 {S(sH)}, {S(sCn)}, {S(sR)}")
        a(f"s_cmp_lt_u32 {S(sH)}, 32"); a("s_cbranch_scc1 L_role")
        a(f"s_sub_u32 {S(sR)}, {S(sH)}, 32")
    a("s_branch L_exit")
    a.label("L_role")
    if diag:
        for q in list(range(84, 92)) + list(range(66, 78)): a(f"s_mov_b32 s{q}, 0")
    rstamp(a, cfg, 0)
    a(f"s_cmp_ge_u32 {S(sG)}, 4"); a("s_cbranch_scc1 L_p3")
    a(f"s_cmp_eq_u32 {S(sG)}, 3"); a("s_cbranch_scc1 L_glu")
    a(f"s_cmp_lg_u32 {S(sG)}, 0"); a("s_cbranch_scc1 L_t1")
    done = "L_done" if diag else "L_exit"
    m0 = chain.chain_setup(a, cfg)
    chain.chain_init_buffers(a, cfg, m0, ' sc1')
    def hook(n, w):
        t = chain.O(6)
        if n == 6 + w:
            wait_all_tickets(a, t, t + 1)
            a(f"v_readlane_b32 {S(chain.sFast)}, {R(t)}, 0")
            if w == 0:
                a(f"v_mov_b32 {R(t+1)}, 0"); a(f"v_mov_b32 {R(t)}, 1")
                a(f"s_lshl_b32 {S(sT0)}, {S(sH)}, 2"); a(f"s_add_u32 {S(sT0)}, {S(sT0)}, {WS_FLAG + F_RDY}")
                a("s_mov_b64 exec, 1")
                a(f"buffer_store_dword {R(t)}, {R(t+1)}, {S(sWS,4)}, {S(sT0)} offen sc1")
                a("s_mov_b64 exec, -1")
        if n == 22 and w == 1:
            a(f"v_and_b32 {R(t+4)}, 0x70, {R(chain.vL16)}"); a(f"s_mov_b32 {S(sT2)}, {WS_FLAG + F_RDY}")
            wait_flags(a, t, t + 4, S(sT2), 1, width=4)
        if n == 23:
            a(f"s_lshl_b32 {S(sT2)}, {S(sW)}, 11"); a(f"s_add_u32 {S(sT1)}, {S(sT2)}, {S(chain.sH1L)}"); a(f"s_add_u32 {S(sT3)}, {S(sT1)}, {512*KB}")
            for so in (sT1, sT3):
                for q in (0, 1): a(f"buffer_load_dwordx4 {R(t,4)}, {R(chain.vL16)}, {S(sWS,4)}, {S(so)} offen offset:{q*1024} sc1")
            a(f"s_lshl_b32 {S(sT1)}, {S(sH)}, 2"); a(f"s_add_u32 {S(sT1)}, {S(sT1)}, {S(sW)}"); a(f"s_lshl_b32 {S(sT1)}, {S(sT1)}, 10"); a(f"s_add_u32 {S(sT1)}, {S(sT1)}, {WS_MEMR}")
            a(f"buffer_load_dwordx4 {R(t,4)}, {R(chain.vL16)}, {S(sWS,4)}, {S(sT1)} offen sc1")
        if n == 27 and w == 2 and not cfg.get('noflag'):
            a(f"v_and_b32 {R(t+4)}, 0xb0, {R(chain.vL16)}")
            wait_flags(a, t, t + 4, S(chain.sF1), 1)
        if n == 28:
            chain.kv_dma(a, 'k', '')
            if w == 3:
                a(f"v_mov_b32 {R(chain.vT)}, 1")
                a(f"s_lshl_b32 {S(sT0)}, {S(sH)}, 7"); a(f"s_add_u32 {S(sT0)}, {S(sT0)}, {WS_FLAG + F_LD}")
                a("s_mov_b64 exec, 1")
                a(f"buffer_store_dword {R(chain.vT)}, {R(chain.vL16)}, {S(sWS,4)}, {S(sT0)} offen sc1")
                a("s_mov_b64 exec, -1")
    chain.chain_load_weights(a, cfg, hook)
    if diag:
        a("s_memrealtime s[90:91]"); a("s_waitcnt lgkmcnt(0)"); a("s_mov_b32 s97, s84")
    if diag: a("s_memrealtime s[98:99]"); a("s_memtime s[94:95]")
    if not cfg.get('slow'):
        a(f"s_cmp_lt_u32 {S(chain.sFast)}, 32"); a("s_cbranch_scc1 L_chain_slow")
        chain.chain_loop(a, cfg, '', done)
    a.label("L_chain_slow")
    chain.chain_loop(a, dict(cfg, diag=None) if not cfg.get('slow') else cfg, ' sc1', done)
    a.label("L_t1")
    workers.role_t1(a, cfg, done)
    a.label("L_glu")
    a(f"s_cmp_ge_u32 {S(sH)}, 30"); a("s_cbranch_scc1 L_exit")
    if cfg.get('gludly'):
        wait_all_tickets(a, 1, 2)
        a("v_mov_b32 v2, 0"); a(f"s_mov_b32 {S(sT2)}, {WS_FLAG + F_T1}")
        wait_flags(a, 1, 2, S(sT2), 1, sleep=16)
    a(f"s_cmp_ge_u32 {S(sH)}, 22"); a("s_cbranch_scc1 L_t3")
    workers.role_t2(a, cfg, done)
    a.label("L_t3")
    workers.role_t3(a, cfg, done)
    a.label("L_p3")
    p3.p3_setup(a, cfg, done)
    if cfg.get('x_kill') is not None:
        a(f"s_cmp_eq_u32 {S(sG)}, {cfg['x_kill']}"); a(f"s_cbranch_scc1 {done}")
    p3.p3_consts(a, cfg)
    if diag: a("s_memrealtime s[98:99]")
    if not cfg.get('slow'):
        a(f"s_cmp_lt_u32 {S(workers.sX7)}, 32"); a("s_cbranch_scc1 L_p3_slow")
        p3.p3_loop(a, cfg, '', done)
    a.label("L_p3_slow")
    p3.p3_loop(a, cfg, ' sc1', done)
    if diag:
        a.label("L_done")
        a("s_nop 7"); a("s_nop 7")
        a("s_memrealtime s[100:101]"); a("s_memtime s[92:93]"); a("s_waitcnt lgkmcnt(0)"); a("s_sub_u32 s92, s92, s94")
        a(f"s_lshl_b32 {S(sT0)}, {S(sG)}, 5"); a(f"s_add_u32 {S(sT0)}, {S(sT0)}, {S(sH)}")
        a(f"s_lshl_b32 {S(sT0)}, {S(sT0)}, 2"); a(f"s_add_u32 {S(sT0)}, {S(sT0)}, {S(sW)}"); a(f"s_lshl_b32 {S(sT0)}, {S(sT0)}, 8")
        a(f"s_add_u32 {S(sT0)}, {S(sT0)}, {WS_DBG}")
        a("v_mov_b32 v13, 0")
        a(f"s_cmp_eq_u32 {S(sG)}, 0"); a("s_cselect_b32 s84, s97, s84")
        for k, s in enumerate([96, 98, 100, chain.sR1, chain.sR2, 92, sCnt, 84, 86, 88, 90, 70, 71, 72, 73, 74, 75, 76, 77]):
            a(f"v_mov_b32 v12, s{s}")
            a(f"buffer_store_dword v12, v13, {S(sWS,4)}, {S(sT0)} offen offset:{128+4*k}")
        if cfg.get('dbgout'):
            a("s_sub_u32 s40, s100, s96"); a("s_sub_u32 s41, s98, s96"); a("s_sub_u32 s42, s84, s96"); a("s_sub_u32 s43, s90, s96")
            a(f"s_min_u32 s44, {S(sG)}, 4"); a("s_lshl_b32 s44, s44, 2"); a("s_add_u32 s44, s44, 4")
            a("s_mov_b64 exec, 1")
            a("v_mov_b32 v12, s40"); a(f"buffer_atomic_umax v12, v13, {S(sDBG,4)}, s44 offen sc1")
            a("s_add_u32 s44, s44, 32")
            a(f"s_cmp_eq_u32 {S(sG)}, 0"); a("s_cselect_b32 s43, s41, s43")
            a(f"s_cmp_ge_u32 {S(sG)}, 4"); a("s_cselect_b32 s43, s41, s43")
            a("v_mov_b32 v12, s43"); a(f"buffer_atomic_umax v12, v13, {S(sDBG,4)}, s44 offen sc1")
            a("v_mov_b32 v12, s42"); a(f"buffer_atomic_umax v12, v13, {S(sDBG,4)}, 0 offen offset:24 sc1")
            a(f"s_cmp_eq_u32 {S(sG)}, 0"); a("s_cselect_b32 s92, s92, 0")
            a("v_mov_b32 v12, s92"); a(f"buffer_atomic_umax v12, v13, {S(sDBG,4)}, 0 offen offset:28 sc1")
            a("s_mov_b64 exec, -1")
            a("s_branch L_exit")
        for e in range(8):
            Le = a.newlabel('cal')
            a("s_memrealtime s[40:41]"); a("s_waitcnt lgkmcnt(0)")
            a.label(Le)
            a("s_memrealtime s[42:43]"); a("s_memtime s[44:45]"); a("s_waitcnt lgkmcnt(0)")
            a("s_cmp_eq_u32 s40, s42"); a(f"s_cbranch_scc1 {Le}")
            a("v_mov_b32 v12, s42"); a(f"buffer_store_dword v12, v13, {S(sWS,4)}, {S(sT0)} offen offset:{48+8*e}")
            a("v_mov_b32 v12, s44"); a(f"buffer_store_dword v12, v13, {S(sWS,4)}, {S(sT0)} offen offset:{52+8*e}")
    a.label("L_exit")
    a("s_endpgm")
    a.label("L_end")
    body = a.finish(cfg.get('verbose'))
    hdr = HEAD + f"""; @launch grid=(256,1,1) block=(256,1,1) lds=163840
.amdgcn_target "amdgcn-amd-amdhsa--gfx950"
.text
.globl {NAME}
.p2align 8
.type {NAME},@function
{NAME}:
"""
    tail = f""".section .rodata,"a"
.p2align 6
.amdhsa_kernel {NAME}
  .amdhsa_next_free_vgpr 512
  .amdhsa_next_free_sgpr 102
  .amdhsa_accum_offset 256
  .amdhsa_group_segment_fixed_size 0
  .amdhsa_kernarg_size 112
  .amdhsa_user_sgpr_count 2
  .amdhsa_user_sgpr_kernarg_segment_ptr 1
  .amdhsa_system_sgpr_workgroup_id_x 1
.end_amdhsa_kernel
"""
    return hdr + body + tail

DEF = dict(nsx=4, bqa=9, h2a=3, h1=[7,2,3], ntc=1, gludly=1, sync=0, pf=0, p3early=0, gmap=[1,4,7,0,2,5,3,6])
if __name__ == '__main__':
    cfg = dict(DEF); cfg.update(eval(sys.argv[2]) if len(sys.argv) > 2 else {})
    open(sys.argv[1], 'w').write(build(cfg))
```

```python
import sys
from common import *
import chain, workers, p3

NAME = 'recurrent_scan__memory_aug_recurrent_mem_tr__glu_gated_bilinear__prompt_kernel'
HEAD = open('recurrent_scan__memory_aug_recurrent_mem_tr__glu_gated_bilinear__prompt.s.ref').read().split('; Override launch')[0]

def build(cfg):
    a = Asm()
    diag = cfg.get('diag')
    a("s_cmp_ge_u32 s2, 256"); a("s_cbranch_scc1 L_exit")
    if diag: a("s_memrealtime s[96:97]")
    srd_load(a, [(sWS, 'ws'), (sDBG, 'dbg')])
    a("v_lshrrev_b32 v1, 6, v0"); a(f"v_readfirstlane_b32 {S(sW)}, v1")
    a("v_and_b32 v0, 63, v0")
    a(f"s_mov_b32 {S(sCnt)}, 0")
    a(f"s_getreg_b32 {S(sG)}, hwreg(HW_REG_XCC_ID)"); a(f"s_and_b32 {S(sG)}, {S(sG)}, 7")
    if cfg.get('gmap'):
        tab = sum(g << (4 * x) for x, g in enumerate(cfg['gmap']))
        a(f"s_lshl_b32 {S(sG)}, {S(sG)}, 2"); a(f"s_lshr_b32 {S(sG)}, {tab:#x}, {S(sG)}"); a(f"s_and_b32 {S(sG)}, {S(sG)}, 7")
    if cfg.get('fakexcc') == 1: a(f"s_lshr_b32 {S(sG)}, s2, 5")
    if cfg.get('fakexcc') == 2:
        a(f"s_lshr_b32 {S(sG)}, s2, 4"); a(f"s_min_u32 {S(sG)}, {S(sG)}, 7")
    a("v_mov_b32 v2, 0")
    a(f"s_cmp_lg_u32 {S(sW)}, 0"); a("s_cbranch_scc1 L_code")
    a("v_lshlrev_b32 v1, 2, v0")
    a(f"s_lshl_b32 {S(sT0)}, s2, 8"); a(f"s_add_u32 {S(sT0)}, {S(sT0)}, {WS_FLAG}")
    a(f"buffer_store_dword v2, v1, {S(sWS,4)}, {S(sT0)} offen sc1")
    a("v_mov_b32 v1, 1"); a(f"s_lshl_b32 {S(sT0)}, {S(sG)}, 5"); a(f"v_mov_b32 v3, {S(sT0)}")
    a("s_waitcnt vmcnt(0)")
    a("s_mov_b64 exec, 1")
    a(f"buffer_atomic_add v1, v3, {S(sDBG,4)}, 0 offen sc0 sc1")
    a("s_waitcnt vmcnt(0)")
    a("ds_write_b32 v2, v1")
    a("s_mov_b64 exec, -1")
    a("s_waitcnt lgkmcnt(0)")
    a("s_branch L_tk")
    a.label("L_code")
    if cfg.get('codepf', 1):
        a("s_getpc_b64 s[40:41]")
        a.label("L_pc")
        a("s_mov_b32 s42, L_end-L_pc-4")
        a("s_lshr_b32 s44, s2, 3"); a("s_and_b32 s44, s44, 3"); a("s_mul_i32 s44, s44, 3"); a(f"s_add_u32 s44, s44, {S(sW)}")
        a("s_sub_u32 s44, s44, 1"); a("s_lshl_b32 s44, s44, 13")
        a("v_lshlrev_b32 v3, 7, v0"); a("v_add_u32 v3, s44, v3")
        a("v_min_u32 v3, s42, v3")
        a("v_mov_b32 v5, s41"); a("v_add_co_u32 v4, vcc, s40, v3"); a("v_addc_co_u32 v5, vcc, 0, v5, vcc")
        a("global_load_dword v3, v[4:5], off")
        a("s_waitcnt vmcnt(0)")
    a.label("L_tk")
    a("s_barrier")
    a("ds_read_b32 v1, v2"); a("s_waitcnt lgkmcnt(0)")
    a(f"v_readfirstlane_b32 {S(sH)}, v1")
    a("s_barrier")
    a(f"s_cmp_lt_u32 {S(sH)}, 32"); a("s_cbranch_scc1 L_role")
    wait_all_tickets(a, 1, 2)
    sR, sX, sCn = 40, 41, 42
    a(f"s_sub_u32 {S(sR)}, {S(sH)}, 32")
    for x in range(7):
        a(f"v_readlane_b32 {S(sCn)}, v1, {x}"); a(f"s_max_u32 {S(sCn)}, {S(sCn)}, 32"); a(f"s_sub_u32 {S(sCn)}, {S(sCn)}, 32")
        a(f"s_cmp_gt_u32 {S(sG)}, {x}"); a(f"s_cselect_b32 {S(sCn)}, {S(sCn)}, 0"); a(f"s_add_u32 {S(sR)}, {S(sR)}, {S(sCn)}")
    for x in range(8):
        a(f"v_readlane_b32 {S(sCn)}, v1, {x}"); a(f"s_min_u32 {S(sCn)}, {S(sCn)}, 32")
        a(f"s_mov_b32 {S(sG)}, {x}"); a(f"s_add_u32 {S(sH)}, {S(sCn)}, {S(sR)}")
        a(f"s_cmp_lt_u32 {S(sH)}, 32"); a("s_cbranch_scc1 L_role")
        a(f"s_sub_u32 {S(sR)}, {S(sH)}, 32")
    a("s_branch L_exit")
    a.label("L_role")
    if diag:
        for q in list(range(84, 92)) + list(range(66, 78)): a(f"s_mov_b32 s{q}, 0")
    rstamp(a, cfg, 0)
    a(f"s_cmp_ge_u32 {S(sG)}, 4"); a("s_cbranch_scc1 L_p3")
    a(f"s_cmp_eq_u32 {S(sG)}, 3"); a("s_cbranch_scc1 L_glu")
    a(f"s_cmp_lg_u32 {S(sG)}, 0"); a("s_cbranch_scc1 L_t1")
    done = "L_done" if diag else "L_exit"
    m0 = chain.chain_setup(a, cfg)
    chain.chain_init_buffers(a, cfg, m0, ' sc1')
    def hook(n, w):
        t = chain.O(6)
        if n == 6 + w:
            wait_all_tickets(a, t, t + 1)
            a(f"v_readlane_b32 {S(chain.sFast)}, {R(t)}, 0")
            if w == 0:
                a(f"v_mov_b32 {R(t+1)}, 0"); a(f"v_mov_b32 {R(t)}, 1")
                a(f"s_lshl_b32 {S(sT0)}, {S(sH)}, 2"); a(f"s_add_u32 {S(sT0)}, {S(sT0)}, {WS_FLAG + F_RDY}")
                a("s_mov_b64 exec, 1")
                a(f"buffer_store_dword {R(t)}, {R(t+1)}, {S(sWS,4)}, {S(sT0)} offen sc1")
                a("s_mov_b64 exec, -1")
        if n == 22 and w == 1:
            a(f"v_and_b32 {R(t+4)}, 0x70, {R(chain.vL16)}"); a(f"s_mov_b32 {S(sT2)}, {WS_FLAG + F_RDY}")
            wait_flags(a, t, t + 4, S(sT2), 1, width=4)
        if n == 23:
            a(f"s_lshl_b32 {S(sT2)}, {S(sW)}, 11"); a(f"s_add_u32 {S(sT1)}, {S(sT2)}, {S(chain.sH1L)}"); a(f"s_add_u32 {S(sT3)}, {S(sT1)}, {512*KB}")
            for so in (sT1, sT3):
                for q in (0, 1): a(f"buffer_load_dwordx4 {R(t,4)}, {R(chain.vL16)}, {S(sWS,4)}, {S(so)} offen offset:{q*1024} sc1")
            a(f"s_lshl_b32 {S(sT1)}, {S(sH)}, 2"); a(f"s_add_u32 {S(sT1)}, {S(sT1)}, {S(sW)}"); a(f"s_lshl_b32 {S(sT1)}, {S(sT1)}, 10"); a(f"s_add_u32 {S(sT1)}, {S(sT1)}, {WS_MEMR}")
            a(f"buffer_load_dwordx4 {R(t,4)}, {R(chain.vL16)}, {S(sWS,4)}, {S(sT1)} offen sc1")
        if n == 27 and w == 2 and not cfg.get('noflag'):
            a(f"v_and_b32 {R(t+4)}, 0xb0, {R(chain.vL16)}")
            wait_flags(a, t, t + 4, S(chain.sF1), 1)
        if n == 28:
            chain.kv_dma(a, 'k', '')
            if w == 3:
                a(f"v_mov_b32 {R(chain.vT)}, 1")
                a(f"s_lshl_b32 {S(sT0)}, {S(sH)}, 7"); a(f"s_add_u32 {S(sT0)}, {S(sT0)}, {WS_FLAG + F_LD}")
                a("s_mov_b64 exec, 1")
                a(f"buffer_store_dword {R(chain.vT)}, {R(chain.vL16)}, {S(sWS,4)}, {S(sT0)} offen sc1")
                a("s_mov_b64 exec, -1")
    chain.chain_load_weights(a, cfg, hook)
    if diag:
        a("s_memrealtime s[90:91]"); a("s_waitcnt lgkmcnt(0)"); a("s_mov_b32 s97, s84")
    if diag: a("s_memrealtime s[98:99]"); a("s_memtime s[94:95]")
    if not cfg.get('slow'):
        a(f"s_cmp_lt_u32 {S(chain.sFast)}, 32"); a("s_cbranch_scc1 L_chain_slow")
        chain.chain_loop(a, cfg, '', done)
    a.label("L_chain_slow")
    chain.chain_loop(a, dict(cfg, diag=None) if not cfg.get('slow') else cfg, ' sc1', done)
    a.label("L_t1")
    workers.role_t1(a, cfg, done)
    a.label("L_glu")
    a(f"s_cmp_ge_u32 {S(sH)}, 30"); a("s_cbranch_scc1 L_exit")
    if cfg.get('gludly'):
        wait_all_tickets(a, 1, 2)
        a("v_mov_b32 v2, 0"); a(f"s_mov_b32 {S(sT2)}, {WS_FLAG + F_T1}")
        wait_flags(a, 1, 2, S(sT2), 1, sleep=16)
    a(f"s_cmp_ge_u32 {S(sH)}, 22"); a("s_cbranch_scc1 L_t3")
    workers.role_t2(a, cfg, done)
    a.label("L_t3")
    workers.role_t3(a, cfg, done)
    a.label("L_p3")
    p3.p3_setup(a, cfg, done)
    if cfg.get('x_kill') is not None:
        a(f"s_cmp_eq_u32 {S(sG)}, {cfg['x_kill']}"); a(f"s_cbranch_scc1 {done}")
    p3.p3_consts(a, cfg)
    if diag: a("s_memrealtime s[98:99]")
    if not cfg.get('slow'):
        a(f"s_cmp_lt_u32 {S(workers.sX7)}, 32"); a("s_cbranch_scc1 L_p3_slow")
        p3.p3_loop(a, cfg, '', done)
    a.label("L_p3_slow")
    p3.p3_loop(a, cfg, ' sc1', done)
    if diag:
        a.label("L_done")
        a("s_nop 7"); a("s_nop 7")
        if cfg.get('enc'):
            a(f"s_cmp_lg_u32 {S(sG)}, 0"); a("s_cbranch_scc1 L_exit")
            a("s_memrealtime s[100:101]"); a("s_waitcnt lgkmcnt(0)")
            if cfg['enc'] == 1: a("s_sub_u32 s40, s100, s96")
            if cfg['enc'] == 2: a("s_sub_u32 s40, s98, s96")
            a.label("L_enc")
            a("s_memrealtime s[42:43]"); a("s_waitcnt lgkmcnt(0)"); a("s_sub_u32 s42, s42, s100")
            a("s_cmp_lt_u32 s42, s40"); a("s_cbranch_scc1 L_enc")
            a("s_branch L_exit")
        a("s_memrealtime s[100:101]"); a("s_memtime s[92:93]"); a("s_waitcnt lgkmcnt(0)"); a("s_sub_u32 s92, s92, s94")
        a(f"s_lshl_b32 {S(sT0)}, {S(sG)}, 5"); a(f"s_add_u32 {S(sT0)}, {S(sT0)}, {S(sH)}")
        a(f"s_lshl_b32 {S(sT0)}, {S(sT0)}, 2"); a(f"s_add_u32 {S(sT0)}, {S(sT0)}, {S(sW)}"); a(f"s_lshl_b32 {S(sT0)}, {S(sT0)}, 8")
        a(f"s_add_u32 {S(sT0)}, {S(sT0)}, {WS_DBG}")
        a("v_mov_b32 v13, 0")
        a(f"s_cmp_eq_u32 {S(sG)}, 0"); a("s_cselect_b32 s84, s97, s84")
        for k, s in enumerate([96, 98, 100, chain.sR1, chain.sR2, 92, sCnt, 84, 86, 88, 90, 70, 71, 72, 73, 74, 75, 76, 77]):
            a(f"v_mov_b32 v12, s{s}")
            a(f"buffer_store_dword v12, v13, {S(sWS,4)}, {S(sT0)} offen offset:{128+4*k}")
        if cfg.get('dbgout'):
            a("s_sub_u32 s40, s100, s96"); a("s_sub_u32 s41, s98, s96"); a("s_sub_u32 s42, s84, s96"); a("s_sub_u32 s43, s90, s96")
            a(f"s_min_u32 s44, {S(sG)}, 4"); a("s_lshl_b32 s44, s44, 2"); a("s_add_u32 s44, s44, 4")
            a("s_mov_b64 exec, 1")
            a("v_mov_b32 v12, s40"); a(f"buffer_atomic_umax v12, v13, {S(sDBG,4)}, s44 offen sc1")
            a("s_add_u32 s44, s44, 32")
            a(f"s_cmp_eq_u32 {S(sG)}, 0"); a("s_cselect_b32 s43, s41, s43")
            a(f"s_cmp_ge_u32 {S(sG)}, 4"); a("s_cselect_b32 s43, s41, s43")
            a("v_mov_b32 v12, s43"); a(f"buffer_atomic_umax v12, v13, {S(sDBG,4)}, s44 offen sc1")
            a("v_mov_b32 v12, s42"); a(f"buffer_atomic_umax v12, v13, {S(sDBG,4)}, 0 offen offset:24 sc1")
            a(f"s_cmp_eq_u32 {S(sG)}, 0"); a("s_cselect_b32 s92, s92, 0")
            a("v_mov_b32 v12, s92"); a(f"buffer_atomic_umax v12, v13, {S(sDBG,4)}, 0 offen offset:28 sc1")
            a("s_mov_b64 exec, -1")
            a("s_branch L_exit")
        for e in range(8):
            Le = a.newlabel('cal')
            a("s_memrealtime s[40:41]"); a("s_waitcnt lgkmcnt(0)")
            a.label(Le)
            a("s_memrealtime s[42:43]"); a("s_memtime s[44:45]"); a("s_waitcnt lgkmcnt(0)")
            a("s_cmp_eq_u32 s40, s42"); a(f"s_cbranch_scc1 {Le}")
            a("v_mov_b32 v12, s42"); a(f"buffer_store_dword v12, v13, {S(sWS,4)}, {S(sT0)} offen offset:{48+8*e}")
            a("v_mov_b32 v12, s44"); a(f"buffer_store_dword v12, v13, {S(sWS,4)}, {S(sT0)} offen offset:{52+8*e}")
    a.label("L_exit")
    a("s_endpgm")
    a.label("L_end")
    body = a.finish(cfg.get('verbose'))
    hdr = HEAD + f"""; @launch grid=(256,1,1) block=(256,1,1) lds=163840
.amdgcn_target "amdgcn-amd-amdhsa--gfx950"
.text
.globl {NAME}
.p2align 8
.type {NAME},@function
{NAME}:
"""
    tail = f""".section .rodata,"a"
.p2align 6
.amdhsa_kernel {NAME}
  .amdhsa_next_free_vgpr 512
  .amdhsa_next_free_sgpr 102
  .amdhsa_accum_offset 256
  .amdhsa_group_segment_fixed_size 0
  .amdhsa_kernarg_size 112
  .amdhsa_user_sgpr_count 2
  .amdhsa_user_sgpr_kernarg_segment_ptr 1
  .amdhsa_system_sgpr_workgroup_id_x 1
.end_amdhsa_kernel
"""
    return hdr + body + tail

DEF = dict(nsx=4, bqa=9, h2a=3, h1=[7,2,3], ntc=1, gludly=1, sync=0, pf=0, p3early=0, gmap=[1,4,7,0,2,5,3,6])
if __name__ == '__main__':
    cfg = dict(DEF); cfg.update(eval(sys.argv[2]) if len(sys.argv) > 2 else {})
    open(sys.argv[1], 'w').write(build(cfg))
```
